```python
import torch

def _softmax(x, axis=-1):
    return torch.softmax(x, dim=axis)
def _gelu(x):
    return torch.nn.functional.gelu(x, approximate="tanh")
def _silu(x):
    return torch.nn.functional.silu(x)
def _sigmoid(x):
    return torch.sigmoid(x)
def _layernorm(x, axis=-1, eps=1e-5):
    m = x.mean(dim=axis, keepdim=True)
    v = x.var(dim=axis, keepdim=True, unbiased=False)
    return (x - m) / torch.sqrt(v + eps)
def _scatter_add(tgt, idx, src, axis=0):
    return tgt.clone().index_add_(axis, idx, src)
def _segment_sum(src, seg, n):
    out = torch.zeros((n,) + src.shape[1:], dtype=src.dtype)
    return out.index_add_(0, seg, src)
def _pad(x, pw):
    flat = tuple(v for pair in reversed(pw) for v in pair)
    return torch.nn.functional.pad(x, flat)

kernel_name = 'parallel_sum__mha_block_cached__glu_gated_glu__decode'

def setup_inputs():

    _w = (lambda a: (lambda t: t.to(torch.bfloat16) if t.is_floating_point() else t)(torch.as_tensor(a)))
    def _A_setup():
        B, Sq, D = 1, 1, 512
        H, Sk, Dh = 32, 32768, 128
        return {
            "x": _w((lambda *s: torch.randn(*s, dtype=torch.bfloat16) * 0.05)(B, Sq, D)),
            "k_cache": _w((lambda *s: torch.randn(*s, dtype=torch.bfloat16) * 3.2)(B, H, Sk, Dh)),
            "v_cache": _w((lambda *s: torch.randn(*s, dtype=torch.bfloat16) * 1.6)(B, H, Sk, Dh)),
            "wq": _w((lambda *s: torch.randn(*s, dtype=torch.bfloat16) * 3.2)(D, H * Dh) * (D ** -0.5)),
            "wo": _w((lambda *s: torch.randn(*s, dtype=torch.bfloat16) * 1.6)(H * Dh, D) * ((H * Dh) ** -0.5)),
        }
    _A_in = _A_setup()

    def _B_setup():
        B, S, D, F = 1, 1, 512, 1792
        return {
            "x": _w((lambda *s: torch.randn(*s, dtype=torch.bfloat16) * 0.05)(B, S, D)),
            "w_gate": _w((lambda *s: torch.randn(*s, dtype=torch.bfloat16) * 0.8)(D, F)),
            "w_up": _w((lambda *s: torch.randn(*s, dtype=torch.bfloat16) * 0.05)(D, F)),
            "w_down": _w((lambda *s: torch.randn(*s, dtype=torch.bfloat16) * 0.05)(F, D)),
        }
    _B_in = _B_setup()

    return {
        "A_x": _A_in["x"],
        "A_k_cache": _A_in["k_cache"],
        "A_v_cache": _A_in["v_cache"],
        "A_wq": _A_in["wq"],
        "A_wo": _A_in["wo"],
        "B_x": _B_in["x"],
        "B_w_gate": _B_in["w_gate"],
        "B_w_up": _B_in["w_up"],
        "B_w_down": _B_in["w_down"],
    }

def reference(A_x, A_k_cache, A_v_cache, A_wq, A_wo, B_x, B_w_gate, B_w_up, B_w_down):
    def _A_ref(x, k_cache, v_cache, wq, wo):
        B, Sq, D = x.shape
        H, Dh = 32, 128
        q = (lambda x, *d: x.permute(*d))((x @ wq).reshape(B, Sq, H, Dh), 0, 2, 1, 3)
        scores = torch.einsum("bhqd,bhkd->bhqk", q, k_cache) * (Dh ** -0.5)
        p = _softmax(scores, axis=-1)
        o = torch.einsum("bhqk,bhkd->bhqd", p, v_cache)
        return (lambda x, *d: x.permute(*d))(o, 0, 2, 1, 3).reshape(B, Sq, H * Dh) @ wo

    def _B_ref(x, w_gate, w_up, w_down):
        g = torch.einsum("bsd,df->bsf", x, w_gate)
        u = torch.einsum("bsd,df->bsf", x, w_up)
        h = _sigmoid(g) * u
        return torch.einsum("bsf,fd->bsd", h, w_down)

    x = A_x
    xn = _layernorm(x, axis=-1)
    return x + _A_ref(xn, A_k_cache, A_v_cache, A_wq, A_wo) + _B_ref(xn, B_w_gate, B_w_up, B_w_down)
```

```python
import sys, argparse

KNAME = "parallel_sum__mha_block_cached__glu_gated_glu__decode_kernel"

HEADER = """; Kernarg layout for this problem (96 bytes, ptrs only, base s[0:1]):
;   offset  24: d_in[3] A_wq  shape=(512, 4096) dtype=bfloat16 strides=(8192, 2) contiguous=True
"""


class G:
    def __init__(self):
        self.L = []
        self.q = []

    def I(self, s):
        self.L.append("  " + s)

    def C(self, s):
        self.L.append("  ; " + s)

    def lab(self, s):
        self.L.append(s + ":")

    def nop(self, n):
        while n > 0:
            k = min(n, 16)
            self.I(f"s_nop {k-1}")
            n -= k

    def vm(self, s, tag):
        self.I(s)
        self.q.append(tag)

    def wait_tag(self, tag, extra=""):
        idx = max(i for i, t in enumerate(self.q) if t == tag)
        n = len(self.q) - 1 - idx
        assert n <= 63, n
        self.I(f"s_waitcnt vmcnt({n}){extra}")
        self.q = self.q[idx + 1:]

    def wait_all(self):
        self.I("s_waitcnt vmcnt(0)")
        self.q = []

    def text(self):
        return "\n".join(self.L) + "\n"


def vr(b, n=1):
    return f"v{b}" if n == 1 else f"v[{b}:{b+n-1}]"


def sr(b, n=1):
    return f"s{b}" if n == 1 else f"s[{b}:{b+n-1}]"


S_X, S_K, S_V, S_WQ, S_WO, S_BX, S_GT, S_UP = 4, 6, 8, 10, 12, 14, 16, 18
S_DN, S_OUT, S_DBG, S_WS = 20, 22, 24, 26
R_K, R_V, R_WQ, R_WO, R_GT, R_UP, R_DN, R_X, R_WS, R_OUT, R_DBG = 28, 32, 36, 40, 44, 48, 52, 56, 60, 64, 68
S_H, S_SPLIT, S_WAVE, S_OFF, S_CNT = 72, 73, 74, 75, 76
S_SCALE, S_LOG2E, S_MASK, S_P, S_GJ, S_T0, S_T1, S_T2, S_GVALID = 78, 79, 80, 81, 82, 83, 84, 85, 86
S_O = 88
S_EX = 96

L_XN = 0
L_QP = 16384
L_GU = 20480
L_OP = 21504
L_ML = 25600
L_YP = 26624
L_FIN = 43008
LDS_BYTES = 44032

WS_Y = 0
WS_G = 512 * 1024
WS_ML = 1024 * 1024
WS_BYTES = 1024 * 1024 + 2048 + 4096


def srd(g, r, base_lo, base_hi, nbytes):
    g.I(f"s_mov_b32 s{r}, s{base_lo}")
    g.I(f"s_and_b32 s{r+1}, s{base_hi}, 0xffff")
    g.I(f"s_mov_b32 s{r+2}, {nbytes:#x}")
    g.I(f"s_mov_b32 s{r+3}, 0x00020000")


def bf16_round1(g, dst, src, tmp):
    g.I(f"v_cvt_pk_bf16_f32 v{tmp}, v{src}, v{src}")
    g.I(f"v_lshlrev_b32 v{dst}, 16, v{tmp}")


def bf16_round2(g, a, b, tmp):
    g.I(f"v_cvt_pk_bf16_f32 v{tmp}, v{a}, v{b}")
    g.I(f"v_lshlrev_b32 v{a}, 16, v{tmp}")
    g.I(f"v_and_b32 v{b}, s{S_MASK}, v{tmp}")


def row_allreduce(g, op, regs):
    n = len(regs)
    for r in (8, 4, 2, 1):
        for x in regs:
            g.I(f"v_{op}_dpp v{x}, v{x}, v{x} row_ror:{r} row_mask:0xf bank_mask:0xf")
        if n < 3:
            g.nop(3 - n)


def cross_row_allreduce(g, op, x, t):
    g.I(f"v_mov_b32 v{t}, v{x}")
    g.nop(2)
    g.I(f"v_permlane16_swap_b32 v{x}, v{t}")
    g.nop(1)
    g.I(f"v_{op} v{x}, v{x}, v{t}")
    g.I(f"v_mov_b32 v{t}, v{x}")
    g.nop(2)
    g.I(f"v_permlane32_swap_b32 v{x}, v{t}")
    g.nop(1)
    g.I(f"v_{op} v{x}, v{x}, v{t}")


def wave_allreduce(g, op, x, t):
    row_allreduce(g, op, [x])
    cross_row_allreduce(g, op, x, t)


def reduce_scatter_rows(g, regs):
    n = len(regs)
    h = n // 2
    g.nop(2)
    for k in range(h):
        g.I(f"v_permlane32_swap_b32 v{regs[k]}, v{regs[k+h]}")
    g.nop(1)
    for k in range(h):
        g.I(f"v_add_f32 v{regs[k]}, v{regs[k]}, v{regs[k+h]}")
    qn = h // 2
    g.nop(2)
    for k in range(qn):
        g.I(f"v_permlane16_swap_b32 v{regs[k]}, v{regs[k+qn]}")
    g.nop(1)
    for k in range(qn):
        g.I(f"v_add_f32 v{regs[k]}, v{regs[k]}, v{regs[k+qn]}")


def gen(cfg):
    D = cfg.ring
    NT = " nt" if cfg.nt else ""
    g = G()
    V_TID, V_LANE, V_KVOFF, V_G, V_Cc = 0, 1, 2, 3, 4
    V_Q = 8
    V_ACC = 12
    V_M, V_L = 20, 21
    V_S = 22
    V_P = 26
    V_PP = 32
    V_T = 40
    V_W = 64
    V_RING = 128
    assert V_RING + D * 32 <= 256

    g.L.append(HEADER.rstrip("\n"))
    if cfg.split:
        g.L.append(f"; @launch kernel=mainA_kernel grid=(256,1,1) block=(512,1,1) lds={LDS_BYTES}")
        g.L.append(f"; @launch kernel=finB_kernel grid=(32,1,1) block=(512,1,1) lds={LDS_BYTES}")
        kmain = "mainA_kernel"
    else:
        g.L.append(f"; @launch grid=(256,1,1) block=(512,1,1) lds={LDS_BYTES}")
        kmain = KNAME
    g.L.append('.amdgcn_target "amdgcn-amd-amdhsa--gfx950"')
    g.L.append(".text")

    def prologue_ptrs():
        g.I("s_load_dwordx16 s[4:19], s[0:1], 0")
        g.I("s_load_dwordx8 s[20:27], s[0:1], 64")
        g.I(f"s_mov_b32 s{S_SCALE}, 0x3db504f3")
        g.I(f"s_mov_b32 s{S_LOG2E}, 0x3fb8aa3b")
        g.I(f"s_mov_b32 s{S_MASK}, 0xffff0000")
        g.I(f"v_and_b32 v{V_LANE}, 63, v{V_TID}")
        g.I(f"v_lshrrev_b32 v{V_T}, 6, v{V_TID}")
        g.I(f"v_lshrrev_b32 v{V_G}, 4, v{V_LANE}")
        g.I(f"v_readfirstlane_b32 s{S_WAVE}, v{V_T}")
        g.I(f"v_and_b32 v{V_Cc}, 15, v{V_LANE}")

    g.L.append(f".globl {kmain}")
    g.L.append(".p2align 8")
    g.L.append(f".type {kmain},@function")
    g.lab(kmain)
    g.I("s_cmp_ge_u32 s2, 256")
    g.I("s_cbranch_scc1 L_end")
    prologue_ptrs()
    g.I(f"s_and_b32 s{S_T0}, s2, 7")
    g.I(f"s_lshr_b32 s{S_T1}, s2, 3")
    g.I(f"s_and_b32 s{S_T2}, s{S_T1}, 3")
    g.I(f"s_lshl_b32 s{S_H}, s{S_T0}, 2")
    g.I(f"s_add_u32 s{S_H}, s{S_H}, s{S_T2}")
    g.I(f"s_lshr_b32 s{S_SPLIT}, s{S_T1}, 2")
    g.I(f"s_lshl_b32 s{S_P}, s{S_H}, 3")
    g.I(f"s_add_u32 s{S_P}, s{S_P}, s{S_SPLIT}")
    g.I(f"s_mul_i32 s{S_GJ}, s{S_T0}, 28")
    g.I(f"s_add_u32 s{S_GJ}, s{S_GJ}, s{S_T1}")
    g.I(f"s_cmp_lt_u32 s{S_T1}, 28")
    g.I(f"s_cselect_b32 s{S_GVALID}, 1, 0")
    g.I(f"s_cselect_b32 s{S_GJ}, s{S_GJ}, 0")
    g.I("s_waitcnt lgkmcnt(0)")
    srd(g, R_X, S_X, S_X + 1, 1024)
    srd(g, R_WQ, S_WQ, S_WQ + 1, 512 * 8192)
    srd(g, R_GT, S_GT, S_GT + 1, 512 * 3584)
    srd(g, R_UP, S_UP, S_UP + 1, 512 * 3584)
    srd(g, R_DN, S_DN, S_DN + 1, 1792 * 1024)
    srd(g, R_WS, S_WS, S_WS + 1, WS_BYTES)
    srd(g, R_OUT, S_OUT, S_OUT + 1, 1024)
    srd(g, R_DBG, S_DBG, S_DBG + 1, 256)
    g.I(f"s_lshl_b32 s{S_T0}, s{S_P}, 20")
    g.I(f"s_add_u32 s{R_K}, s{S_K}, s{S_T0}")
    g.I(f"s_addc_u32 s{R_K+1}, s{S_K+1}, 0")
    g.I(f"s_and_b32 s{R_K+1}, s{R_K+1}, 0xffff")
    g.I(f"s_mov_b32 s{R_K+2}, 0x100000")
    g.I(f"s_mov_b32 s{R_K+3}, 0x00020000")
    g.I(f"s_add_u32 s{R_V}, s{S_V}, s{S_T0}")
    g.I(f"s_addc_u32 s{R_V+1}, s{S_V+1}, 0")
    g.I(f"s_and_b32 s{R_V+1}, s{R_V+1}, 0xffff")
    g.I(f"s_mov_b32 s{R_V+2}, 0x100000")
    g.I(f"s_mov_b32 s{R_V+3}, 0x00020000")
    g.I(f"s_lshl_b32 s{S_T0}, s{S_H}, 17")
    g.I(f"s_add_u32 s{R_WO}, s{S_WO}, s{S_T0}")
    g.I(f"s_addc_u32 s{R_WO+1}, s{S_WO+1}, 0")
    g.I(f"s_and_b32 s{R_WO+1}, s{R_WO+1}, 0xffff")
    g.I(f"s_mov_b32 s{R_WO+2}, 0x20000")
    g.I(f"s_mov_b32 s{R_WO+3}, 0x00020000")

    T = V_T
    V_XR = T
    V_GT = T + 4
    V_UP = T + 8
    V_DN = T + 12
    V_A = T + 16
    g.I(f"v_lshlrev_b32 v{V_A}, 4, v{V_LANE}")
    g.vm(f"buffer_load_dwordx4 {vr(V_XR,4)}, v{V_A}, {sr(R_X,4)}, 0 offen", "x")
    g.I(f"v_lshlrev_b32 v{V_A+1}, 17, v{V_G}")
    g.I(f"v_lshl_add_u32 v{V_A+1}, v{V_Cc}, 4, v{V_A+1}")
    g.I(f"s_lshl_b32 s{S_T0}, s{S_WAVE}, 19")
    g.I(f"s_lshl_b32 s{S_T1}, s{S_H}, 8")
    g.I(f"s_add_u32 s{S_T0}, s{S_T0}, s{S_T1}")
    for i in range(16):
        g.vm(f"buffer_load_dwordx4 {vr(V_W+4*i,4)}, v{V_A+1}, {sr(R_WQ,4)}, s{S_T0} offen", "wq")
        if i < 15:
            g.I(f"s_add_u32 s{S_T0}, s{S_T0}, 8192")
    g.I(f"s_movk_i32 s{S_T1}, 3584")
    g.I(f"v_mul_lo_u32 v{V_A+2}, v{V_TID}, s{S_T1}")
    g.I(f"s_lshl_b32 s{S_T2}, s{S_GJ}, 4")
    g.vm(f"buffer_load_dwordx4 {vr(V_GT,4)}, v{V_A+2}, {sr(R_GT,4)}, s{S_T2} offen", "gu")
    g.vm(f"buffer_load_dwordx4 {vr(V_UP,4)}, v{V_A+2}, {sr(R_UP,4)}, s{S_T2} offen", "gu")
    g.I(f"v_lshrrev_b32 v{V_A+3}, 3, v{V_LANE}")
    g.I(f"v_lshlrev_b32 v{V_A+3}, 10, v{V_A+3}")
    g.I(f"v_and_b32 v{V_A+4}, 7, v{V_LANE}")
    g.I(f"v_lshl_add_u32 v{V_A+3}, v{V_A+4}, 4, v{V_A+3}")
    g.I(f"s_lshl_b32 s{S_T2}, s{S_GJ}, 13")
    g.I(f"s_lshl_b32 s{S_T1}, s{S_WAVE}, 7")
    g.I(f"s_add_u32 s{S_T2}, s{S_T2}, s{S_T1}")
    g.vm(f"buffer_load_dwordx4 {vr(V_DN,4)}, v{V_A+3}, {sr(R_DN,4)}, s{S_T2} offen", "dn")
    g.I(f"v_lshlrev_b32 v{V_KVOFF}, 4, v{V_LANE}")
    g.I(f"s_lshl_b32 s{S_T0}, s{S_WAVE}, 12")
    g.I(f"v_add_u32 v{V_KVOFF}, s{S_T0}, v{V_KVOFF}")

    def issue_block(slot, tag):
        kb = V_RING + slot * 32
        for i in range(4):
            g.vm(f"buffer_load_dwordx4 {vr(kb+4*i,4)}, v{V_KVOFF}, {sr(R_K,4)}, s{S_OFF} offen offset:{i*1024}{NT}", tag)
        for i in range(4):
            g.vm(f"buffer_load_dwordx4 {vr(kb+16+4*i,4)}, v{V_KVOFF}, {sr(R_V,4)}, s{S_OFF} offen offset:{i*1024}{NT}", tag)
        g.I(f"s_add_u32 s{S_OFF}, s{S_OFF}, 32768")

    g.I(f"s_mov_b32 s{S_OFF}, 0")
    for b in range(D):
        issue_block(b, f"b{b}")

    XF = V_PP
    g.wait_tag("x")
    for j in range(4):
        g.I(f"v_lshlrev_b32 v{XF+2*j}, 16, v{V_XR+j}")
        g.I(f"v_and_b32 v{XF+2*j+1}, s{S_MASK}, v{V_XR+j}")
    t0, t1, t2, t3 = V_S, V_S + 1, V_S + 2, V_S + 3
    g.I(f"v_add_f32 v{t0}, v{XF}, v{XF+1}")
    for j in range(2, 8):
        g.I(f"v_add_f32 v{t0}, v{t0}, v{XF+j}")
    g.nop(2)
    wave_allreduce(g, "add_f32", t0, t1)
    g.I(f"v_mul_f32 v{t0}, 0x3b000000, v{t0}")
    g.I(f"v_sub_f32 v{t2}, v{XF}, v{t0}")
    g.I(f"v_mul_f32 v{t1}, v{t2}, v{t2}")
    for j in range(1, 8):
        g.I(f"v_sub_f32 v{t2}, v{XF+j}, v{t0}")
        g.I(f"v_fmac_f32 v{t1}, v{t2}, v{t2}")
    g.nop(2)
    wave_allreduce(g, "add_f32", t1, t2)
    g.I(f"v_mul_f32 v{t1}, 0x3b000000, v{t1}")
    bf16_round2(g, t0, t1, t2)
    g.I(f"v_add_f32 v{t1}, 0x3727c5ac, v{t1}")
    bf16_round1(g, t1, t1, t2)
    g.I(f"v_sqrt_f32 v{t1}, v{t1}")
    g.nop(1)
    bf16_round1(g, t1, t1, t2)
    g.I(f"v_rcp_f32 v{t3}, v{t1}")
    for j in range(8):
        g.I(f"v_sub_f32 v{XF+j}, v{XF+j}, v{t0}")
    for j in range(0, 8, 2):
        bf16_round2(g, XF + j, XF + j + 1, t2)
    for j in range(8):
        g.I(f"v_mul_f32 v{t2}, v{XF+j}, v{t3}")
        g.I(f"v_fma_f32 v{t0}, -v{t2}, v{t1}, v{XF+j}")
        g.I(f"v_fma_f32 v{XF+j}, v{t0}, v{t3}, v{t2}")
    for j in range(0, 8, 2):
        bf16_round2(g, XF + j, XF + j + 1, t2)
    g.I(f"s_lshl_b32 s{S_T0}, s{S_WAVE}, 11")
    g.I(f"v_lshlrev_b32 v{t0}, 5, v{V_LANE}")
    g.I(f"v_add_u32 v{t0}, s{S_T0}, v{t0}")
    g.I(f"ds_write_b128 v{t0}, {vr(XF,4)} offset:{L_XN}")
    g.I(f"ds_write_b128 v{t0}, {vr(XF+4,4)} offset:{L_XN+16}")
    XN16 = V_ACC
    g.I(f"s_mul_i32 s{S_T1}, s{S_WAVE}, 2304")
    g.I(f"v_lshlrev_b32 v{t0}, 6, v{V_G}")
    g.I(f"v_add_u32 v{28}, s{S_T1}, v{t0}")
    g.I(f"v_lshlrev_b32 v{t0}, 2, v{V_LANE}")
    g.I(f"v_add_u32 v{29}, s{S_T1}, v{t0}")
    g.I("s_waitcnt lgkmcnt(0)")
    for k in range(4):
        g.I(f"ds_read_b128 {vr(XN16+4*k,4)}, v28 offset:{L_XN+16*k}")
    g.I(f"ds_read_b32 v30, v29 offset:{L_XN}")
    g.I("s_waitcnt lgkmcnt(0)")
    QA = V_PP
    for j in range(8):
        g.I(f"v_mov_b32 v{QA+j}, 0")
    ta, tb = V_A + 6, V_A + 7
    for i in range(16):
        if i % 4 == 0:
            idxs = [k for k, t in enumerate(g.q) if t == "wq"]
            last = idxs[3]
            n = len(g.q) - 1 - last
            g.I(f"s_waitcnt vmcnt({n})")
            g.q = g.q[last + 1:]
        for j in range(4):
            w = V_W + 4 * i + j
            g.I(f"v_lshlrev_b32 v{ta}, 16, v{w}")
            g.I(f"v_and_b32 v{tb}, s{S_MASK}, v{w}")
            g.I(f"v_fmac_f32 v{QA+2*j}, v{ta}, v{XN16+i}")
            g.I(f"v_fmac_f32 v{QA+2*j+1}, v{tb}, v{XN16+i}")
    reduce_scatter_rows(g, [QA + j for j in range(8)])
    g.I(f"v_and_b32 v{ta}, 1, v{V_G}")
    g.I(f"v_lshlrev_b32 v{ta}, 3, v{ta}")
    g.I(f"v_lshrrev_b32 v{tb}, 1, v{V_G}")
    g.I(f"v_lshl_add_u32 v{ta}, v{tb}, 4, v{ta}")
    g.I(f"v_lshl_add_u32 v{V_A+5}, v{V_Cc}, 5, v{ta}")
    g.I(f"s_lshl_b32 s{S_T0}, s{S_WAVE}, 9")
    g.I(f"v_add_u32 v{ta}, s{S_T0}, v{V_A+5}")
    g.I(f"ds_write_b64 v{ta}, {vr(QA,2)} offset:{L_QP}")
    g.wait_tag("gu")
    GA = V_ACC
    for j in range(4):
        g.I(f"v_lshlrev_b32 v{GA+2*j}, 16, v{V_GT+j}")
        g.I(f"v_and_b32 v{GA+2*j+1}, s{S_MASK}, v{V_GT+j}")
        g.I(f"v_lshlrev_b32 v{GA+8+2*j}, 16, v{V_UP+j}")
        g.I(f"v_and_b32 v{GA+8+2*j+1}, s{S_MASK}, v{V_UP+j}")
    for j in range(16):
        g.I(f"v_mul_f32 v{GA+j}, v{GA+j}, v30")
    reduce_scatter_rows(g, [GA + j for j in range(16)])
    g.nop(2)
    row_allreduce(g, "add_f32", [GA + j for j in range(4)])
    g.I(f"v_lshlrev_b32 v{ta}, 7, v{V_G}")
    g.I(f"s_lshl_b32 s{S_T0}, s{S_WAVE}, 2")
    g.I(f"v_add_u32 v{ta}, s{S_T0}, v{ta}")
    g.I(f"v_cmp_eq_u32 vcc, 0, v{V_Cc}")
    g.I(f"s_and_saveexec_b64 {sr(S_EX,2)}, vcc")
    for k in range(4):
        g.I(f"ds_write_b32 v{ta}, v{GA+k} offset:{L_GU+32*k}")
    g.I(f"s_mov_b64 exec, {sr(S_EX,2)}")
    g.I("s_waitcnt lgkmcnt(0)")
    g.I("s_barrier")
    g.I(f"v_lshlrev_b32 v{ta}, 5, v{V_Cc}")
    for j in range(8):
        g.I(f"v_mov_b32 v{QA+j}, 0")
    for w in range(8):
        g.I(f"ds_read_b128 {vr(V_W+8*w,4)}, v{ta} offset:{L_QP+512*w}")
        g.I(f"ds_read_b128 {vr(V_W+8*w+4,4)}, v{ta} offset:{L_QP+512*w+16}")
    g.I(f"v_lshrrev_b32 v{tb}, 3, v{V_LANE}")
    g.I(f"v_lshlrev_b32 v{tb}, 5, v{tb}")
    g.I(f"ds_read_b128 {vr(GA,4)}, v{tb} offset:{L_GU}")
    g.I(f"ds_read_b128 {vr(GA+4,4)}, v{tb} offset:{L_GU+16}")
    g.I(f"ds_read_b128 {vr(GA+8,4)}, v{tb} offset:{L_GU+256}")
    g.I(f"ds_read_b128 {vr(GA+12,4)}, v{tb} offset:{L_GU+272}")
    g.I("s_waitcnt lgkmcnt(0)")
    for w in range(8):
        for j in range(8):
            g.I(f"v_add_f32 v{QA+j}, v{QA+j}, v{V_W+8*w+j}")
    for j in range(4):
        g.I(f"v_cvt_pk_bf16_f32 v{V_Q+j}, v{QA+2*j}, v{QA+2*j+1}")
    g.I(f"v_lshlrev_b32 v{ta}, 4, v{V_LANE}")
    g.I(f"s_lshl_b32 s{S_T0}, s{S_WAVE}, 14")
    for i in range(16):
        g.vm(f"buffer_load_dwordx4 {vr(V_W+4*i,4)}, v{ta}, {sr(R_WO,4)}, s{S_T0} offen offset:{(i%4)*1024}", "wo")
        if i % 4 == 3 and i < 15:
            g.I(f"s_add_u32 s{S_T0}, s{S_T0}, 4096")
    for j in range(1, 8):
        g.I(f"v_add_f32 v{GA}, v{GA}, v{GA+j}")
        g.I(f"v_add_f32 v{GA+8}, v{GA+8}, v{GA+8+j}")
    bf16_round2(g, GA, GA + 8, tb)
    g.I(f"v_mul_f32 v{GA+1}, s{S_LOG2E}, v{GA}")
    g.I(f"v_sub_f32 v{GA+1}, 0, v{GA+1}")
    g.I(f"v_exp_f32 v{GA+1}, v{GA+1}")
    g.nop(1)
    g.I(f"v_add_f32 v{GA+1}, 1.0, v{GA+1}")
    g.I(f"v_rcp_f32 v{GA+2}, v{GA+1}")
    g.nop(1)
    g.I(f"v_fma_f32 v{GA+3}, -v{GA+1}, v{GA+2}, 1.0")
    g.I(f"v_fma_f32 v{GA+2}, v{GA+3}, v{GA+2}, v{GA+2}")
    bf16_round1(g, GA + 2, GA + 2, tb)
    g.I(f"v_mul_f32 v{GA+2}, v{GA+2}, v{GA+8}")
    bf16_round1(g, GA + 2, GA + 2, tb)
    g.wait_tag("dn")
    YG = GA + 4
    for j in range(4):
        g.I(f"v_lshlrev_b32 v{YG+2*j}, 16, v{V_DN+j}")
        g.I(f"v_and_b32 v{YG+2*j+1}, s{S_MASK}, v{V_DN+j}")
    for j in range(8):
        g.I(f"v_mul_f32 v{YG+j}, v{YG+j}, v{GA+2}")
    g.nop(2)
    for j in range(8):
        g.I(f"v_add_f32_dpp v{YG+j}, v{YG+j}, v{YG+j} row_ror:8 row_mask:0xf bank_mask:0xf")
    reduce_scatter_rows(g, [YG + j for j in range(8)])
    g.I(f"v_and_b32 v{ta}, 7, v{V_LANE}")
    g.I(f"v_lshrrev_b32 v{tb}, 1, v{ta}")
    g.I(f"v_lshlrev_b32 v{tb}, 14, v{tb}")
    g.I(f"v_and_b32 v{ta}, 1, v{ta}")
    g.I(f"v_lshl_add_u32 v{tb}, v{ta}, 5, v{tb}")
    g.I(f"v_and_b32 v{ta}, 1, v{V_G}")
    g.I(f"v_lshl_add_u32 v{tb}, v{ta}, 3, v{tb}")
    g.I(f"v_lshrrev_b32 v{ta}, 1, v{V_G}")
    g.I(f"v_lshl_add_u32 v{tb}, v{ta}, 4, v{tb}")
    g.I(f"s_lshl_b32 s{S_T0}, s{S_WAVE}, 16")
    g.I(f"s_lshl_b32 s{S_T1}, s{S_GJ}, 6")
    g.I(f"s_add_u32 s{S_T0}, s{S_T0}, s{S_T1}")
    g.I(f"s_add_u32 s{S_T0}, s{S_T0}, {WS_G}")
    g.I(f"v_and_b32 v{ta}, 8, v{V_LANE}")
    g.I(f"v_cmp_eq_u32 vcc, 0, v{ta}")
    g.I(f"s_cmp_eq_u32 s{S_GVALID}, 0")
    g.I("s_cbranch_scc1 L_skip_glu")
    g.I(f"s_and_saveexec_b64 {sr(S_EX,2)}, vcc")
    g.I(f"buffer_store_dwordx2 {vr(YG,2)}, v{tb}, {sr(R_WS,4)}, s{S_T0} offen sc0 sc1")
    g.I(f"s_mov_b64 exec, {sr(S_EX,2)}")
    g.lab("L_skip_glu")
    g.q.append("glust")
    g.q.pop()

    g.I(f"v_mov_b32 v{V_M}, 0xff800000")
    g.I(f"v_mov_b32 v{V_L}, 0")
    for j in range(8):
        g.I(f"v_mov_b32 v{V_ACC+j}, 0")

    def compute_block(slot):
        kb = V_RING + slot * 32
        vb = kb + 16
        S = V_S
        for j in range(4):
            for i in range(4):
                src2 = "0" if j == 0 else f"v{S+i}"
                g.I(f"v_dot2_f32_bf16 v{S+i}, v{kb+4*i+j}, v{V_Q+j}, {src2}")
        row_allreduce(g, "add_f32", [S + i for i in range(4)])
        t = V_T
        g.I(f"v_cvt_pk_bf16_f32 v{t}, v{S}, v{S+1}")
        g.I(f"v_cvt_pk_bf16_f32 v{t+1}, v{S+2}, v{S+3}")
        g.I(f"v_lshlrev_b32 v{S}, 16, v{t}")
        g.I(f"v_and_b32 v{S+1}, s{S_MASK}, v{t}")
        g.I(f"v_lshlrev_b32 v{S+2}, 16, v{t+1}")
        g.I(f"v_and_b32 v{S+3}, s{S_MASK}, v{t+1}")
        for i in range(4):
            g.I(f"v_mul_f32 v{S+i}, s{S_SCALE}, v{S+i}")
        g.I(f"v_cvt_pk_bf16_f32 v{t}, v{S}, v{S+1}")
        g.I(f"v_cvt_pk_bf16_f32 v{t+1}, v{S+2}, v{S+3}")
        g.I(f"v_lshlrev_b32 v{S}, 16, v{t}")
        g.I(f"v_and_b32 v{S+1}, s{S_MASK}, v{t}")
        g.I(f"v_lshlrev_b32 v{S+2}, 16, v{t+1}")
        g.I(f"v_and_b32 v{S+3}, s{S_MASK}, v{t+1}")
        mn, al, mb = t + 2, t + 4, t + 3
        g.I(f"v_max3_f32 v{mn}, v{V_M}, v{S}, v{S+1}")
        g.I(f"v_max3_f32 v{mn}, v{mn}, v{S+2}, v{S+3}")
        g.I(f"v_sub_f32 v{al}, v{V_M}, v{mn}")
        g.I(f"v_mul_f32 v{mb}, s{S_LOG2E}, v{mn}")
        g.I(f"v_mul_f32 v{al}, s{S_LOG2E}, v{al}")
        for i in range(4):
            g.I(f"v_fma_f32 v{V_PP+2*i}, v{S+i}, s{S_LOG2E}, -v{mb}")
        g.I(f"v_exp_f32 v{al}, v{al}")
        for i in range(4):
            g.I(f"v_exp_f32 v{V_PP+2*i}, v{V_PP+2*i}")
        g.I(f"v_mov_b32 v{V_M}, v{mn}")
        g.I(f"v_mul_f32 v{V_L}, v{V_L}, v{al}")
        for j in range(4):
            g.I(f"v_pk_mul_f32 {vr(V_ACC+2*j,2)}, {vr(V_ACC+2*j,2)}, {vr(al,2)} op_sel_hi:[1,0]")
        g.I(f"v_add_f32 v{t}, v{V_PP}, v{V_PP+2}")
        g.I(f"v_add_f32 v{t+1}, v{V_PP+4}, v{V_PP+6}")
        g.I(f"v_add_f32 v{t}, v{t}, v{t+1}")
        g.I(f"v_add_f32 v{V_L}, v{V_L}, v{t}")
        u = [t + 6, t + 8, t + 10, t + 12]
        for i in range(4):
            for j in range(4):
                w = vb + 4 * i + j
                g.I(f"v_lshlrev_b32 v{u[j]}, 16, v{w}")
                g.I(f"v_and_b32 v{u[j]+1}, s{S_MASK}, v{w}")
            for j in range(4):
                g.I(f"v_pk_fma_f32 {vr(V_ACC+2*j,2)}, {vr(u[j],2)}, {vr(V_PP+2*i,2)}, {vr(V_ACC+2*j,2)} op_sel_hi:[1,0,1]")

    NB = 32
    for b in range(D):
        g.wait_tag(f"b{b}")
        compute_block(b)
        issue_block(b, f"b{b}")
    assert all(t.startswith("b") for t in g.q[-8*D:])
    nloop = (NB - D) // D
    assert nloop * D + D == NB
    g.I(f"s_mov_b32 s{S_CNT}, {nloop}")
    g.lab("L_loop")
    for b in range(D):
        g.I(f"s_waitcnt vmcnt({8*(D-1)})")
        compute_block(b)
        if True:
            issue_block(b, f"b{b}")
    g.I(f"s_sub_u32 s{S_CNT}, s{S_CNT}, 1")
    g.I(f"s_cmp_lg_u32 s{S_CNT}, 0")
    g.I("s_cbranch_scc1 L_loop")
    g.wait_all()
    t = V_T
    mw = t
    g.I(f"v_mov_b32 v{mw}, v{V_M}")
    cross_row_allreduce(g, "max_f32", mw, t + 1)
    g.I(f"v_sub_f32 v{t+2}, v{V_M}, v{mw}")
    g.I(f"v_mul_f32 v{t+2}, s{S_LOG2E}, v{t+2}")
    g.I(f"v_exp_f32 v{t+2}, v{t+2}")
    g.nop(1)
    g.I(f"v_mul_f32 v{V_L}, v{V_L}, v{t+2}")
    for j in range(8):
        g.I(f"v_mul_f32 v{V_ACC+j}, v{V_ACC+j}, v{t+2}")
    cross_row_allreduce(g, "add_f32", V_L, t + 1)
    reduce_scatter_rows(g, [V_ACC + j for j in range(8)])
    g.I(f"s_lshl_b32 s{S_T0}, s{S_WAVE}, 9")
    g.I(f"v_add_u32 v{t+3}, s{S_T0}, v{V_A+5}")
    g.I(f"ds_write_b64 v{t+3}, {vr(V_ACC,2)} offset:{L_OP}")
    g.I(f"v_mov_b32 v{t+1}, v{V_L}")
    g.I(f"s_lshl_b32 s{S_T0}, s{S_WAVE}, 3")
    g.I(f"v_mov_b32 v{t+3}, s{S_T0}")
    g.I(f"ds_write_b64 v{t+3}, {vr(t,2)} offset:{L_ML}")
    g.I("s_waitcnt lgkmcnt(0)")
    g.I("s_barrier")
    ML = V_PP
    ML = 24
    g.I(f"v_mov_b32 v{t+3}, 0")
    for k in range(4):
        g.I(f"ds_read_b128 {vr(ML+4*k,4)}, v{t+3} offset:{L_ML+16*k}")
    g.I(f"v_and_b32 v{t+4}, 7, v{V_LANE}")
    g.I(f"v_lshlrev_b32 v{t+4}, 3, v{t+4}")
    g.I(f"s_lshl_b32 s{S_T0}, s{S_WAVE}, 6")
    g.I(f"v_add_u32 v{t+4}, s{S_T0}, v{t+4}")
    OPR = V_RING
    for w in range(8):
        g.I(f"ds_read_b64 {vr(OPR+2*w,2)}, v{t+4} offset:{L_OP+512*w}")
    g.I("s_waitcnt lgkmcnt(0)")
    M = t
    g.I(f"v_max3_f32 v{M}, v{ML}, v{ML+2}, v{ML+4}")
    g.I(f"v_max3_f32 v{M}, v{M}, v{ML+6}, v{ML+8}")
    g.I(f"v_max3_f32 v{M}, v{M}, v{ML+10}, v{ML+12}")
    g.I(f"v_max_f32 v{M}, v{M}, v{ML+14}")
    for w in range(8):
        g.I(f"v_sub_f32 v{ML+2*w}, v{ML+2*w}, v{M}")
        g.I(f"v_mul_f32 v{ML+2*w}, s{S_LOG2E}, v{ML+2*w}")
    for w in range(8):
        g.I(f"v_exp_f32 v{ML+2*w}, v{ML+2*w}")
    g.nop(1)
    Lr = t + 1
    g.I(f"v_mul_f32 v{Lr}, v{ML}, v{ML+1}")
    for w in range(1, 8):
        g.I(f"v_fmac_f32 v{Lr}, v{ML+2*w}, v{ML+2*w+1}")
    oa, ob = t + 5, t + 6
    g.I(f"v_mul_f32 v{oa}, v{ML}, v{OPR}")
    g.I(f"v_mul_f32 v{ob}, v{ML}, v{OPR+1}")
    for w in range(1, 8):
        g.I(f"v_fmac_f32 v{oa}, v{ML+2*w}, v{OPR+2*w}")
        g.I(f"v_fmac_f32 v{ob}, v{ML+2*w}, v{OPR+2*w+1}")
    so = list(range(88, 96)) + list(range(4, 12))
    g.nop(1)
    for k in range(8):
        g.I(f"v_readlane_b32 s{so[2*k]}, v{oa}, {k}")
        g.I(f"v_readlane_b32 s{so[2*k+1]}, v{ob}, {k}")
    YA = V_ACC
    for j in range(8):
        g.I(f"v_mov_b32 v{YA+j}, 0")
    g.nop(2)
    ua, ub = t + 8, t + 9
    for r in range(16):
        for j in range(4):
            w = V_W + 4 * r + j
            g.I(f"v_lshlrev_b32 v{ua}, 16, v{w}")
            g.I(f"v_and_b32 v{ub}, s{S_MASK}, v{w}")
            g.I(f"v_fmac_f32 v{YA+2*j}, s{so[r]}, v{ua}")
            g.I(f"v_fmac_f32 v{YA+2*j+1}, s{so[r]}, v{ub}")
    g.I(f"v_lshlrev_b32 v{t+3}, 5, v{V_LANE}")
    g.I(f"s_lshl_b32 s{S_T0}, s{S_WAVE}, 11")
    g.I(f"v_add_u32 v{t+4}, s{S_T0}, v{t+3}")
    g.I(f"ds_write_b128 v{t+4}, {vr(YA,4)} offset:{L_YP}")
    g.I(f"ds_write_b128 v{t+4}, {vr(YA+4,4)} offset:{L_YP+16}")
    g.I("s_waitcnt lgkmcnt(0)")
    g.I("s_barrier")
    g.I(f"s_cmp_lg_u32 s{S_WAVE}, 0")
    g.I("s_cbranch_scc1 L_after_pub")
    for w in range(8):
        g.I(f"ds_read_b128 {vr(V_RING+8*w,4)}, v{t+3} offset:{L_YP+2048*w}")
        g.I(f"ds_read_b128 {vr(V_RING+8*w+4,4)}, v{t+3} offset:{L_YP+2048*w+16}")
    g.I("s_waitcnt lgkmcnt(0)")
    for w in range(1, 8):
        for j in range(8):
            g.I(f"v_add_f32 v{V_RING+j}, v{V_RING+j}, v{V_RING+8*w+j}")
    g.I(f"v_lshrrev_b32 v{t+3}, 1, v{V_LANE}")
    g.I(f"v_lshlrev_b32 v{t+3}, 14, v{t+3}")
    g.I(f"v_and_b32 v{t+4}, 1, v{V_LANE}")
    g.I(f"v_lshl_add_u32 v{t+3}, v{t+4}, 5, v{t+3}")
    g.I(f"s_lshl_b32 s{S_T0}, s{S_P}, 6")
    g.I(f"buffer_store_dwordx4 {vr(V_RING,4)}, v{t+3}, {sr(R_WS,4)}, s{S_T0} offen sc0 sc1")
    g.I(f"buffer_store_dwordx4 {vr(V_RING+4,4)}, v{t+3}, {sr(R_WS,4)}, s{S_T0} offen offset:16 sc0 sc1")
    g.I(f"s_lshl_b32 s{S_T0}, s{S_P}, 3")
    g.I(f"s_add_u32 s{S_T0}, s{S_T0}, {WS_ML}")
    g.I(f"v_mov_b32 v{t+4}, 0")
    g.I(f"v_cmp_eq_u32 vcc, 0, v{V_LANE}")
    g.I(f"s_and_saveexec_b64 {sr(S_EX,2)}, vcc")
    g.I(f"buffer_store_dwordx2 {vr(t,2)}, v{t+4}, {sr(R_WS,4)}, s{S_T0} offen sc0 sc1")
    g.I("s_waitcnt vmcnt(0)")
    if not cfg.split:
        g.I(f"s_lshl_b32 s{S_T0}, s{S_H}, 2")
        g.I(f"v_mov_b32 v{t+5}, 1")
        g.I(f"buffer_atomic_add v{t+5}, v{t+4}, {sr(R_DBG,4)}, s{S_T0} offen")
    g.I(f"s_mov_b64 exec, {sr(S_EX,2)}")
    g.lab("L_after_pub")

    def finisher(fid_sreg, poll):
        t = V_T
        if poll:
            g.I(f"s_cmp_lg_u32 s{S_WAVE}, 0")
            g.I("s_cbranch_scc1 L_poll_done")
            g.I(f"v_lshlrev_b32 v{t}, 2, v{V_LANE}")
            g.I(f"v_and_b32 v{t}, 0x7f, v{t}")
            g.I(f"s_mov_b32 s{S_CNT}, 0x40000")
            g.lab("L_poll")
            g.I(f"s_sub_u32 s{S_CNT}, s{S_CNT}, 1")
            g.I(f"s_cmp_eq_u32 s{S_CNT}, 0")
            g.I("s_cbranch_scc1 L_poll_done")
            g.I(f"buffer_load_dword v{t+1}, v{t}, {sr(R_DBG,4)}, 0 offen sc0 sc1")
            g.I("s_waitcnt vmcnt(0)")
            g.I(f"v_cmp_ne_u32 vcc, 8, v{t+1}")
            g.I("s_cbranch_vccz L_poll_done")
            g.I("s_sleep 1")
            g.I("s_branch L_poll")
            g.lab("L_poll_done")
            g.I("s_barrier")
        a0 = t
        g.I(f"v_lshlrev_b32 v{a0}, 4, v{V_TID}")
        g.I(f"s_lshl_b32 s{S_T0}, s{fid_sreg}, 14")
        Y1, Y2, G1, G2 = V_RING, V_RING + 4, V_RING + 8, V_RING + 12
        g.I(f"s_add_u32 s{S_T1}, s{S_T0}, 8192")
        g.I(f"buffer_load_dwordx4 {vr(Y1,4)}, v{a0}, {sr(R_WS,4)}, s{S_T0} offen sc0 sc1")
        g.I(f"buffer_load_dwordx4 {vr(Y2,4)}, v{a0}, {sr(R_WS,4)}, s{S_T1} offen sc0 sc1")
        g.I(f"s_add_u32 s{S_T0}, s{S_T0}, {WS_G}")
        g.I(f"s_add_u32 s{S_T1}, s{S_T1}, {WS_G}")
        g.I(f"buffer_load_dwordx4 {vr(G1,4)}, v{a0}, {sr(R_WS,4)}, s{S_T0} offen sc0 sc1")
        g.I(f"buffer_load_dwordx4 {vr(G2,4)}, v{a0}, {sr(R_WS,4)}, s{S_T1} offen sc0 sc1")
        g.I(f"v_lshrrev_b32 v{a0+1}, 5, v{V_TID}")
        g.I(f"v_lshlrev_b32 v{a0+1}, 6, v{a0+1}")
        g.I(f"s_mov_b32 s{S_T2}, {WS_ML}")
        A1, A2 = V_RING + 16, V_RING + 32
        for k in range(4):
            g.I(f"buffer_load_dwordx4 {vr(A1+4*k,4)}, v{a0+1}, {sr(R_WS,4)}, s{S_T2} offen offset:{16*k} sc0 sc1")
        for k in range(4):
            g.I(f"buffer_load_dwordx4 {vr(A2+4*k,4)}, v{a0+1}, {sr(R_WS,4)}, s{S_T2} offen offset:{1024+16*k} sc0 sc1")
        g.I(f"v_lshrrev_b32 v{a0+2}, 2, v{V_TID}")
        g.I(f"v_lshlrev_b32 v{a0+2}, 3, v{a0+2}")
        g.I(f"buffer_load_dword v{a0+3}, v{a0+2}, {sr(R_WS,4)}, s{S_T2} offen sc0 sc1")
        g.I(f"buffer_load_dword v{a0+4}, v{a0+2}, {sr(R_WS,4)}, s{S_T2} offen offset:1024 sc0 sc1")
        g.I(f"v_and_b32 v{a0+5}, 15, v{V_TID}")
        g.I(f"v_lshlrev_b32 v{a0+5}, 1, v{a0+5}")
        g.I(f"s_lshl_b32 s{S_T2}, s{fid_sreg}, 5")
        g.I(f"buffer_load_ushort v{a0+6}, v{a0+5}, {sr(R_X,4)}, s{S_T2} offen")
        g.I("s_waitcnt vmcnt(0)")
        coefs = []
        for (A, own, c) in ((A1, a0 + 3, a0 + 8), (A2, a0 + 4, a0 + 9)):
            M = a0 + 10
            g.I(f"v_max3_f32 v{M}, v{A}, v{A+2}, v{A+4}")
            g.I(f"v_max3_f32 v{M}, v{M}, v{A+6}, v{A+8}")
            g.I(f"v_max3_f32 v{M}, v{M}, v{A+10}, v{A+12}")
            g.I(f"v_max_f32 v{M}, v{M}, v{A+14}")
            for s in range(8):
                g.I(f"v_sub_f32 v{A+2*s}, v{A+2*s}, v{M}")
                g.I(f"v_mul_f32 v{A+2*s}, s{S_LOG2E}, v{A+2*s}")
            for s in range(8):
                g.I(f"v_exp_f32 v{A+2*s}, v{A+2*s}")
            g.I(f"v_sub_f32 v{own}, v{own}, v{M}")
            g.I(f"v_mul_f32 v{own}, s{S_LOG2E}, v{own}")
            g.I(f"v_exp_f32 v{own}, v{own}")
            Ls = a0 + 11
            g.I(f"v_mul_f32 v{Ls}, v{A}, v{A+1}")
            for s in range(1, 8):
                g.I(f"v_fmac_f32 v{Ls}, v{A+2*s}, v{A+2*s+1}")
            g.I(f"v_rcp_f32 v{c}, v{Ls}")
            g.nop(1)
            g.I(f"v_fma_f32 v{M}, -v{Ls}, v{c}, 1.0")
            g.I(f"v_fma_f32 v{c}, v{M}, v{c}, v{c}")
            g.I(f"v_mul_f32 v{c}, v{c}, v{own}")
        c1, c2 = a0 + 8, a0 + 9
        for j in range(4):
            g.I(f"v_mul_f32 v{Y1+j}, v{c1}, v{Y1+j}")
            g.I(f"v_fmac_f32 v{Y1+j}, v{c2}, v{Y2+j}")
        g.I(f"v_cmp_gt_u32 vcc, {96*4}, v{V_TID}")
        g.nop(2)
        for j in range(4):
            g.I(f"v_cndmask_b32 v{G2+j}, 0, v{G2+j}, vcc")
        for j in range(4):
            g.I(f"v_add_f32 v{Y1+4+j}, v{G1+j}, v{G2+j}")
        R8 = [Y1 + j for j in range(8)]
        g.nop(2)
        for r in (4, 8):
            for x in R8:
                g.I(f"v_add_f32_dpp v{x}, v{x}, v{x} row_ror:{r} row_mask:0xf bank_mask:0xf")
        reduce_scatter_rows(g, R8)
        g.I(f"v_and_b32 v{a0}, 3, v{V_LANE}")
        g.I(f"v_lshlrev_b32 v{a0}, 4, v{a0}")
        g.I(f"v_and_b32 v{a0+1}, 1, v{V_G}")
        g.I(f"v_lshl_add_u32 v{a0}, v{a0+1}, 3, v{a0}")
        g.I(f"v_lshrrev_b32 v{a0+1}, 1, v{V_G}")
        g.I(f"v_lshl_add_u32 v{a0}, v{a0+1}, 6, v{a0}")
        g.I(f"s_lshl_b32 s{S_T0}, s{S_WAVE}, 7")
        g.I(f"v_add_u32 v{a0}, s{S_T0}, v{a0}")
        g.I(f"ds_write_b64 v{a0}, {vr(R8[0],2)} offset:{L_FIN}")
        g.I("s_waitcnt lgkmcnt(0)")
        g.I("s_barrier")
        g.I(f"s_cmp_lg_u32 s{S_WAVE}, 0")
        g.I("s_cbranch_scc1 L_end2")
        g.I(f"v_and_b32 v{a0}, 15, v{V_LANE}")
        g.I(f"v_lshlrev_b32 v{a0}, 2, v{a0}")
        for w in range(8):
            g.I(f"ds_read_b32 v{V_RING+16+w}, v{a0} offset:{L_FIN+128*w}")
            g.I(f"ds_read_b32 v{V_RING+24+w}, v{a0} offset:{L_FIN+128*w+64}")
        g.I("s_waitcnt lgkmcnt(0)")
        for w in range(1, 8):
            g.I(f"v_add_f32 v{V_RING+16}, v{V_RING+16}, v{V_RING+16+w}")
            g.I(f"v_add_f32 v{V_RING+24}, v{V_RING+24}, v{V_RING+24+w}")
        bf16_round2(g, V_RING + 16, V_RING + 24, a0 + 1)
        g.I(f"v_lshlrev_b32 v{a0+6}, 16, v{a0+6}")
        g.I(f"v_add_f32 v{a0+6}, v{a0+6}, v{V_RING+16}")
        bf16_round1(g, a0 + 6, a0 + 6, a0 + 1)
        g.I(f"v_add_f32 v{a0+6}, v{a0+6}, v{V_RING+24}")
        g.I(f"v_cvt_pk_bf16_f32 v{a0+6}, v{a0+6}, v{a0+6}")
        g.I(f"v_cmp_gt_u32 vcc, 16, v{V_LANE}")
        g.I(f"s_and_saveexec_b64 {sr(S_EX,2)}, vcc")
        g.I(f"s_lshl_b32 s{S_T2}, s{fid_sreg}, 5")
        g.I(f"buffer_store_short v{a0+6}, v{a0+5}, {sr(R_OUT,4)}, s{S_T2} offen")
        g.lab("L_end2")

    if not cfg.split:
        g.I("s_cmp_ge_u32 s2, 32")
        g.I("s_cbranch_scc1 L_end")
        finisher(2, True)
    g.lab("L_end")
    g.I("s_endpgm")

    kernels = [kmain]
    if cfg.split:
        k2 = "finB_kernel"
        kernels.append(k2)
        g.L.append(f".globl {k2}")
        g.L.append(".p2align 8")
        g.L.append(f".type {k2},@function")
        g.lab(k2)
        g.I("s_cmp_ge_u32 s2, 32")
        g.I("s_cbranch_scc1 L_endB")
        prologue_ptrs()
        g.I("s_waitcnt lgkmcnt(0)")
        srd(g, R_X, S_X, S_X + 1, 1024)
        srd(g, R_WS, S_WS, S_WS + 1, WS_BYTES)
        srd(g, R_OUT, S_OUT, S_OUT + 1, 1024)
        finisher(2, False)
        g.lab("L_endB")
        g.I("s_endpgm")

    g.L.append('.section .rodata,"a"')
    for k in kernels:
        g.L.append(".p2align 6")
        g.L.append(f".amdhsa_kernel {k}")
        g.L.append("  .amdhsa_next_free_vgpr 256")
        g.L.append("  .amdhsa_next_free_sgpr 102")
        g.L.append("  .amdhsa_accum_offset 256")
        g.L.append("  .amdhsa_group_segment_fixed_size 0")
        g.L.append("  .amdhsa_kernarg_size 96")
        g.L.append("  .amdhsa_user_sgpr_count 2")
        g.L.append("  .amdhsa_user_sgpr_kernarg_segment_ptr 1")
        g.L.append("  .amdhsa_system_sgpr_workgroup_id_x 1")
        g.L.append(".end_amdhsa_kernel")
    return g.text()


if __name__ == "__main__":
    ap = argparse.ArgumentParser()
    ap.add_argument("--ring", type=int, default=4)
    ap.add_argument("--nt", type=int, default=1)
    ap.add_argument("--split", type=int, default=0)
    ap.add_argument("-o", default="parallel_sum__mha_block_cached__glu_gated_glu__decode.s")
    cfg = ap.parse_args()
    open(cfg.o, "w").write(gen(cfg))
    print("wrote", cfg.o)
```

```python
import sys, argparse

KNAME = "parallel_sum__mha_block_cached__glu_gated_glu__decode_kernel"

HEADER = """; Kernarg layout for this problem (96 bytes, ptrs only, base s[0:1]):
;   offset  24: d_in[3] A_wq  shape=(512, 4096) dtype=bfloat16 strides=(8192, 2) contiguous=True
"""


class G:
    def __init__(self):
        self.L = []
        self.q = []

    def I(self, s):
        self.L.append("  " + s)

    def C(self, s):
        self.L.append("  ; " + s)

    def lab(self, s):
        self.L.append(s + ":")

    def nop(self, n):
        while n > 0:
            k = min(n, 16)
            self.I(f"s_nop {k-1}")
            n -= k

    def vm(self, s, tag):
        self.I(s)
        self.q.append(tag)

    def wait_tag(self, tag, extra=""):
        if tag not in self.q:
            return
        idx = max(i for i, t in enumerate(self.q) if t == tag)
        n = len(self.q) - 1 - idx
        assert n <= 63, n
        self.I(f"s_waitcnt vmcnt({n}){extra}")
        self.q = self.q[idx + 1:]

    def wait_all(self):
        self.I("s_waitcnt vmcnt(0)")
        self.q = []

    def text(self):
        return "\n".join(self.L) + "\n"


def vr(b, n=1):
    return f"v{b}" if n == 1 else f"v[{b}:{b+n-1}]"


def sr(b, n=1):
    return f"s{b}" if n == 1 else f"s[{b}:{b+n-1}]"


S_X, S_K, S_V, S_WQ, S_WO, S_BX, S_GT, S_UP = 4, 6, 8, 10, 12, 14, 16, 18
S_DN, S_OUT, S_DBG, S_WS = 20, 22, 24, 26
R_K, R_V, R_WQ, R_WO, R_GT, R_UP, R_DN, R_X, R_WS, R_OUT, R_DBG = 28, 32, 36, 40, 44, 48, 52, 56, 60, 64, 68
S_H, S_SPLIT, S_WAVE, S_OFF, S_CNT = 72, 73, 74, 75, 76
S_SCALE, S_LOG2E, S_MASK, S_P, S_GJ, S_T0, S_T1, S_T2, S_GVALID = 78, 79, 80, 81, 82, 83, 84, 85, 86
S_O = 88
S_EX = 96

L_XN = 0
L_QP = 16384
L_GU = 20480
L_OP = 21504
L_ML = 25600
L_YP = 26624
L_FIN = 43008
LDS_BYTES = 44032

WS_Y = 0
WS_G = 512 * 1024
WS_ML = 1024 * 1024
WS_BYTES = 1024 * 1024 + 2048 + 4096


def srd(g, r, base_lo, base_hi, nbytes):
    g.I(f"s_mov_b32 s{r}, s{base_lo}")
    g.I(f"s_and_b32 s{r+1}, s{base_hi}, 0xffff")
    g.I(f"s_mov_b32 s{r+2}, {nbytes:#x}")
    g.I(f"s_mov_b32 s{r+3}, 0x00020000")


def bf16_round1(g, dst, src, tmp):
    g.I(f"v_cvt_pk_bf16_f32 v{tmp}, v{src}, v{src}")
    g.I(f"v_lshlrev_b32 v{dst}, 16, v{tmp}")


def bf16_round2(g, a, b, tmp):
    g.I(f"v_cvt_pk_bf16_f32 v{tmp}, v{a}, v{b}")
    g.I(f"v_lshlrev_b32 v{a}, 16, v{tmp}")
    g.I(f"v_and_b32 v{b}, s{S_MASK}, v{tmp}")


def row_allreduce(g, op, regs):
    n = len(regs)
    for r in (8, 4, 2, 1):
        for x in regs:
            g.I(f"v_{op}_dpp v{x}, v{x}, v{x} row_ror:{r} row_mask:0xf bank_mask:0xf")
        if n < 3:
            g.nop(3 - n)


def cross_row_allreduce(g, op, x, t):
    g.I(f"v_mov_b32 v{t}, v{x}")
    g.nop(2)
    g.I(f"v_permlane16_swap_b32 v{x}, v{t}")
    g.nop(1)
    g.I(f"v_{op} v{x}, v{x}, v{t}")
    g.I(f"v_mov_b32 v{t}, v{x}")
    g.nop(2)
    g.I(f"v_permlane32_swap_b32 v{x}, v{t}")
    g.nop(1)
    g.I(f"v_{op} v{x}, v{x}, v{t}")


def wave_allreduce(g, op, x, t):
    row_allreduce(g, op, [x])
    cross_row_allreduce(g, op, x, t)


def reduce_scatter_rows(g, regs):
    n = len(regs)
    h = n // 2
    g.nop(2)
    for k in range(h):
        g.I(f"v_permlane32_swap_b32 v{regs[k]}, v{regs[k+h]}")
    g.nop(1)
    for k in range(h):
        g.I(f"v_add_f32 v{regs[k]}, v{regs[k]}, v{regs[k+h]}")
    qn = h // 2
    g.nop(2)
    for k in range(qn):
        g.I(f"v_permlane16_swap_b32 v{regs[k]}, v{regs[k+qn]}")
    g.nop(1)
    for k in range(qn):
        g.I(f"v_add_f32 v{regs[k]}, v{regs[k]}, v{regs[k+qn]}")


S_TS = 98
def stamp(g, cfg, idx):
    if not cfg.stamp:
        return
    lab = f"L_st{idx}"
    g.I(f"s_cmp_lg_u32 s{S_WAVE}, 0")
    g.I(f"s_cbranch_scc1 {lab}")
    g.I(f"s_memrealtime s[{S_TS}:{S_TS+1}]")
    g.I("s_waitcnt lgkmcnt(0)")
    g.I(f"v_mov_b32 v5, s{S_TS}")
    g.I(f"s_lshl_b32 s{S_TS}, s2, 6")
    g.I(f"s_add_u32 s{S_TS}, s{S_TS}, {2*1024*1024 + idx*4}")
    g.I(f"v_mov_b32 v6, s{S_TS}")
    g.I(f"global_store_dword v6, v5, s[{S_WS}:{S_WS+1}]")
    g.I("s_waitcnt vmcnt(0)") if idx in cfg.stampwait else None
    g.lab(lab)

def gen(cfg):
    cfg.stampwait = ()
    D = cfg.ring
    NT = " nt" if cfg.nt else ""
    g = G()
    V_TID, V_LANE, V_KVOFF, V_G, V_Cc = 0, 1, 2, 3, 4
    V_Q = 8
    V_ACC = 12
    V_M, V_L = 20, 21
    V_S = 22
    V_P = 26
    V_PP = 32
    V_T = 40
    V_W = 64
    V_RING = 128
    assert V_RING + D * 32 <= 256

    g.L.append(HEADER.rstrip("\n"))
    if cfg.split:
        g.L.append(f"; @launch kernel=mainA_kernel grid=(256,1,1) block=(512,1,1) lds={LDS_BYTES}")
        g.L.append(f"; @launch kernel=finB_kernel grid=(32,1,1) block=(512,1,1) lds={LDS_BYTES}")
        kmain = "mainA_kernel"
    else:
        g.L.append(f"; @launch grid=(256,1,1) block=(512,1,1) lds={LDS_BYTES}")
        kmain = KNAME
    g.L.append('.amdgcn_target "amdgcn-amd-amdhsa--gfx950"')
    g.L.append(".text")

    def prologue_ptrs():
        g.I("s_load_dwordx16 s[4:19], s[0:1], 0")
        g.I("s_load_dwordx8 s[20:27], s[0:1], 64")
        g.I(f"s_mov_b32 s{S_SCALE}, 0x3db504f3")
        g.I(f"s_mov_b32 s{S_LOG2E}, 0x3fb8aa3b")
        g.I(f"s_mov_b32 s{S_MASK}, 0xffff0000")
        g.I(f"v_and_b32 v{V_LANE}, 63, v{V_TID}")
        g.I(f"v_lshrrev_b32 v{V_T}, 6, v{V_TID}")
        g.I(f"v_lshrrev_b32 v{V_G}, 4, v{V_LANE}")
        g.I(f"v_readfirstlane_b32 s{S_WAVE}, v{V_T}")
        g.I(f"v_and_b32 v{V_Cc}, 15, v{V_LANE}")

    g.L.append(f".globl {kmain}")
    g.L.append(".p2align 8")
    g.L.append(f".type {kmain},@function")
    g.lab(kmain)
    g.I("s_cmp_ge_u32 s2, 256")
    g.I("s_cbranch_scc1 L_end")
    prologue_ptrs()
    g.I(f"s_and_b32 s{S_T0}, s2, 7")
    g.I(f"s_lshr_b32 s{S_T1}, s2, 3")
    g.I(f"s_and_b32 s{S_T2}, s{S_T1}, 3")
    g.I(f"s_lshl_b32 s{S_H}, s{S_T0}, 2")
    g.I(f"s_add_u32 s{S_H}, s{S_H}, s{S_T2}")
    g.I(f"s_lshr_b32 s{S_SPLIT}, s{S_T1}, 2")
    if cfg.map == 1:
        g.I(f"s_mov_b32 s{S_H}, s{S_T1}")
        g.I(f"s_mov_b32 s{S_SPLIT}, s{S_T0}")
    g.I(f"s_lshl_b32 s{S_P}, s{S_H}, 3")
    g.I(f"s_add_u32 s{S_P}, s{S_P}, s{S_SPLIT}")
    g.I(f"s_mul_i32 s{S_GJ}, s{S_T0}, 28")
    g.I(f"s_add_u32 s{S_GJ}, s{S_GJ}, s{S_T1}")
    g.I(f"s_cmp_lt_u32 s{S_T1}, 28")
    g.I(f"s_cselect_b32 s{S_GVALID}, 1, 0")
    g.I(f"s_cselect_b32 s{S_GJ}, s{S_GJ}, 0")
    g.I("s_waitcnt lgkmcnt(0)")
    stamp(g, cfg, 0)
    srd(g, R_X, S_X, S_X + 1, 1024)
    srd(g, R_WQ, S_WQ, S_WQ + 1, 512 * 8192)
    srd(g, R_GT, S_GT, S_GT + 1, 512 * 3584)
    srd(g, R_UP, S_UP, S_UP + 1, 512 * 3584)
    srd(g, R_DN, S_DN, S_DN + 1, 1792 * 1024)
    srd(g, R_WS, S_WS, S_WS + 1, WS_BYTES)
    srd(g, R_OUT, S_OUT, S_OUT + 1, 1024)
    srd(g, R_DBG, S_DBG, S_DBG + 1, 256)
    if cfg.ilv:
        g.I(f"s_lshl_b32 s{S_T0}, s{S_H}, 23")
    else:
        g.I(f"s_lshl_b32 s{S_T0}, s{S_P}, 20")
    g.I(f"s_add_u32 s{R_K}, s{S_K}, s{S_T0}")
    g.I(f"s_addc_u32 s{R_K+1}, s{S_K+1}, 0")
    g.I(f"s_and_b32 s{R_K+1}, s{R_K+1}, 0xffff")
    g.I(f"s_mov_b32 s{R_K+2}, {0x800000 if cfg.ilv else 0x100000:#x}")
    g.I(f"s_mov_b32 s{R_K+3}, 0x00020000")
    g.I(f"s_add_u32 s{R_V}, s{S_V}, s{S_T0}")
    g.I(f"s_addc_u32 s{R_V+1}, s{S_V+1}, 0")
    g.I(f"s_and_b32 s{R_V+1}, s{R_V+1}, 0xffff")
    g.I(f"s_mov_b32 s{R_V+2}, {0x800000 if cfg.ilv else 0x100000:#x}")
    g.I(f"s_mov_b32 s{R_V+3}, 0x00020000")
    g.I(f"s_lshl_b32 s{S_T0}, s{S_H}, 17")
    g.I(f"s_add_u32 s{R_WO}, s{S_WO}, s{S_T0}")
    g.I(f"s_addc_u32 s{R_WO+1}, s{S_WO+1}, 0")
    g.I(f"s_and_b32 s{R_WO+1}, s{R_WO+1}, 0xffff")
    g.I(f"s_mov_b32 s{R_WO+2}, 0x20000")
    g.I(f"s_mov_b32 s{R_WO+3}, 0x00020000")

    T = V_T
    V_XR = T
    V_GT = T + 4
    V_UP = T + 8
    V_DN = T + 12
    V_A = T + 16
    g.I(f"v_lshlrev_b32 v{V_A}, 4, v{V_LANE}")
    g.vm(f"buffer_load_dwordx4 {vr(V_XR,4)}, v{V_A}, {sr(R_X,4)}, 0 offen", "x")
    g.I(f"v_lshlrev_b32 v{V_A+1}, 17, v{V_G}")
    g.I(f"v_lshl_add_u32 v{V_A+1}, v{V_Cc}, 4, v{V_A+1}")
    g.I(f"s_lshl_b32 s{S_T0}, s{S_WAVE}, 19")
    g.I(f"s_lshl_b32 s{S_T1}, s{S_H}, 8")
    g.I(f"s_add_u32 s{S_T0}, s{S_T0}, s{S_T1}")
    for i in range(16):
        g.vm(f"buffer_load_dwordx4 {vr(V_W+4*i,4)}, v{V_A+1}, {sr(R_WQ,4)}, s{S_T0} offen", "wq")
        if i < 15:
            g.I(f"s_add_u32 s{S_T0}, s{S_T0}, 8192")
    g.I(f"s_movk_i32 s{S_T1}, 3584")
    g.I(f"v_mul_lo_u32 v{V_A+2}, v{V_TID}, s{S_T1}")
    g.I(f"s_lshl_b32 s{S_T2}, s{S_GJ}, 4")
    g.vm(f"buffer_load_dwordx4 {vr(V_GT,4)}, v{V_A+2}, {sr(R_GT,4)}, s{S_T2} offen", "gu")
    g.vm(f"buffer_load_dwordx4 {vr(V_UP,4)}, v{V_A+2}, {sr(R_UP,4)}, s{S_T2} offen", "gu")
    g.I(f"v_lshrrev_b32 v{V_A+3}, 3, v{V_LANE}")
    g.I(f"v_lshlrev_b32 v{V_A+3}, 10, v{V_A+3}")
    g.I(f"v_and_b32 v{V_A+4}, 7, v{V_LANE}")
    g.I(f"v_lshl_add_u32 v{V_A+3}, v{V_A+4}, 4, v{V_A+3}")
    g.I(f"s_lshl_b32 s{S_T2}, s{S_GJ}, 13")
    g.I(f"s_lshl_b32 s{S_T1}, s{S_WAVE}, 7")
    g.I(f"s_add_u32 s{S_T2}, s{S_T2}, s{S_T1}")
    g.vm(f"buffer_load_dwordx4 {vr(V_DN,4)}, v{V_A+3}, {sr(R_DN,4)}, s{S_T2} offen", "dn")
    g.I(f"v_lshlrev_b32 v{V_KVOFF}, 4, v{V_LANE}")
    g.I(f"s_lshl_b32 s{S_T0}, s{S_WAVE}, 12")
    g.I(f"v_add_u32 v{V_KVOFF}, s{S_T0}, v{V_KVOFF}")

    def issue_block(slot, tag):
        kb = V_RING + slot * 32
        for i in range(4):
            g.vm(f"buffer_load_dwordx4 {vr(kb+4*i,4)}, v{V_KVOFF}, {sr(R_K,4)}, s{S_OFF} offen offset:{i*1024}{NT}", tag)
        for i in range(4):
            g.vm(f"buffer_load_dwordx4 {vr(kb+16+4*i,4)}, v{V_KVOFF}, {sr(R_V,4)}, s{S_OFF} offen offset:{i*1024}{NT}", tag)
        g.I(f"s_add_u32 s{S_OFF}, s{S_OFF}, {262144 if cfg.ilv else 32768}")

    g.I(f"s_mov_b32 s{S_OFF}, 0")
    if cfg.ilv:
        g.I(f"s_lshl_b32 s{S_OFF}, s{S_SPLIT}, 15")
    if cfg.prebar:
        g.I("s_barrier")
    for b in range(cfg.initring):
        issue_block(b, f"b{b}")

    XF = V_PP
    g.wait_tag("x")
    stamp(g, cfg, 6)
    for j in range(4):
        g.I(f"v_lshlrev_b32 v{XF+2*j}, 16, v{V_XR+j}")
        g.I(f"v_and_b32 v{XF+2*j+1}, s{S_MASK}, v{V_XR+j}")
    t0, t1, t2, t3 = V_S, V_S + 1, V_S + 2, V_S + 3
    g.I(f"v_add_f32 v{t0}, v{XF}, v{XF+1}")
    for j in range(2, 8):
        g.I(f"v_add_f32 v{t0}, v{t0}, v{XF+j}")
    g.nop(2)
    wave_allreduce(g, "add_f32", t0, t1)
    g.I(f"v_mul_f32 v{t0}, 0x3b000000, v{t0}")
    g.I(f"v_sub_f32 v{t2}, v{XF}, v{t0}")
    g.I(f"v_mul_f32 v{t1}, v{t2}, v{t2}")
    for j in range(1, 8):
        g.I(f"v_sub_f32 v{t2}, v{XF+j}, v{t0}")
        g.I(f"v_fmac_f32 v{t1}, v{t2}, v{t2}")
    g.nop(2)
    wave_allreduce(g, "add_f32", t1, t2)
    g.I(f"v_mul_f32 v{t1}, 0x3b000000, v{t1}")
    bf16_round2(g, t0, t1, t2)
    g.I(f"v_add_f32 v{t1}, 0x3727c5ac, v{t1}")
    bf16_round1(g, t1, t1, t2)
    g.I(f"v_sqrt_f32 v{t1}, v{t1}")
    g.nop(1)
    bf16_round1(g, t1, t1, t2)
    g.I(f"v_rcp_f32 v{t3}, v{t1}")
    for j in range(8):
        g.I(f"v_sub_f32 v{XF+j}, v{XF+j}, v{t0}")
    for j in range(0, 8, 2):
        bf16_round2(g, XF + j, XF + j + 1, t2)
    for j in range(8):
        g.I(f"v_mul_f32 v{t2}, v{XF+j}, v{t3}")
        g.I(f"v_fma_f32 v{t0}, -v{t2}, v{t1}, v{XF+j}")
        g.I(f"v_fma_f32 v{XF+j}, v{t0}, v{t3}, v{t2}")
    for j in range(0, 8, 2):
        bf16_round2(g, XF + j, XF + j + 1, t2)
    g.I(f"s_lshl_b32 s{S_T0}, s{S_WAVE}, 11")
    g.I(f"v_lshlrev_b32 v{t0}, 5, v{V_LANE}")
    g.I(f"v_add_u32 v{t0}, s{S_T0}, v{t0}")
    g.I(f"ds_write_b128 v{t0}, {vr(XF,4)} offset:{L_XN}")
    g.I(f"ds_write_b128 v{t0}, {vr(XF+4,4)} offset:{L_XN+16}")
    XN16 = V_ACC
    g.I(f"s_mul_i32 s{S_T1}, s{S_WAVE}, 2304")
    g.I(f"v_lshlrev_b32 v{t0}, 6, v{V_G}")
    g.I(f"v_add_u32 v{28}, s{S_T1}, v{t0}")
    g.I(f"v_lshlrev_b32 v{t0}, 2, v{V_LANE}")
    g.I(f"v_add_u32 v{29}, s{S_T1}, v{t0}")
    g.I("s_waitcnt lgkmcnt(0)")
    for k in range(4):
        g.I(f"ds_read_b128 {vr(XN16+4*k,4)}, v28 offset:{L_XN+16*k}")
    g.I(f"ds_read_b32 v30, v29 offset:{L_XN}")
    g.I("s_waitcnt lgkmcnt(0)")
    QA = V_PP
    for j in range(8):
        g.I(f"v_mov_b32 v{QA+j}, 0")
    ta, tb = V_A + 6, V_A + 7
    for i in range(16):
        if i % 4 == 0:
            idxs = [k for k, t in enumerate(g.q) if t == "wq"]
            last = idxs[3]
            n = len(g.q) - 1 - last
            g.I(f"s_waitcnt vmcnt({n})")
            g.q = g.q[last + 1:]
        for j in range(4):
            w = V_W + 4 * i + j
            g.I(f"v_lshlrev_b32 v{ta}, 16, v{w}")
            g.I(f"v_and_b32 v{tb}, s{S_MASK}, v{w}")
            g.I(f"v_fmac_f32 v{QA+2*j}, v{ta}, v{XN16+i}")
            g.I(f"v_fmac_f32 v{QA+2*j+1}, v{tb}, v{XN16+i}")
    reduce_scatter_rows(g, [QA + j for j in range(8)])
    g.I(f"v_and_b32 v{ta}, 1, v{V_G}")
    g.I(f"v_lshlrev_b32 v{ta}, 3, v{ta}")
    g.I(f"v_lshrrev_b32 v{tb}, 1, v{V_G}")
    g.I(f"v_lshl_add_u32 v{ta}, v{tb}, 4, v{ta}")
    g.I(f"v_lshl_add_u32 v{V_A+5}, v{V_Cc}, 5, v{ta}")
    g.I(f"s_lshl_b32 s{S_T0}, s{S_WAVE}, 9")
    g.I(f"v_add_u32 v{ta}, s{S_T0}, v{V_A+5}")
    g.I(f"ds_write_b64 v{ta}, {vr(QA,2)} offset:{L_QP}")
    g.wait_tag("gu")
    GA = V_ACC
    for j in range(4):
        g.I(f"v_lshlrev_b32 v{GA+2*j}, 16, v{V_GT+j}")
        g.I(f"v_and_b32 v{GA+2*j+1}, s{S_MASK}, v{V_GT+j}")
        g.I(f"v_lshlrev_b32 v{GA+8+2*j}, 16, v{V_UP+j}")
        g.I(f"v_and_b32 v{GA+8+2*j+1}, s{S_MASK}, v{V_UP+j}")
    for j in range(16):
        g.I(f"v_mul_f32 v{GA+j}, v{GA+j}, v30")
    reduce_scatter_rows(g, [GA + j for j in range(16)])
    g.nop(2)
    row_allreduce(g, "add_f32", [GA + j for j in range(4)])
    g.I(f"v_lshlrev_b32 v{ta}, 7, v{V_G}")
    g.I(f"s_lshl_b32 s{S_T0}, s{S_WAVE}, 2")
    g.I(f"v_add_u32 v{ta}, s{S_T0}, v{ta}")
    g.I(f"v_cmp_eq_u32 vcc, 0, v{V_Cc}")
    g.I(f"s_and_saveexec_b64 {sr(S_EX,2)}, vcc")
    for k in range(4):
        g.I(f"ds_write_b32 v{ta}, v{GA+k} offset:{L_GU+32*k}")
    g.I(f"s_mov_b64 exec, {sr(S_EX,2)}")
    g.I("s_waitcnt lgkmcnt(0)")
    g.I("s_barrier")
    stamp(g, cfg, 7)
    g.I(f"v_lshlrev_b32 v{ta}, 5, v{V_Cc}")
    for j in range(8):
        g.I(f"v_mov_b32 v{QA+j}, 0")
    for w in range(8):
        g.I(f"ds_read_b128 {vr(V_W+8*w,4)}, v{ta} offset:{L_QP+512*w}")
        g.I(f"ds_read_b128 {vr(V_W+8*w+4,4)}, v{ta} offset:{L_QP+512*w+16}")
    g.I(f"v_lshrrev_b32 v{tb}, 3, v{V_LANE}")
    g.I(f"v_lshlrev_b32 v{tb}, 5, v{tb}")
    g.I(f"ds_read_b128 {vr(GA,4)}, v{tb} offset:{L_GU}")
    g.I(f"ds_read_b128 {vr(GA+4,4)}, v{tb} offset:{L_GU+16}")
    g.I(f"ds_read_b128 {vr(GA+8,4)}, v{tb} offset:{L_GU+256}")
    g.I(f"ds_read_b128 {vr(GA+12,4)}, v{tb} offset:{L_GU+272}")
    g.I("s_waitcnt lgkmcnt(0)")
    for w in range(8):
        for j in range(8):
            g.I(f"v_add_f32 v{QA+j}, v{QA+j}, v{V_W+8*w+j}")
    for j in range(4):
        g.I(f"v_cvt_pk_bf16_f32 v{V_Q+j}, v{QA+2*j}, v{QA+2*j+1}")
    for b in range(cfg.initring, D):
        issue_block(b, f"b{b}")
    g.I(f"v_lshlrev_b32 v{ta}, 4, v{V_LANE}")
    g.I(f"s_lshl_b32 s{S_T0}, s{S_WAVE}, 14")
    for i in range(16):
        g.vm(f"buffer_load_dwordx4 {vr(V_W+4*i,4)}, v{ta}, {sr(R_WO,4)}, s{S_T0} offen offset:{(i%4)*1024}", "wo")
        if i % 4 == 3 and i < 15:
            g.I(f"s_add_u32 s{S_T0}, s{S_T0}, 4096")
    for j in range(1, 8):
        g.I(f"v_add_f32 v{GA}, v{GA}, v{GA+j}")
        g.I(f"v_add_f32 v{GA+8}, v{GA+8}, v{GA+8+j}")
    bf16_round2(g, GA, GA + 8, tb)
    g.I(f"v_mul_f32 v{GA+1}, s{S_LOG2E}, v{GA}")
    g.I(f"v_sub_f32 v{GA+1}, 0, v{GA+1}")
    g.I(f"v_exp_f32 v{GA+1}, v{GA+1}")
    g.nop(1)
    g.I(f"v_add_f32 v{GA+1}, 1.0, v{GA+1}")
    g.I(f"v_rcp_f32 v{GA+2}, v{GA+1}")
    g.nop(1)
    g.I(f"v_fma_f32 v{GA+3}, -v{GA+1}, v{GA+2}, 1.0")
    g.I(f"v_fma_f32 v{GA+2}, v{GA+3}, v{GA+2}, v{GA+2}")
    bf16_round1(g, GA + 2, GA + 2, tb)
    g.I(f"v_mul_f32 v{GA+2}, v{GA+2}, v{GA+8}")
    bf16_round1(g, GA + 2, GA + 2, tb)
    g.wait_tag("dn")
    YG = GA + 4
    for j in range(4):
        g.I(f"v_lshlrev_b32 v{YG+2*j}, 16, v{V_DN+j}")
        g.I(f"v_and_b32 v{YG+2*j+1}, s{S_MASK}, v{V_DN+j}")
    for j in range(8):
        g.I(f"v_mul_f32 v{YG+j}, v{YG+j}, v{GA+2}")
    g.nop(2)
    for j in range(8):
        g.I(f"v_add_f32_dpp v{YG+j}, v{YG+j}, v{YG+j} row_ror:8 row_mask:0xf bank_mask:0xf")
    reduce_scatter_rows(g, [YG + j for j in range(8)])
    g.I(f"v_and_b32 v{ta}, 7, v{V_LANE}")
    g.I(f"v_lshrrev_b32 v{tb}, 1, v{ta}")
    g.I(f"v_lshlrev_b32 v{tb}, 14, v{tb}")
    g.I(f"v_and_b32 v{ta}, 1, v{ta}")
    g.I(f"v_lshl_add_u32 v{tb}, v{ta}, 5, v{tb}")
    g.I(f"v_and_b32 v{ta}, 1, v{V_G}")
    g.I(f"v_lshl_add_u32 v{tb}, v{ta}, 3, v{tb}")
    g.I(f"v_lshrrev_b32 v{ta}, 1, v{V_G}")
    g.I(f"v_lshl_add_u32 v{tb}, v{ta}, 4, v{tb}")
    g.I(f"s_lshl_b32 s{S_T0}, s{S_WAVE}, 16")
    g.I(f"s_lshl_b32 s{S_T1}, s{S_GJ}, 6")
    g.I(f"s_add_u32 s{S_T0}, s{S_T0}, s{S_T1}")
    g.I(f"s_add_u32 s{S_T0}, s{S_T0}, {WS_G}")
    g.I(f"v_and_b32 v{ta}, 8, v{V_LANE}")
    g.I(f"v_cmp_eq_u32 vcc, 0, v{ta}")
    g.I(f"s_cmp_eq_u32 s{S_GVALID}, 0")
    g.I("s_cbranch_scc1 L_skip_glu")
    g.I(f"s_and_saveexec_b64 {sr(S_EX,2)}, vcc")
    g.I(f"buffer_store_dwordx2 {vr(YG,2)}, v{tb}, {sr(R_WS,4)}, s{S_T0} offen sc0 sc1")
    g.I(f"s_mov_b64 exec, {sr(S_EX,2)}")
    g.lab("L_skip_glu")
    g.q.append("glust")
    g.q.pop()

    stamp(g, cfg, 1)
    g.I(f"v_mov_b32 v{V_M}, 0xff800000")
    g.I(f"v_mov_b32 v{V_L}, 0")
    for j in range(8):
        g.I(f"v_mov_b32 v{V_ACC+j}, 0")

    def compute_block(slot):
        kb = V_RING + slot * 32
        vb = kb + 16
        S = V_S
        for j in range(4):
            for i in range(4):
                src2 = "0" if j == 0 else f"v{S+i}"
                g.I(f"v_dot2_f32_bf16 v{S+i}, v{kb+4*i+j}, v{V_Q+j}, {src2}")
        row_allreduce(g, "add_f32", [S + i for i in range(4)])
        t = V_T
        g.I(f"v_cvt_pk_bf16_f32 v{t}, v{S}, v{S+1}")
        g.I(f"v_cvt_pk_bf16_f32 v{t+1}, v{S+2}, v{S+3}")
        g.I(f"v_lshlrev_b32 v{S}, 16, v{t}")
        g.I(f"v_and_b32 v{S+1}, s{S_MASK}, v{t}")
        g.I(f"v_lshlrev_b32 v{S+2}, 16, v{t+1}")
        g.I(f"v_and_b32 v{S+3}, s{S_MASK}, v{t+1}")
        for i in range(4):
            g.I(f"v_mul_f32 v{S+i}, s{S_SCALE}, v{S+i}")
        g.I(f"v_cvt_pk_bf16_f32 v{t}, v{S}, v{S+1}")
        g.I(f"v_cvt_pk_bf16_f32 v{t+1}, v{S+2}, v{S+3}")
        g.I(f"v_lshlrev_b32 v{S}, 16, v{t}")
        g.I(f"v_and_b32 v{S+1}, s{S_MASK}, v{t}")
        g.I(f"v_lshlrev_b32 v{S+2}, 16, v{t+1}")
        g.I(f"v_and_b32 v{S+3}, s{S_MASK}, v{t+1}")
        mn, al, mb = t + 2, t + 4, t + 3
        g.I(f"v_max3_f32 v{mn}, v{V_M}, v{S}, v{S+1}")
        g.I(f"v_max3_f32 v{mn}, v{mn}, v{S+2}, v{S+3}")
        g.I(f"v_sub_f32 v{al}, v{V_M}, v{mn}")
        g.I(f"v_mul_f32 v{mb}, s{S_LOG2E}, v{mn}")
        g.I(f"v_mul_f32 v{al}, s{S_LOG2E}, v{al}")
        for i in range(4):
            g.I(f"v_fma_f32 v{V_PP+2*i}, v{S+i}, s{S_LOG2E}, -v{mb}")
        g.I(f"v_exp_f32 v{al}, v{al}")
        for i in range(4):
            g.I(f"v_exp_f32 v{V_PP+2*i}, v{V_PP+2*i}")
        g.I(f"v_mov_b32 v{V_M}, v{mn}")
        g.I(f"v_mul_f32 v{V_L}, v{V_L}, v{al}")
        for j in range(4):
            g.I(f"v_pk_mul_f32 {vr(V_ACC+2*j,2)}, {vr(V_ACC+2*j,2)}, {vr(al,2)} op_sel_hi:[1,0]")
        g.I(f"v_add_f32 v{t}, v{V_PP}, v{V_PP+2}")
        g.I(f"v_add_f32 v{t+1}, v{V_PP+4}, v{V_PP+6}")
        g.I(f"v_add_f32 v{t}, v{t}, v{t+1}")
        g.I(f"v_add_f32 v{V_L}, v{V_L}, v{t}")
        u = [t + 6, t + 8, t + 10, t + 12]
        for i in range(4):
            for j in range(4):
                w = vb + 4 * i + j
                g.I(f"v_lshlrev_b32 v{u[j]}, 16, v{w}")
                g.I(f"v_and_b32 v{u[j]+1}, s{S_MASK}, v{w}")
            for j in range(4):
                g.I(f"v_pk_fma_f32 {vr(V_ACC+2*j,2)}, {vr(u[j],2)}, {vr(V_PP+2*i,2)}, {vr(V_ACC+2*j,2)} op_sel_hi:[1,0,1]")

    NB = 32
    for b in range(D):
        g.wait_tag(f"b{b}")
        compute_block(b)
        issue_block(b, f"b{b}")
    assert all(t.startswith("b") for t in g.q[-8*D:])
    nloop = (NB - D) // D
    assert nloop * D + D == NB
    g.I(f"s_mov_b32 s{S_CNT}, {nloop}")
    g.lab("L_loop")
    for b in range(D):
        g.I(f"s_waitcnt vmcnt({8*(D-1)})")
        compute_block(b)
        if cfg.loopbar and (b % cfg.loopbar) == 0:
            g.I("s_barrier")
        issue_block(b, f"b{b}")
    g.I(f"s_sub_u32 s{S_CNT}, s{S_CNT}, 1")
    g.I(f"s_cmp_lg_u32 s{S_CNT}, 0")
    g.I("s_cbranch_scc1 L_loop")
    g.wait_all()
    stamp(g, cfg, 2)
    t = V_T
    mw = t
    g.I(f"v_mov_b32 v{mw}, v{V_M}")
    cross_row_allreduce(g, "max_f32", mw, t + 1)
    g.I(f"v_sub_f32 v{t+2}, v{V_M}, v{mw}")
    g.I(f"v_mul_f32 v{t+2}, s{S_LOG2E}, v{t+2}")
    g.I(f"v_exp_f32 v{t+2}, v{t+2}")
    g.nop(1)
    g.I(f"v_mul_f32 v{V_L}, v{V_L}, v{t+2}")
    for j in range(8):
        g.I(f"v_mul_f32 v{V_ACC+j}, v{V_ACC+j}, v{t+2}")
    cross_row_allreduce(g, "add_f32", V_L, t + 1)
    reduce_scatter_rows(g, [V_ACC + j for j in range(8)])
    g.I(f"s_lshl_b32 s{S_T0}, s{S_WAVE}, 9")
    g.I(f"v_add_u32 v{t+3}, s{S_T0}, v{V_A+5}")
    g.I(f"ds_write_b64 v{t+3}, {vr(V_ACC,2)} offset:{L_OP}")
    g.I(f"v_mov_b32 v{t+1}, v{V_L}")
    g.I(f"s_lshl_b32 s{S_T0}, s{S_WAVE}, 3")
    g.I(f"v_mov_b32 v{t+3}, s{S_T0}")
    g.I(f"ds_write_b64 v{t+3}, {vr(t,2)} offset:{L_ML}")
    g.I("s_waitcnt lgkmcnt(0)")
    g.I("s_barrier")
    ML = V_PP
    ML = 24
    g.I(f"v_mov_b32 v{t+3}, 0")
    for k in range(4):
        g.I(f"ds_read_b128 {vr(ML+4*k,4)}, v{t+3} offset:{L_ML+16*k}")
    g.I(f"v_and_b32 v{t+4}, 7, v{V_LANE}")
    g.I(f"v_lshlrev_b32 v{t+4}, 3, v{t+4}")
    g.I(f"s_lshl_b32 s{S_T0}, s{S_WAVE}, 6")
    g.I(f"v_add_u32 v{t+4}, s{S_T0}, v{t+4}")
    OPR = V_RING
    for w in range(8):
        g.I(f"ds_read_b64 {vr(OPR+2*w,2)}, v{t+4} offset:{L_OP+512*w}")
    g.I("s_waitcnt lgkmcnt(0)")
    M = t
    g.I(f"v_max3_f32 v{M}, v{ML}, v{ML+2}, v{ML+4}")
    g.I(f"v_max3_f32 v{M}, v{M}, v{ML+6}, v{ML+8}")
    g.I(f"v_max3_f32 v{M}, v{M}, v{ML+10}, v{ML+12}")
    g.I(f"v_max_f32 v{M}, v{M}, v{ML+14}")
    for w in range(8):
        g.I(f"v_sub_f32 v{ML+2*w}, v{ML+2*w}, v{M}")
        g.I(f"v_mul_f32 v{ML+2*w}, s{S_LOG2E}, v{ML+2*w}")
    for w in range(8):
        g.I(f"v_exp_f32 v{ML+2*w}, v{ML+2*w}")
    g.nop(1)
    Lr = t + 1
    g.I(f"v_mul_f32 v{Lr}, v{ML}, v{ML+1}")
    for w in range(1, 8):
        g.I(f"v_fmac_f32 v{Lr}, v{ML+2*w}, v{ML+2*w+1}")
    oa, ob = t + 5, t + 6
    g.I(f"v_mul_f32 v{oa}, v{ML}, v{OPR}")
    g.I(f"v_mul_f32 v{ob}, v{ML}, v{OPR+1}")
    for w in range(1, 8):
        g.I(f"v_fmac_f32 v{oa}, v{ML+2*w}, v{OPR+2*w}")
        g.I(f"v_fmac_f32 v{ob}, v{ML+2*w}, v{OPR+2*w+1}")
    so = list(range(88, 96)) + list(range(4, 12))
    g.nop(1)
    for k in range(8):
        g.I(f"v_readlane_b32 s{so[2*k]}, v{oa}, {k}")
        g.I(f"v_readlane_b32 s{so[2*k+1]}, v{ob}, {k}")
    YA = V_ACC
    for j in range(8):
        g.I(f"v_mov_b32 v{YA+j}, 0")
    g.nop(2)
    ua, ub = t + 8, t + 9
    for r in range(16):
        for j in range(4):
            w = V_W + 4 * r + j
            g.I(f"v_lshlrev_b32 v{ua}, 16, v{w}")
            g.I(f"v_and_b32 v{ub}, s{S_MASK}, v{w}")
            g.I(f"v_fmac_f32 v{YA+2*j}, s{so[r]}, v{ua}")
            g.I(f"v_fmac_f32 v{YA+2*j+1}, s{so[r]}, v{ub}")
    g.I(f"v_lshlrev_b32 v{t+3}, 5, v{V_LANE}")
    g.I(f"s_lshl_b32 s{S_T0}, s{S_WAVE}, 11")
    g.I(f"v_add_u32 v{t+4}, s{S_T0}, v{t+3}")
    g.I(f"ds_write_b128 v{t+4}, {vr(YA,4)} offset:{L_YP}")
    g.I(f"ds_write_b128 v{t+4}, {vr(YA+4,4)} offset:{L_YP+16}")
    g.I("s_waitcnt lgkmcnt(0)")
    g.I("s_barrier")
    g.I(f"s_cmp_lg_u32 s{S_WAVE}, 0")
    g.I("s_cbranch_scc1 L_after_pub")
    for w in range(8):
        g.I(f"ds_read_b128 {vr(V_RING+8*w,4)}, v{t+3} offset:{L_YP+2048*w}")
        g.I(f"ds_read_b128 {vr(V_RING+8*w+4,4)}, v{t+3} offset:{L_YP+2048*w+16}")
    g.I("s_waitcnt lgkmcnt(0)")
    for w in range(1, 8):
        for j in range(8):
            g.I(f"v_add_f32 v{V_RING+j}, v{V_RING+j}, v{V_RING+8*w+j}")
    g.I(f"v_lshrrev_b32 v{t+3}, 1, v{V_LANE}")
    g.I(f"v_lshlrev_b32 v{t+3}, 14, v{t+3}")
    g.I(f"v_and_b32 v{t+4}, 1, v{V_LANE}")
    g.I(f"v_lshl_add_u32 v{t+3}, v{t+4}, 5, v{t+3}")
    g.I(f"s_lshl_b32 s{S_T0}, s{S_P}, 6")
    g.I(f"buffer_store_dwordx4 {vr(V_RING,4)}, v{t+3}, {sr(R_WS,4)}, s{S_T0} offen sc0 sc1")
    g.I(f"buffer_store_dwordx4 {vr(V_RING+4,4)}, v{t+3}, {sr(R_WS,4)}, s{S_T0} offen offset:16 sc0 sc1")
    g.I(f"s_lshl_b32 s{S_T0}, s{S_P}, 3")
    g.I(f"s_add_u32 s{S_T0}, s{S_T0}, {WS_ML}")
    g.I(f"v_mov_b32 v{t+4}, 0")
    g.I(f"v_cmp_eq_u32 vcc, 0, v{V_LANE}")
    g.I(f"s_and_saveexec_b64 {sr(S_EX,2)}, vcc")
    g.I(f"buffer_store_dwordx2 {vr(t,2)}, v{t+4}, {sr(R_WS,4)}, s{S_T0} offen sc0 sc1")
    g.I("s_waitcnt vmcnt(0)")
    if not cfg.split:
        g.I(f"s_lshl_b32 s{S_T0}, s{S_H}, 2")
        g.I(f"v_mov_b32 v{t+5}, 1")
        g.I(f"buffer_atomic_add v{t+5}, v{t+4}, {sr(R_DBG,4)}, s{S_T0} offen")
    g.I(f"s_mov_b64 exec, {sr(S_EX,2)}")
    g.lab("L_after_pub")
    stamp(g, cfg, 3)

    def finisher(fid_sreg, poll):
        t = V_T
        if poll:
            g.I(f"s_cmp_lg_u32 s{S_WAVE}, 0")
            g.I("s_cbranch_scc1 L_poll_done")
            g.I(f"v_lshlrev_b32 v{t}, 2, v{V_LANE}")
            g.I(f"v_and_b32 v{t}, 0x7f, v{t}")
            g.I(f"s_mov_b32 s{S_CNT}, 0x40000")
            g.lab("L_poll")
            g.I(f"s_sub_u32 s{S_CNT}, s{S_CNT}, 1")
            g.I(f"s_cmp_eq_u32 s{S_CNT}, 0")
            g.I("s_cbranch_scc1 L_poll_done")
            g.I(f"buffer_load_dword v{t+1}, v{t}, {sr(R_DBG,4)}, 0 offen sc0 sc1")
            g.I("s_waitcnt vmcnt(0)")
            g.I(f"v_cmp_ne_u32 vcc, 8, v{t+1}")
            g.I("s_cbranch_vccz L_poll_done")
            g.I("s_sleep 1")
            g.I("s_branch L_poll")
            g.lab("L_poll_done")
            g.I("s_barrier")
        stamp(g, cfg, 4)
        a0 = t
        g.I(f"v_lshlrev_b32 v{a0}, 4, v{V_TID}")
        g.I(f"s_lshl_b32 s{S_T0}, s{fid_sreg}, 14")
        Y1, Y2, G1, G2 = V_RING, V_RING + 4, V_RING + 8, V_RING + 12
        g.I(f"s_add_u32 s{S_T1}, s{S_T0}, 8192")
        g.I(f"buffer_load_dwordx4 {vr(Y1,4)}, v{a0}, {sr(R_WS,4)}, s{S_T0} offen sc0 sc1")
        g.I(f"buffer_load_dwordx4 {vr(Y2,4)}, v{a0}, {sr(R_WS,4)}, s{S_T1} offen sc0 sc1")
        g.I(f"s_add_u32 s{S_T0}, s{S_T0}, {WS_G}")
        g.I(f"s_add_u32 s{S_T1}, s{S_T1}, {WS_G}")
        g.I(f"buffer_load_dwordx4 {vr(G1,4)}, v{a0}, {sr(R_WS,4)}, s{S_T0} offen sc0 sc1")
        g.I(f"buffer_load_dwordx4 {vr(G2,4)}, v{a0}, {sr(R_WS,4)}, s{S_T1} offen sc0 sc1")
        g.I(f"v_lshrrev_b32 v{a0+1}, 5, v{V_TID}")
        g.I(f"v_lshlrev_b32 v{a0+1}, 6, v{a0+1}")
        g.I(f"s_mov_b32 s{S_T2}, {WS_ML}")
        A1, A2 = V_RING + 16, V_RING + 32
        for k in range(4):
            g.I(f"buffer_load_dwordx4 {vr(A1+4*k,4)}, v{a0+1}, {sr(R_WS,4)}, s{S_T2} offen offset:{16*k} sc0 sc1")
        for k in range(4):
            g.I(f"buffer_load_dwordx4 {vr(A2+4*k,4)}, v{a0+1}, {sr(R_WS,4)}, s{S_T2} offen offset:{1024+16*k} sc0 sc1")
        g.I(f"v_lshrrev_b32 v{a0+2}, 2, v{V_TID}")
        g.I(f"v_lshlrev_b32 v{a0+2}, 3, v{a0+2}")
        g.I(f"buffer_load_dword v{a0+3}, v{a0+2}, {sr(R_WS,4)}, s{S_T2} offen sc0 sc1")
        g.I(f"buffer_load_dword v{a0+4}, v{a0+2}, {sr(R_WS,4)}, s{S_T2} offen offset:1024 sc0 sc1")
        g.I(f"v_and_b32 v{a0+5}, 15, v{V_TID}")
        g.I(f"v_lshlrev_b32 v{a0+5}, 1, v{a0+5}")
        g.I(f"s_lshl_b32 s{S_T2}, s{fid_sreg}, 5")
        g.I(f"buffer_load_ushort v{a0+6}, v{a0+5}, {sr(R_X,4)}, s{S_T2} offen")
        g.I("s_waitcnt vmcnt(0)")
        coefs = []
        for (A, own, c) in ((A1, a0 + 3, a0 + 8), (A2, a0 + 4, a0 + 9)):
            M = a0 + 10
            g.I(f"v_max3_f32 v{M}, v{A}, v{A+2}, v{A+4}")
            g.I(f"v_max3_f32 v{M}, v{M}, v{A+6}, v{A+8}")
            g.I(f"v_max3_f32 v{M}, v{M}, v{A+10}, v{A+12}")
            g.I(f"v_max_f32 v{M}, v{M}, v{A+14}")
            for s in range(8):
                g.I(f"v_sub_f32 v{A+2*s}, v{A+2*s}, v{M}")
                g.I(f"v_mul_f32 v{A+2*s}, s{S_LOG2E}, v{A+2*s}")
            for s in range(8):
                g.I(f"v_exp_f32 v{A+2*s}, v{A+2*s}")
            g.I(f"v_sub_f32 v{own}, v{own}, v{M}")
            g.I(f"v_mul_f32 v{own}, s{S_LOG2E}, v{own}")
            g.I(f"v_exp_f32 v{own}, v{own}")
            Ls = a0 + 11
            g.I(f"v_mul_f32 v{Ls}, v{A}, v{A+1}")
            for s in range(1, 8):
                g.I(f"v_fmac_f32 v{Ls}, v{A+2*s}, v{A+2*s+1}")
            g.I(f"v_rcp_f32 v{c}, v{Ls}")
            g.nop(1)
            g.I(f"v_fma_f32 v{M}, -v{Ls}, v{c}, 1.0")
            g.I(f"v_fma_f32 v{c}, v{M}, v{c}, v{c}")
            g.I(f"v_mul_f32 v{c}, v{c}, v{own}")
        c1, c2 = a0 + 8, a0 + 9
        for j in range(4):
            g.I(f"v_mul_f32 v{Y1+j}, v{c1}, v{Y1+j}")
            g.I(f"v_fmac_f32 v{Y1+j}, v{c2}, v{Y2+j}")
        g.I(f"v_cmp_gt_u32 vcc, {96*4}, v{V_TID}")
        g.nop(2)
        for j in range(4):
            g.I(f"v_cndmask_b32 v{G2+j}, 0, v{G2+j}, vcc")
        for j in range(4):
            g.I(f"v_add_f32 v{Y1+4+j}, v{G1+j}, v{G2+j}")
        R8 = [Y1 + j for j in range(8)]
        g.nop(2)
        for r in (4, 8):
            for x in R8:
                g.I(f"v_add_f32_dpp v{x}, v{x}, v{x} row_ror:{r} row_mask:0xf bank_mask:0xf")
        reduce_scatter_rows(g, R8)
        g.I(f"v_and_b32 v{a0}, 3, v{V_LANE}")
        g.I(f"v_lshlrev_b32 v{a0}, 4, v{a0}")
        g.I(f"v_and_b32 v{a0+1}, 1, v{V_G}")
        g.I(f"v_lshl_add_u32 v{a0}, v{a0+1}, 3, v{a0}")
        g.I(f"v_lshrrev_b32 v{a0+1}, 1, v{V_G}")
        g.I(f"v_lshl_add_u32 v{a0}, v{a0+1}, 6, v{a0}")
        g.I(f"s_lshl_b32 s{S_T0}, s{S_WAVE}, 7")
        g.I(f"v_add_u32 v{a0}, s{S_T0}, v{a0}")
        g.I(f"ds_write_b64 v{a0}, {vr(R8[0],2)} offset:{L_FIN}")
        g.I("s_waitcnt lgkmcnt(0)")
        g.I("s_barrier")
        g.I(f"s_cmp_lg_u32 s{S_WAVE}, 0")
        g.I("s_cbranch_scc1 L_end2")
        g.I(f"v_and_b32 v{a0}, 15, v{V_LANE}")
        g.I(f"v_lshlrev_b32 v{a0}, 2, v{a0}")
        for w in range(8):
            g.I(f"ds_read_b32 v{V_RING+16+w}, v{a0} offset:{L_FIN+128*w}")
            g.I(f"ds_read_b32 v{V_RING+24+w}, v{a0} offset:{L_FIN+128*w+64}")
        g.I("s_waitcnt lgkmcnt(0)")
        for w in range(1, 8):
            g.I(f"v_add_f32 v{V_RING+16}, v{V_RING+16}, v{V_RING+16+w}")
            g.I(f"v_add_f32 v{V_RING+24}, v{V_RING+24}, v{V_RING+24+w}")
        bf16_round2(g, V_RING + 16, V_RING + 24, a0 + 1)
        g.I(f"v_lshlrev_b32 v{a0+6}, 16, v{a0+6}")
        g.I(f"v_add_f32 v{a0+6}, v{a0+6}, v{V_RING+16}")
        bf16_round1(g, a0 + 6, a0 + 6, a0 + 1)
        g.I(f"v_add_f32 v{a0+6}, v{a0+6}, v{V_RING+24}")
        g.I(f"v_cvt_pk_bf16_f32 v{a0+6}, v{a0+6}, v{a0+6}")
        g.I(f"v_cmp_gt_u32 vcc, 16, v{V_LANE}")
        g.I(f"s_and_saveexec_b64 {sr(S_EX,2)}, vcc")
        g.I(f"s_lshl_b32 s{S_T2}, s{fid_sreg}, 5")
        g.I(f"buffer_store_short v{a0+6}, v{a0+5}, {sr(R_OUT,4)}, s{S_T2} offen")
        stamp(g, cfg, 5)
        g.lab("L_end2")

    if not cfg.split:
        g.I("s_cmp_ge_u32 s2, 32")
        g.I("s_cbranch_scc1 L_end")
        finisher(2, True)
    g.lab("L_end")
    g.I("s_endpgm")

    kernels = [kmain]
    if cfg.split:
        k2 = "finB_kernel"
        kernels.append(k2)
        g.L.append(f".globl {k2}")
        g.L.append(".p2align 8")
        g.L.append(f".type {k2},@function")
        g.lab(k2)
        g.I("s_cmp_ge_u32 s2, 32")
        g.I("s_cbranch_scc1 L_endB")
        prologue_ptrs()
        g.I("s_waitcnt lgkmcnt(0)")
        srd(g, R_X, S_X, S_X + 1, 1024)
        srd(g, R_WS, S_WS, S_WS + 1, WS_BYTES)
        srd(g, R_OUT, S_OUT, S_OUT + 1, 1024)
        finisher(2, False)
        g.lab("L_endB")
        g.I("s_endpgm")

    g.L.append('.section .rodata,"a"')
    for k in kernels:
        g.L.append(".p2align 6")
        g.L.append(f".amdhsa_kernel {k}")
        g.L.append("  .amdhsa_next_free_vgpr 256")
        g.L.append("  .amdhsa_next_free_sgpr 102")
        g.L.append("  .amdhsa_accum_offset 256")
        g.L.append("  .amdhsa_group_segment_fixed_size 0")
        g.L.append("  .amdhsa_kernarg_size 96")
        g.L.append("  .amdhsa_user_sgpr_count 2")
        g.L.append("  .amdhsa_user_sgpr_kernarg_segment_ptr 1")
        g.L.append("  .amdhsa_system_sgpr_workgroup_id_x 1")
        g.L.append(".end_amdhsa_kernel")
    return g.text()


if __name__ == "__main__":
    ap = argparse.ArgumentParser()
    ap.add_argument("--ring", type=int, default=4)
    ap.add_argument("--nt", type=int, default=1)
    ap.add_argument("--split", type=int, default=0)
    ap.add_argument("--stamp", type=int, default=0)
    ap.add_argument("--ilv", type=int, default=0)
    ap.add_argument("--initring", type=int, default=4)
    ap.add_argument("--map", type=int, default=0)
    ap.add_argument("--prebar", type=int, default=0)
    ap.add_argument("--loopbar", type=int, default=0)
    ap.add_argument("-o", default="parallel_sum__mha_block_cached__glu_gated_glu__decode.s")
    cfg = ap.parse_args()
    open(cfg.o, "w").write(gen(cfg))
    print("wrote", cfg.o)
```

```python
import sys, argparse
from gen import G, vr, sr, HEADER, KNAME

S_X, S_K, S_V, S_WQ, S_WO, S_BX, S_GT, S_UP = 4, 6, 8, 10, 12, 14, 16, 18
S_DN, S_OUT, S_DBG, S_WS = 20, 22, 24, 26
R_K, R_V, R_WQ, R_WO, R_GT, R_UP, R_DN, R_X, R_WS, R_OUT, R_DBG = 28, 32, 36, 40, 44, 48, 52, 56, 60, 64, 68
S_H, S_SPLIT, S_WAVE, S_OFF, S_CNT = 72, 73, 74, 75, 76
S_SCALE, S_LOG2E, S_MASK, S_P, S_GJ, S_T0, S_T1, S_T2, S_GVALID = 78, 79, 80, 81, 82, 83, 84, 85, 86
S_PLO, S_PHI = 87, 88
S_HOFF = 90
S_RB = 91
S_EX = 96
S_TS = 98

L_XN = 0
L_QP = 1024
L_GU = 5120
L_OP = 5632
L_ML = 9728
L_YP = 10240
L_FIN = 26624
LDS_BYTES = 27648

WS_Y = 0
WS_G = 512 * 1024
WS_ML = 1024 * 1024
WS_BYTES = 1024 * 1024 + 2048 + 4096


def srd(g, r, base_lo, base_hi, nbytes):
    g.I(f"s_mov_b32 s{r}, s{base_lo}")
    g.I(f"s_and_b32 s{r+1}, s{base_hi}, 0xffff")
    g.I(f"s_mov_b32 s{r+2}, {nbytes:#x}")
    g.I(f"s_mov_b32 s{r+3}, 0x00020000")


def srd_off(g, r, base_lo, base_hi, off_sreg, nbytes):
    g.I(f"s_add_u32 s{r}, s{base_lo}, s{off_sreg}")
    g.I(f"s_addc_u32 s{r+1}, s{base_hi}, 0")
    g.I(f"s_and_b32 s{r+1}, s{r+1}, 0xffff")
    g.I(f"s_mov_b32 s{r+2}, {nbytes:#x}")
    g.I(f"s_mov_b32 s{r+3}, 0x00020000")


def bf16_round1(g, dst, src, tmp):
    g.I(f"v_cvt_pk_bf16_f32 v{tmp}, v{src}, v{src}")
    g.I(f"v_lshlrev_b32 v{dst}, 16, v{tmp}")


def bf16_round2(g, a, b, tmp):
    g.I(f"v_cvt_pk_bf16_f32 v{tmp}, v{a}, v{b}")
    g.I(f"v_lshlrev_b32 v{a}, 16, v{tmp}")
    g.I(f"v_and_b32 v{b}, s{S_MASK}, v{tmp}")


def row_allreduce(g, op, regs):
    n = len(regs)
    for r in (8, 4, 2, 1):
        for x in regs:
            g.I(f"v_{op}_dpp v{x}, v{x}, v{x} row_ror:{r} row_mask:0xf bank_mask:0xf")
        if n < 3:
            g.nop(3 - n)


def cross_row_allreduce(g, op, x, t):
    g.I(f"v_mov_b32 v{t}, v{x}")
    g.nop(2)
    g.I(f"v_permlane16_swap_b32 v{x}, v{t}")
    g.nop(1)
    g.I(f"v_{op} v{x}, v{x}, v{t}")
    g.I(f"v_mov_b32 v{t}, v{x}")
    g.nop(2)
    g.I(f"v_permlane32_swap_b32 v{x}, v{t}")
    g.nop(1)
    g.I(f"v_{op} v{x}, v{x}, v{t}")


def wave_allreduce(g, op, x, t):
    row_allreduce(g, op, [x])
    cross_row_allreduce(g, op, x, t)


def reduce_scatter_rows(g, regs):
    n = len(regs)
    h = n // 2
    g.nop(2)
    for k in range(h):
        g.I(f"v_permlane32_swap_b32 v{regs[k]}, v{regs[k+h]}")
    g.nop(1)
    for k in range(h):
        g.I(f"v_add_f32 v{regs[k]}, v{regs[k]}, v{regs[k+h]}")
    qn = h // 2
    g.nop(2)
    for k in range(qn):
        g.I(f"v_permlane16_swap_b32 v{regs[k]}, v{regs[k+qn]}")
    g.nop(1)
    for k in range(qn):
        g.I(f"v_add_f32 v{regs[k]}, v{regs[k]}, v{regs[k+qn]}")


def stamp(g, cfg, idx, wave=0):
    if not cfg.stamp:
        return
    lab = f"L_st{idx}"
    g.I(f"s_cmp_lg_u32 s{S_WAVE}, {wave}")
    g.I(f"s_cbranch_scc1 {lab}")
    g.I(f"s_memrealtime s[{S_TS}:{S_TS+1}]")
    g.I("s_waitcnt lgkmcnt(0)")
    g.I(f"v_mov_b32 v5, s{S_TS}")
    g.I(f"s_lshl_b32 s{S_TS}, s2, 6")
    g.I(f"s_add_u32 s{S_TS}, s{S_TS}, {2*1024*1024 + idx*4}")
    g.I(f"v_mov_b32 v6, s{S_TS}")
    g.I(f"global_store_dword v6, v5, s[{S_WS}:{S_WS+1}]")
    g.lab(lab)


def gen(cfg):
    D = 4
    NT = " nt" if cfg.nt else ""
    g = G()
    V_TID, V_LANE, V_KVOFF, V_G, V_Cc, V_WOA = 0, 1, 2, 3, 4, 7
    V_Q = 8
    V_ACC = 12
    V_M, V_L = 20, 21
    V_S = 22
    V_PP = 32
    V_T = 40
    V_GT, V_UP, V_DN = 46, 50, 54
    V_XROW = 60
    V_QOFF = 61
    TMP8 = [26, 27, 28, 29, 30, 31, 58, 59]
    V_W = 64
    V_RING = 128
    LNW = cfg.lnwave

    g.L.append(HEADER.rstrip("\n"))
    g.L.append(f"; @launch grid=(256,1,1) block=(512,1,1) lds={LDS_BYTES}")
    kmain = KNAME
    g.L.append('.amdgcn_target "amdgcn-amd-amdhsa--gfx950"')
    g.L.append(".text")
    g.L.append(f".globl {kmain}")
    g.L.append(".p2align 8")
    g.L.append(f".type {kmain},@function")
    g.lab(kmain)
    g.I("s_cmp_ge_u32 s2, 256")
    g.I("s_cbranch_scc1 L_end")
    g.I("s_load_dwordx16 s[4:19], s[0:1], 0")
    g.I("s_load_dwordx8 s[20:27], s[0:1], 64")
    g.I(f"v_and_b32 v{V_LANE}, 63, v{V_TID}")
    g.I(f"v_lshrrev_b32 v{V_T}, 6, v{V_TID}")
    g.I(f"v_lshrrev_b32 v{V_G}, 4, v{V_LANE}")
    g.I(f"v_readfirstlane_b32 s{S_WAVE}, v{V_T}")
    g.I(f"v_and_b32 v{V_Cc}, 15, v{V_LANE}")
    g.I(f"s_mov_b32 s{S_SCALE}, 0x3db504f3")
    g.I(f"s_mov_b32 s{S_LOG2E}, 0x3fb8aa3b")
    g.I(f"s_mov_b32 s{S_MASK}, 0xffff0000")
    g.I(f"s_mov_b32 s{S_PLO}, 0x05040100")
    g.I(f"s_mov_b32 s{S_PHI}, 0x07060302")
    g.I(f"s_and_b32 s{S_T0}, s2, 7")
    g.I(f"s_lshr_b32 s{S_T1}, s2, 3")
    g.I(f"s_and_b32 s{S_T2}, s{S_T1}, 3")
    g.I(f"s_lshl_b32 s{S_H}, s{S_T0}, 2")
    g.I(f"s_add_u32 s{S_H}, s{S_H}, s{S_T2}")
    g.I(f"s_lshr_b32 s{S_SPLIT}, s{S_T1}, 2")
    g.I(f"s_lshl_b32 s{S_P}, s{S_H}, 3")
    g.I(f"s_add_u32 s{S_P}, s{S_P}, s{S_SPLIT}")
    g.I(f"s_lshl_b32 s{S_HOFF}, s{S_H}, 2")
    g.I(f"s_mul_i32 s{S_GJ}, s{S_T0}, 28")
    g.I(f"s_add_u32 s{S_GJ}, s{S_GJ}, s{S_T1}")
    g.I(f"s_cmp_lt_u32 s{S_T1}, 28")
    g.I(f"s_cselect_b32 s{S_GVALID}, 1, 0")
    g.I(f"s_cselect_b32 s{S_GJ}, s{S_GJ}, 0")
    V_A = 56
    g.I(f"v_lshlrev_b32 v{V_WOA}, 4, v{V_LANE}")
    g.I(f"v_lshlrev_b32 v{V_A+1}, 14, v{V_G}")
    g.I(f"v_lshl_add_u32 v{V_A+1}, v{V_Cc}, 4, v{V_A+1}")
    g.I(f"s_lshl_b32 s{S_T0}, s{S_WAVE}, 16")
    g.I(f"s_lshl_b32 s{S_T1}, s{S_H}, 8")
    g.I(f"s_add_u32 s{S_RB}, s{S_T0}, s{S_T1}")
    g.I(f"s_lshl_b32 s{S_T1}, s{S_WAVE}, 12")
    g.I(f"v_add_u32 v{V_KVOFF}, s{S_T1}, v{V_WOA}")
    g.I(f"s_lshl_b32 s{S_T2}, s{S_P}, 20")
    g.I("s_waitcnt lgkmcnt(0)")
    stamp(g, cfg, 0)
    srd(g, R_WQ, S_WQ, S_WQ + 1, 512 * 8192)
    srd(g, R_X, S_X, S_X + 1, 1024)
    srd_off(g, R_K, S_K, S_K + 1, S_T2, 0x100000)
    srd_off(g, R_V, S_V, S_V + 1, S_T2, 0x100000)
    g.I(f"s_cmp_lg_u32 s{S_WAVE}, {LNW}")
    g.I("s_cbranch_scc1 L_loads")
    V_XR = V_T
    XF = V_PP
    g.I(f"buffer_load_dwordx4 {vr(V_XR,4)}, v{V_WOA}, {sr(R_X,4)}, 0 offen")
    g.I("s_waitcnt vmcnt(0)")
    stamp(g, cfg, 6, LNW)
    for j in range(4):
        g.I(f"v_lshlrev_b32 v{XF+2*j}, 16, v{V_XR+j}")
        g.I(f"v_and_b32 v{XF+2*j+1}, s{S_MASK}, v{V_XR+j}")
    t0, t1, t2, t3 = V_S, V_S + 1, V_S + 2, V_S + 3
    g.I(f"v_add_f32 v{t0}, v{XF}, v{XF+1}")
    g.I(f"v_add_f32 v{t1}, v{XF+2}, v{XF+3}")
    g.I(f"v_add_f32 v{t2}, v{XF+4}, v{XF+5}")
    g.I(f"v_add_f32 v{t3}, v{XF+6}, v{XF+7}")
    g.I(f"v_add_f32 v{t0}, v{t0}, v{t1}")
    g.I(f"v_add_f32 v{t2}, v{t2}, v{t3}")
    g.I(f"v_add_f32 v{t0}, v{t0}, v{t2}")
    g.nop(2)
    wave_allreduce(g, "add_f32", t0, t1)
    g.I(f"v_mul_f32 v{t0}, 0x3b000000, v{t0}")
    for j in range(8):
        g.I(f"v_sub_f32 v{12+j}, v{XF+j}, v{t0}")
    g.I(f"v_mul_f32 v{t1}, v12, v12")
    g.I(f"v_mul_f32 v{t2}, v13, v13")
    for j in range(2, 8, 2):
        g.I(f"v_fmac_f32 v{t1}, v{12+j}, v{12+j}")
        g.I(f"v_fmac_f32 v{t2}, v{13+j}, v{13+j}")
    g.I(f"v_add_f32 v{t1}, v{t1}, v{t2}")
    g.nop(2)
    wave_allreduce(g, "add_f32", t1, t2)
    g.I(f"v_mul_f32 v{t1}, 0x3b000000, v{t1}")
    bf16_round2(g, t0, t1, t2)
    g.I(f"v_add_f32 v{t1}, 0x3727c5ac, v{t1}")
    for j in range(8):
        g.I(f"v_sub_f32 v{XF+j}, v{XF+j}, v{t0}")
    bf16_round1(g, t1, t1, t2)
    g.I(f"v_sqrt_f32 v{t1}, v{t1}")
    for j in range(0, 8, 2):
        bf16_round2(g, XF + j, XF + j + 1, t2)
    bf16_round1(g, t1, t1, t2)
    g.I(f"v_rcp_f32 v{t3}, v{t1}")
    g.nop(1)
    for j in range(8):
        g.I(f"v_mul_f32 v{12+j}, v{XF+j}, v{t3}")
    for j in range(8):
        g.I(f"v_fma_f32 v{26+(j%4)}, -v{12+j}, v{t1}, v{XF+j}")
        g.I(f"v_fma_f32 v{XF+j}, v{26+(j%4)}, v{t3}, v{12+j}")
    XP = V_Q
    for j in range(4):
        g.I(f"v_cvt_pk_bf16_f32 v{XP+j}, v{XF+2*j}, v{XF+2*j+1}")
    g.I(f"ds_write_b128 v{V_WOA}, {vr(XP,4)} offset:{L_XN}")
    g.lab("L_loads")

    def issue_block(slot, tag):
        kb = V_RING + slot * 32
        for i in range(4):
            g.vm(f"buffer_load_dwordx4 {vr(kb+4*i,4)}, v{V_KVOFF}, {sr(R_K,4)}, s{S_OFF} offen offset:{i*1024}{NT}", tag)
        for i in range(4):
            g.vm(f"buffer_load_dwordx4 {vr(kb+16+4*i,4)}, v{V_KVOFF}, {sr(R_V,4)}, s{S_OFF} offen offset:{i*1024}{NT}", tag)
        g.I(f"s_add_u32 s{S_OFF}, s{S_OFF}, 32768")

    nissued = 0

    def maybe_issue(point):
        nonlocal nissued
        while nissued < D and cfg.issue_at[nissued] == point:
            issue_block(nissued, f"b{nissued}")
            nissued += 1

    g.I(f"s_mov_b32 s{S_OFF}, 0")
    maybe_issue(0)
    for k in range(8):
        g.I(f"s_add_u32 s{S_T0}, s{S_SPLIT}, {k}")
        g.I(f"s_and_b32 s{S_T0}, s{S_T0}, 7")
        g.I(f"s_lshl_b32 s{S_T0}, s{S_T0}, 19")
        g.I(f"s_add_u32 s{S_T0}, s{S_T0}, s{S_RB}")
        g.I(f"s_add_u32 s{S_T1}, s{S_T0}, 8192")
        if not cfg.nowq:
            g.vm(f"buffer_load_dwordx4 {vr(V_W+8*k,4)}, v{V_A+1}, {sr(R_WQ,4)}, s{S_T0} offen", f"wq{k//2}")
            g.vm(f"buffer_load_dwordx4 {vr(V_W+8*k+4,4)}, v{V_A+1}, {sr(R_WQ,4)}, s{S_T1} offen", f"wq{k//2}")
        if k == 0:
            maybe_issue(1)
    maybe_issue(2)
    srd(g, R_GT, S_GT, S_GT + 1, 512 * 3584)
    srd(g, R_UP, S_UP, S_UP + 1, 512 * 3584)
    srd(g, R_DN, S_DN, S_DN + 1, 1792 * 1024)
    srd(g, R_WS, S_WS, S_WS + 1, WS_BYTES)
    srd(g, R_OUT, S_OUT, S_OUT + 1, 1024)
    srd(g, R_DBG, S_DBG, S_DBG + 1, 256)
    g.I(f"s_lshl_b32 s{S_T0}, s{S_H}, 17")
    srd_off(g, R_WO, S_WO, S_WO + 1, S_T0, 0x20000)
    XNP = V_ACC
    g.I(f"s_lshl_b32 s{S_T0}, s{S_WAVE}, 4")
    g.I(f"v_lshlrev_b32 v{V_A}, 2, v{V_G}")
    g.I(f"v_add_u32 v{V_A}, s{S_T0}, v{V_A}")
    for k in range(8):
        g.I(f"s_add_u32 s{S_T0}, s{S_SPLIT}, {k}")
        g.I(f"s_and_b32 s{S_T0}, s{S_T0}, 7")
        g.I(f"s_lshl_b32 s{S_T0}, s{S_T0}, 7")
        g.I(f"v_add_u32 v{XNP+k}, s{S_T0}, v{V_A}")
    g.I(f"v_lshlrev_b32 v{V_A+2}, 1, v{V_TID}")
    g.I("s_waitcnt lgkmcnt(0)")
    g.I("s_barrier")
    stamp(g, cfg, 8)
    for k in range(8):
        g.I(f"ds_read_b32 v{XNP+k}, v{XNP+k} offset:{L_XN}")
    g.I(f"ds_read_u16 v{V_XROW}, v{V_A+2} offset:{L_XN}")
    maybe_issue(3)
    ta, tb, tc, td = 26, 27, 28, 29
    g.I(f"v_and_b32 v{ta}, 1, v{V_G}")
    g.I(f"v_lshlrev_b32 v{ta}, 3, v{ta}")
    g.I(f"v_lshrrev_b32 v{tb}, 1, v{V_G}")
    g.I(f"v_lshl_add_u32 v{ta}, v{tb}, 4, v{ta}")
    g.I(f"v_lshl_add_u32 v{V_QOFF}, v{V_Cc}, 5, v{ta}")
    g.I("s_waitcnt lgkmcnt(0)")
    g.I(f"v_lshlrev_b32 v{V_XROW}, 16, v{V_XROW}")
    QA = V_PP
    for k in range(8):
        if k % 2 == 0:
            g.wait_tag(f"wq{k//2}")
        for j in range(4):
            A, B = V_W + 8 * k + j, V_W + 8 * k + 4 + j
            lo, hi = (ta, tb) if j % 2 == 0 else (tc, td)
            g.I(f"v_perm_b32 v{lo}, v{B}, v{A}, s{S_PLO}")
            g.I(f"v_perm_b32 v{hi}, v{B}, v{A}, s{S_PHI}")
            s2a = "0" if k == 0 else f"v{QA+2*j}"
            s2b = "0" if k == 0 else f"v{QA+2*j+1}"
            g.I(f"v_dot2_f32_bf16 v{QA+2*j}, v{lo}, v{XNP+k}, {s2a}")
            g.I(f"v_dot2_f32_bf16 v{QA+2*j+1}, v{hi}, v{XNP+k}, {s2b}")
        if k == 3:
            maybe_issue(4)
    g.nop(1)
    reduce_scatter_rows(g, [QA + j for j in range(8)])
    g.I(f"s_lshl_b32 s{S_T0}, s{S_WAVE}, 9")
    g.I(f"v_add_u32 v{ta}, s{S_T0}, v{V_QOFF}")
    g.I(f"ds_write_b64 v{ta}, {vr(QA,2)} offset:{L_QP}")
    g.I(f"v_lshlrev_b32 v{tb}, 5, v{V_Cc}")
    maybe_issue(5)
    g.I("s_waitcnt lgkmcnt(0)")
    g.I("s_barrier")
    stamp(g, cfg, 7)
    for w in range(8):
        g.I(f"ds_read_b128 {vr(V_W+8*w,4)}, v{tb} offset:{L_QP+512*w}")
        g.I(f"ds_read_b128 {vr(V_W+8*w+4,4)}, v{tb} offset:{L_QP+512*w+16}")
    g.I(f"v_mov_b32 v{V_M}, 0xff800000")
    g.I(f"v_mov_b32 v{V_L}, 0")
    for j in range(8):
        g.I(f"v_mov_b32 v{V_ACC+j}, 0")
    g.I(f"s_lshl_b32 s{S_T0}, s{S_WAVE}, 11")
    g.I(f"v_add_u32 v{V_WOA}, s{S_T0}, v{V_WOA}")
    for step in (1, 2, 4):
        g.I(f"s_waitcnt lgkmcnt({ {1: 0, 2: 0, 4: 0}[step] })") if step == 1 else None
        for w in range(0, 8, 2 * step):
            for j in range(8):
                g.I(f"v_add_f32 v{V_W+8*w+j}, v{V_W+8*w+j}, v{V_W+8*(w+step)+j}")
    for j in range(4):
        g.I(f"v_cvt_pk_bf16_f32 v{V_Q+j}, v{V_W+2*j}, v{V_W+2*j+1}")
    maybe_issue(6)
    assert nissued == D
    stamp(g, cfg, 1)

    def compute_block(slot):
        if cfg.nocompute:
            return
        kb = V_RING + slot * 32
        vb = kb + 16
        S = V_S
        for j in range(4):
            for i in range(4):
                src2 = "0" if j == 0 else f"v{S+i}"
                g.I(f"v_dot2_f32_bf16 v{S+i}, v{kb+4*i+j}, v{V_Q+j}, {src2}")
        t = V_T
        row_allreduce(g, "add_f32", [S + i for i in range(4)])
        g.I(f"v_cvt_pk_bf16_f32 v{t}, v{S}, v{S+1}")
        g.I(f"v_cvt_pk_bf16_f32 v{t+1}, v{S+2}, v{S+3}")
        g.I(f"v_lshlrev_b32 v{S}, 16, v{t}")
        g.I(f"v_and_b32 v{S+1}, s{S_MASK}, v{t}")
        g.I(f"v_lshlrev_b32 v{S+2}, 16, v{t+1}")
        g.I(f"v_and_b32 v{S+3}, s{S_MASK}, v{t+1}")
        for i in range(4):
            g.I(f"v_mul_f32 v{S+i}, s{S_SCALE}, v{S+i}")
        g.I(f"v_cvt_pk_bf16_f32 v{t}, v{S}, v{S+1}")
        g.I(f"v_cvt_pk_bf16_f32 v{t+1}, v{S+2}, v{S+3}")
        g.I(f"v_lshlrev_b32 v{S}, 16, v{t}")
        g.I(f"v_and_b32 v{S+1}, s{S_MASK}, v{t}")
        g.I(f"v_lshlrev_b32 v{S+2}, 16, v{t+1}")
        g.I(f"v_and_b32 v{S+3}, s{S_MASK}, v{t+1}")
        mn, al, mb = t + 2, t + 4, t + 3
        g.I(f"v_max3_f32 v{mn}, v{V_M}, v{S}, v{S+1}")
        g.I(f"v_max3_f32 v{mn}, v{mn}, v{S+2}, v{S+3}")
        g.I(f"v_sub_f32 v{al}, v{V_M}, v{mn}")
        g.I(f"v_mul_f32 v{mb}, s{S_LOG2E}, v{mn}")
        g.I(f"v_mul_f32 v{al}, s{S_LOG2E}, v{al}")
        for i in range(4):
            g.I(f"v_fma_f32 v{V_PP+i}, v{S+i}, s{S_LOG2E}, -v{mb}")
        g.I(f"v_exp_f32 v{al}, v{al}")
        for i in range(4):
            g.I(f"v_exp_f32 v{V_PP+i}, v{V_PP+i}")
        g.I(f"v_mov_b32 v{V_M}, v{mn}")
        for pr in range(2):
            for j in range(4):
                A, B = vb + 8 * pr + j, vb + 8 * pr + 4 + j
                g.I(f"v_perm_b32 v{kb+8*pr+2*j}, v{B}, v{A}, s{S_PLO}")
                g.I(f"v_perm_b32 v{kb+8*pr+2*j+1}, v{B}, v{A}, s{S_PHI}")
        g.I(f"v_mul_f32 v{V_L}, v{V_L}, v{al}")
        for j in range(4):
            g.I(f"v_pk_mul_f32 {vr(V_ACC+2*j,2)}, {vr(V_ACC+2*j,2)}, {vr(al,2)} op_sel_hi:[1,0]")
        g.I(f"v_cvt_pk_bf16_f32 v{V_PP+4}, v{V_PP}, v{V_PP+1}")
        g.I(f"v_cvt_pk_bf16_f32 v{V_PP+5}, v{V_PP+2}, v{V_PP+3}")
        g.I(f"v_add_f32 v{t}, v{V_PP}, v{V_PP+1}")
        g.I(f"v_add_f32 v{t+1}, v{V_PP+2}, v{V_PP+3}")
        g.I(f"v_add_f32 v{t}, v{t}, v{t+1}")
        g.I(f"v_add_f32 v{V_L}, v{V_L}, v{t}")
        for pr in range(2):
            for jj in range(8):
                g.I(f"v_dot2_f32_bf16 v{V_ACC+jj}, v{kb+8*pr+jj}, v{V_PP+4+pr}, v{V_ACC+jj}")

    def glu_part1():
        g.wait_tag("gu")
        for half, src in ((0, V_GT), (1, V_UP)):
            R = TMP8
            for j in range(4):
                g.I(f"v_lshlrev_b32 v{R[2*j]}, 16, v{src+j}")
                g.I(f"v_and_b32 v{R[2*j+1]}, s{S_MASK}, v{src+j}")
            for j in range(8):
                g.I(f"v_mul_f32 v{R[j]}, v{R[j]}, v{V_XROW}")
            reduce_scatter_rows(g, R)
            g.nop(2)
            row_allreduce(g, "add_f32", [R[0], R[1]])
            g.I(f"v_lshlrev_b32 v{R[2]}, 6, v{V_G}")
            g.I(f"s_lshl_b32 s{S_T0}, s{S_WAVE}, 2")
            g.I(f"v_add_u32 v{R[2]}, s{S_T0}, v{R[2]}")
            g.I(f"v_cmp_eq_u32 vcc, 0, v{V_Cc}")
            g.I(f"s_and_saveexec_b64 {sr(S_EX,2)}, vcc")
            g.I(f"ds_write_b32 v{R[2]}, v{R[0]} offset:{L_GU+256*half}")
            g.I(f"ds_write_b32 v{R[2]}, v{R[1]} offset:{L_GU+256*half+32}")
            g.I(f"s_mov_b64 exec, {sr(S_EX,2)}")
        g.I("s_waitcnt lgkmcnt(0)")

    def glu_part2():
        ta, tb = 62, 63
        R = TMP8
        g.I(f"v_lshrrev_b32 v{ta}, 3, v{V_LANE}")
        g.I(f"v_lshlrev_b32 v{ta}, 5, v{ta}")
        g.I(f"ds_read_b128 {vr(V_GT,4)}, v{ta} offset:{L_GU}")
        g.I(f"ds_read_b128 {vr(V_GT+4,4)}, v{ta} offset:{L_GU+16}")
        g.I(f"ds_read_b128 {vr(26,4)}, v{ta} offset:{L_GU+256}")
        g.I(f"ds_read_b64 {vr(30,2)}, v{ta} offset:{L_GU+272}")
        g.I(f"ds_read_b64 {vr(58,2)}, v{ta} offset:{L_GU+280}")
        g.I("s_waitcnt lgkmcnt(0)")
        for j in range(1, 8):
            g.I(f"v_add_f32 v{V_GT}, v{V_GT}, v{V_GT+j}")
            g.I(f"v_add_f32 v{R[0]}, v{R[0]}, v{R[j]}")
        ga, ua = V_GT, R[0]
        bf16_round2(g, ga, ua, tb)
        e = V_GT + 1
        g.I(f"v_mul_f32 v{e}, s{S_LOG2E}, v{ga}")
        g.I(f"v_sub_f32 v{e}, 0, v{e}")
        g.I(f"v_exp_f32 v{e}, v{e}")
        g.nop(1)
        g.I(f"v_add_f32 v{e}, 1.0, v{e}")
        g.I(f"v_rcp_f32 v{e+1}, v{e}")
        g.nop(1)
        g.I(f"v_fma_f32 v{e+2}, -v{e}, v{e+1}, 1.0")
        g.I(f"v_fma_f32 v{e+1}, v{e+2}, v{e+1}, v{e+1}")
        bf16_round1(g, e + 1, e + 1, tb)
        g.I(f"v_mul_f32 v{e+1}, v{e+1}, v{ua}")
        bf16_round1(g, e + 1, e + 1, tb)
        hh = e + 1
        g.wait_tag("dn")
        for j in range(4):
            g.I(f"v_lshlrev_b32 v{R[2*j]}, 16, v{V_DN+j}")
            g.I(f"v_and_b32 v{R[2*j+1]}, s{S_MASK}, v{V_DN+j}")
        for j in range(8):
            g.I(f"v_mul_f32 v{R[j]}, v{R[j]}, v{hh}")
        g.nop(2)
        for j in range(8):
            g.I(f"v_add_f32_dpp v{R[j]}, v{R[j]}, v{R[j]} row_ror:8 row_mask:0xf bank_mask:0xf")
        reduce_scatter_rows(g, R)
        g.I(f"v_and_b32 v{ta}, 7, v{V_LANE}")
        g.I(f"v_lshrrev_b32 v{tb}, 1, v{ta}")
        g.I(f"v_lshlrev_b32 v{tb}, 14, v{tb}")
        g.I(f"v_and_b32 v{ta}, 1, v{ta}")
        g.I(f"v_lshl_add_u32 v{tb}, v{ta}, 5, v{tb}")
        g.I(f"v_and_b32 v{ta}, 1, v{V_G}")
        g.I(f"v_lshl_add_u32 v{tb}, v{ta}, 3, v{tb}")
        g.I(f"v_lshrrev_b32 v{ta}, 1, v{V_G}")
        g.I(f"v_lshl_add_u32 v{tb}, v{ta}, 4, v{tb}")
        g.I(f"s_lshl_b32 s{S_T0}, s{S_WAVE}, 16")
        g.I(f"s_lshl_b32 s{S_T1}, s{S_GJ}, 6")
        g.I(f"s_add_u32 s{S_T0}, s{S_T0}, s{S_T1}")
        g.I(f"s_add_u32 s{S_T0}, s{S_T0}, {WS_G}")
        g.I(f"v_and_b32 v{ta}, 8, v{V_LANE}")
        g.I(f"v_cmp_eq_u32 vcc, 0, v{ta}")
        g.I(f"s_cmp_eq_u32 s{S_GVALID}, 0")
        g.I("s_cbranch_scc1 L_skip_glu")
        g.I(f"s_and_saveexec_b64 {sr(S_EX,2)}, vcc")
        g.I(f"buffer_store_dwordx2 {vr(R[0],2)}, v{tb}, {sr(R_WS,4)}, s{S_T0} offen sc0 sc1")
        g.I(f"s_mov_b64 exec, {sr(S_EX,2)}")
        g.lab("L_skip_glu")

    def glu_loads():
        if cfg.noglu:
            return
        ta = 62
        g.I(f"s_movk_i32 s{S_T1}, 3584")
        g.I(f"v_mul_lo_u32 v{ta}, v{V_TID}, s{S_T1}")
        g.I(f"s_lshl_b32 s{S_T1}, s{S_GJ}, 4")
        g.vm(f"buffer_load_dwordx4 {vr(V_GT,4)}, v{ta}, {sr(R_GT,4)}, s{S_T1} offen", "gu")
        g.vm(f"buffer_load_dwordx4 {vr(V_UP,4)}, v{ta}, {sr(R_UP,4)}, s{S_T1} offen", "gu")
        g.I(f"v_lshrrev_b32 v63, 3, v{V_LANE}")
        g.I(f"v_lshlrev_b32 v63, 10, v63")
        g.I(f"v_and_b32 v59, 7, v{V_LANE}")
        g.I(f"v_lshl_add_u32 v63, v59, 4, v63")
        g.I(f"s_lshl_b32 s{S_T1}, s{S_GJ}, 13")
        g.I(f"s_lshl_b32 s{S_T0}, s{S_WAVE}, 7")
        g.I(f"s_add_u32 s{S_T1}, s{S_T1}, s{S_T0}")
        g.vm(f"buffer_load_dwordx4 {vr(V_DN,4)}, v63, {sr(R_DN,4)}, s{S_T1} offen", "dn")

    def wo_perm():
        for k in range(8):
            for j in range(4):
                A, B = V_W + 8 * k + j, V_W + 8 * k + 4 + j
                tt = V_T + (j % 2)
                g.I(f"v_perm_b32 v{tt}, v{B}, v{A}, s{S_PLO}")
                g.I(f"v_perm_b32 v{B}, v{B}, v{A}, s{S_PHI}")
                g.I(f"v_mov_b32 v{A}, v{tt}")

    def wo_loads(k):
        if cfg.nowo:
            return
        g.I(f"s_add_u32 s{S_T2}, s{S_SPLIT}, {k}")
        g.I(f"s_and_b32 s{S_T2}, s{S_T2}, 7")
        g.I(f"s_lshl_b32 s{S_T2}, s{S_T2}, 14")
        g.vm(f"buffer_load_dwordx4 {vr(V_W+8*k,4)}, v{V_WOA}, {sr(R_WO,4)}, s{S_T2} offen", "wo")
        g.vm(f"buffer_load_dwordx4 {vr(V_W+8*k+4,4)}, v{V_WOA}, {sr(R_WO,4)}, s{S_T2} offen offset:1024", "wo")

    for j in range(4):
        g.wait_tag(f"b{j}")
        compute_block(j)
        if cfg.loopbar:
            g.I("s_barrier")
        issue_block(j, f"b{j}")
        for k in cfg.wo_sched.get(j, []):
            wo_loads(k)
        if j == cfg.glu_at:
            glu_loads()
    for j in range(4):
        g.wait_tag(f"b{j}")
        compute_block(j)
        if j == 2:
            glu_part1()
        if cfg.loopbar:
            g.I("s_barrier")
        issue_block(j, f"b{j}")
        for k in cfg.wo_sched.get(4 + j, []):
            wo_loads(k)
        if j == 3:
            glu_part2()
    for j in range(4):
        g.wait_tag(f"b{j}")
        compute_block(j)
        if cfg.loopbar:
            g.I("s_barrier")
        issue_block(j, f"b{j}")
    g.wait_tag("wo")
    wo_perm()
    g.I(f"s_mov_b32 s{S_CNT}, 5")
    g.lab("L_loop")
    if cfg.stamp:
        g.I(f"s_cmp_lg_u32 s{S_WAVE}, 0")
        g.I(f"s_cbranch_scc1 L_stl")
        g.I(f"s_memrealtime s[{S_TS}:{S_TS+1}]")
        g.I("s_waitcnt lgkmcnt(0)")
        g.I(f"v_mov_b32 v5, s{S_TS}")
        g.I(f"s_lshl_b32 s{S_TS}, s2, 6")
        g.I(f"s_lshl_b32 s{S_TS+1}, s{S_CNT}, 2")
        g.I(f"s_sub_u32 s{S_TS}, s{S_TS}, s{S_TS+1}")
        g.I(f"s_add_u32 s{S_TS}, s{S_TS}, {2*1024*1024 + 15*4}")
        g.I(f"v_mov_b32 v6, s{S_TS}")
        g.I(f"global_store_dword v6, v5, s[{S_WS}:{S_WS+1}]")
        g.lab("L_stl")
    for b in range(D):
        g.I(f"s_waitcnt vmcnt({8*(D-1)})")
        compute_block(b)
        if cfg.loopbar and (b % cfg.loopbar) == 0:
            g.I("s_barrier")
        issue_block(b, f"b{b}")
    g.I(f"s_sub_u32 s{S_CNT}, s{S_CNT}, 1")
    g.I(f"s_cmp_lg_u32 s{S_CNT}, 0")
    g.I("s_cbranch_scc1 L_loop")
    g.wait_all()
    stamp(g, cfg, 2)
    if cfg.notail:
        g.I("s_branch L_end")
    t = V_T
    mw = t
    g.I(f"v_mov_b32 v{mw}, v{V_M}")
    cross_row_allreduce(g, "max_f32", mw, t + 1)
    g.I(f"v_sub_f32 v{t+2}, v{V_M}, v{mw}")
    g.I(f"v_mul_f32 v{t+2}, s{S_LOG2E}, v{t+2}")
    g.I(f"v_exp_f32 v{t+2}, v{t+2}")
    g.nop(1)
    g.I(f"v_mul_f32 v{V_L}, v{V_L}, v{t+2}")
    for j in range(8):
        g.I(f"v_mul_f32 v{V_ACC+j}, v{V_ACC+j}, v{t+2}")
    cross_row_allreduce(g, "add_f32", V_L, t + 1)
    reduce_scatter_rows(g, [V_ACC + j for j in range(8)])
    g.I(f"s_lshl_b32 s{S_T0}, s{S_WAVE}, 9")
    g.I(f"v_add_u32 v{t+3}, s{S_T0}, v{V_QOFF}")
    g.I(f"ds_write_b64 v{t+3}, {vr(V_ACC,2)} offset:{L_OP}")
    g.I(f"v_mov_b32 v{t+1}, v{V_L}")
    g.I(f"s_lshl_b32 s{S_T0}, s{S_WAVE}, 3")
    g.I(f"v_mov_b32 v{t+3}, s{S_T0}")
    g.I(f"ds_write_b64 v{t+3}, {vr(t,2)} offset:{L_ML}")
    g.I(f"v_mov_b32 v{t+3}, 0")
    g.I(f"v_add_u32 v{t+4}, s{S_SPLIT}, v{V_LANE}")
    g.I(f"v_and_b32 v{t+4}, 7, v{t+4}")
    g.I(f"v_lshlrev_b32 v{t+4}, 6, v{t+4}")
    g.I(f"s_lshl_b32 s{S_T0}, s{S_WAVE}, 3")
    g.I(f"v_add_u32 v{t+4}, s{S_T0}, v{t+4}")
    g.I("s_waitcnt lgkmcnt(0)")
    g.I("s_barrier")
    ML = 24
    for k in range(4):
        g.I(f"ds_read_b128 {vr(ML+4*k,4)}, v{t+3} offset:{L_ML+16*k}")
    OPR = V_RING
    for w in range(8):
        g.I(f"ds_read_b64 {vr(OPR+2*w,2)}, v{t+4} offset:{L_OP+512*w}")
    g.I("s_waitcnt lgkmcnt(8)")
    M = t
    g.I(f"v_max3_f32 v{M}, v{ML}, v{ML+2}, v{ML+4}")
    g.I(f"v_max3_f32 v{M}, v{M}, v{ML+6}, v{ML+8}")
    g.I(f"v_max3_f32 v{M}, v{M}, v{ML+10}, v{ML+12}")
    g.I(f"v_max_f32 v{M}, v{M}, v{ML+14}")
    for w in range(8):
        g.I(f"v_sub_f32 v{ML+2*w}, v{ML+2*w}, v{M}")
    for w in range(8):
        g.I(f"v_mul_f32 v{ML+2*w}, s{S_LOG2E}, v{ML+2*w}")
    for w in range(8):
        g.I(f"v_exp_f32 v{ML+2*w}, v{ML+2*w}")
    oa, ob = t + 5, t + 6
    g.I("s_waitcnt lgkmcnt(0)")
    g.I(f"v_mul_f32 v{oa}, v{ML}, v{OPR}")
    g.I(f"v_mul_f32 v{ob}, v{ML}, v{OPR+1}")
    for w in range(1, 8):
        g.I(f"v_fmac_f32 v{oa}, v{ML+2*w}, v{OPR+2*w}")
        g.I(f"v_fmac_f32 v{ob}, v{ML+2*w}, v{OPR+2*w+1}")
    g.I(f"v_cvt_pk_bf16_f32 v{oa}, v{oa}, v{ob}")
    so = list(range(4, 12))
    Lr = t + 1
    g.I(f"v_mul_f32 v{Lr}, v{ML}, v{ML+1}")
    for k in range(8):
        g.I(f"v_readlane_b32 s{so[k]}, v{oa}, {k}")
    for w in range(1, 8):
        g.I(f"v_fmac_f32 v{Lr}, v{ML+2*w}, v{ML+2*w+1}")
    YA = V_ACC
    for k in range(8):
        for j in range(4):
            A, B = V_W + 8 * k + j, V_W + 8 * k + 4 + j
            c0 = "0" if k == 0 else f"v{YA+2*j}"
            c1 = "0" if k == 0 else f"v{YA+2*j+1}"
            g.I(f"v_dot2_f32_bf16 v{YA+2*j}, v{A}, s{so[k]}, {c0}")
            g.I(f"v_dot2_f32_bf16 v{YA+2*j+1}, v{B}, s{so[k]}, {c1}")
    g.I(f"v_lshlrev_b32 v{t+3}, 5, v{V_LANE}")
    g.I(f"s_lshl_b32 s{S_T0}, s{S_WAVE}, 11")
    g.I(f"v_add_u32 v{t+4}, s{S_T0}, v{t+3}")
    g.nop(1)
    g.I(f"ds_write_b128 v{t+4}, {vr(YA,4)} offset:{L_YP}")
    g.I(f"ds_write_b128 v{t+4}, {vr(YA+4,4)} offset:{L_YP+16}")
    g.I("s_waitcnt lgkmcnt(0)")
    g.I("s_barrier")
    g.I(f"s_cmp_lg_u32 s{S_WAVE}, 0")
    g.I("s_cbranch_scc1 L_after_pub")
    for w in range(8):
        g.I(f"ds_read_b128 {vr(V_RING+8*w,4)}, v{t+3} offset:{L_YP+2048*w}")
        g.I(f"ds_read_b128 {vr(V_RING+8*w+4,4)}, v{t+3} offset:{L_YP+2048*w+16}")
    g.I(f"v_lshrrev_b32 v{t+3}, 1, v{V_LANE}")
    g.I(f"v_lshlrev_b32 v{t+3}, 14, v{t+3}")
    g.I(f"v_and_b32 v{t+4}, 1, v{V_LANE}")
    g.I(f"v_lshl_add_u32 v{t+3}, v{t+4}, 5, v{t+3}")
    g.I(f"s_lshl_b32 s{S_T0}, s{S_P}, 6")
    g.I(f"s_lshl_b32 s{S_T1}, s{S_P}, 3")
    g.I(f"s_add_u32 s{S_T1}, s{S_T1}, {WS_ML}")
    g.I(f"v_mov_b32 v{t+4}, 0")
    g.I(f"v_cmp_eq_u32 vcc, 0, v{V_LANE}")
    g.I("s_waitcnt lgkmcnt(0)")
    for step in (1, 2, 4):
        for w in range(0, 8, 2 * step):
            for j in range(8):
                g.I(f"v_add_f32 v{V_RING+8*w+j}, v{V_RING+8*w+j}, v{V_RING+8*(w+step)+j}")
    g.I(f"buffer_store_dwordx4 {vr(V_RING,4)}, v{t+3}, {sr(R_WS,4)}, s{S_T0} offen sc0 sc1")
    g.I(f"buffer_store_dwordx4 {vr(V_RING+4,4)}, v{t+3}, {sr(R_WS,4)}, s{S_T0} offen offset:16 sc0 sc1")
    g.I(f"s_and_saveexec_b64 {sr(S_EX,2)}, vcc")
    g.I(f"buffer_store_dwordx2 {vr(t,2)}, v{t+4}, {sr(R_WS,4)}, s{S_T1} offen sc0 sc1")
    g.I("s_waitcnt vmcnt(0)")
    g.I(f"v_mov_b32 v{t+5}, 1")
    g.I(f"buffer_atomic_add v{t+5}, v{t+4}, {sr(R_DBG,4)}, s{S_HOFF} offen")
    g.I(f"s_mov_b64 exec, {sr(S_EX,2)}")
    g.lab("L_after_pub")
    stamp(g, cfg, 3)

    def finisher(fid_sreg):
        t = V_T
        g.I(f"s_cmp_lg_u32 s{S_WAVE}, 0")
        g.I("s_cbranch_scc1 L_poll_done")
        g.I(f"v_lshlrev_b32 v{t}, 2, v{V_LANE}")
        g.I(f"v_and_b32 v{t}, 0x7f, v{t}")
        g.I(f"s_mov_b32 s{S_CNT}, 0x100000")
        g.lab("L_poll")
        g.I(f"s_sub_u32 s{S_CNT}, s{S_CNT}, 1")
        g.I(f"s_cmp_eq_u32 s{S_CNT}, 0")
        g.I("s_cbranch_scc1 L_poll_done")
        g.I(f"buffer_load_dword v{t+1}, v{t}, {sr(R_DBG,4)}, 0 offen sc0 sc1")
        g.I("s_waitcnt vmcnt(0)")
        g.I(f"v_cmp_ne_u32 vcc, 8, v{t+1}")
        g.I("s_cbranch_vccz L_poll_done")
        g.I("s_sleep 1")
        g.I("s_branch L_poll")
        g.lab("L_poll_done")
        g.I("s_barrier")
        stamp(g, cfg, 4)
        a0 = t
        g.I(f"v_lshlrev_b32 v{a0}, 4, v{V_TID}")
        g.I(f"s_lshl_b32 s{S_T0}, s{fid_sreg}, 14")
        Y1, Y2, G1, G2 = V_RING, V_RING + 4, V_RING + 8, V_RING + 12
        g.I(f"s_add_u32 s{S_T1}, s{S_T0}, 8192")
        g.I(f"buffer_load_dwordx4 {vr(Y1,4)}, v{a0}, {sr(R_WS,4)}, s{S_T0} offen sc0 sc1")
        g.I(f"buffer_load_dwordx4 {vr(Y2,4)}, v{a0}, {sr(R_WS,4)}, s{S_T1} offen sc0 sc1")
        g.I(f"v_lshrrev_b32 v{a0+1}, 5, v{V_TID}")
        g.I(f"v_lshlrev_b32 v{a0+1}, 6, v{a0+1}")
        g.I(f"s_mov_b32 s{S_T2}, {WS_ML}")
        A1, A2 = V_RING + 16, V_RING + 32
        for k in range(4):
            g.I(f"buffer_load_dwordx4 {vr(A1+4*k,4)}, v{a0+1}, {sr(R_WS,4)}, s{S_T2} offen offset:{16*k} sc0 sc1")
        for k in range(4):
            g.I(f"buffer_load_dwordx4 {vr(A2+4*k,4)}, v{a0+1}, {sr(R_WS,4)}, s{S_T2} offen offset:{1024+16*k} sc0 sc1")
        g.I(f"v_lshrrev_b32 v{a0+2}, 2, v{V_TID}")
        g.I(f"v_lshlrev_b32 v{a0+2}, 3, v{a0+2}")
        g.I(f"buffer_load_dword v{a0+3}, v{a0+2}, {sr(R_WS,4)}, s{S_T2} offen sc0 sc1")
        g.I(f"buffer_load_dword v{a0+4}, v{a0+2}, {sr(R_WS,4)}, s{S_T2} offen offset:1024 sc0 sc1")
        g.I(f"s_add_u32 s{S_T0}, s{S_T0}, {WS_G}")
        g.I(f"s_add_u32 s{S_T1}, s{S_T1}, {WS_G}")
        g.I(f"buffer_load_dwordx4 {vr(G1,4)}, v{a0}, {sr(R_WS,4)}, s{S_T0} offen sc0 sc1")
        g.I(f"buffer_load_dwordx4 {vr(G2,4)}, v{a0}, {sr(R_WS,4)}, s{S_T1} offen sc0 sc1")
        g.I(f"v_and_b32 v{a0+5}, 15, v{V_TID}")
        g.I(f"v_lshlrev_b32 v{a0+5}, 1, v{a0+5}")
        g.I(f"s_lshl_b32 s{S_T2}, s{fid_sreg}, 5")
        g.I(f"buffer_load_ushort v{a0+6}, v{a0+5}, {sr(R_X,4)}, s{S_T2} offen")
        g.I("s_waitcnt vmcnt(3)")
        for (A, own, c) in ((A1, a0 + 3, a0 + 8), (A2, a0 + 4, a0 + 9)):
            M = a0 + 10
            g.I(f"v_max3_f32 v{M}, v{A}, v{A+2}, v{A+4}")
            g.I(f"v_max3_f32 v{M}, v{M}, v{A+6}, v{A+8}")
            g.I(f"v_max3_f32 v{M}, v{M}, v{A+10}, v{A+12}")
            g.I(f"v_max_f32 v{M}, v{M}, v{A+14}")
            for s in range(8):
                g.I(f"v_sub_f32 v{A+2*s}, v{A+2*s}, v{M}")
            for s in range(8):
                g.I(f"v_mul_f32 v{A+2*s}, s{S_LOG2E}, v{A+2*s}")
            for s in range(8):
                g.I(f"v_exp_f32 v{A+2*s}, v{A+2*s}")
            g.I(f"v_sub_f32 v{own}, v{own}, v{M}")
            g.I(f"v_mul_f32 v{own}, s{S_LOG2E}, v{own}")
            g.I(f"v_exp_f32 v{own}, v{own}")
            Ls = a0 + 11
            g.I(f"v_mul_f32 v{Ls}, v{A}, v{A+1}")
            for s in range(1, 8):
                g.I(f"v_fmac_f32 v{Ls}, v{A+2*s}, v{A+2*s+1}")
            g.I(f"v_rcp_f32 v{c}, v{Ls}")
            g.nop(1)
            g.I(f"v_fma_f32 v{M}, -v{Ls}, v{c}, 1.0")
            g.I(f"v_fma_f32 v{c}, v{M}, v{c}, v{c}")
            g.I(f"v_mul_f32 v{c}, v{c}, v{own}")
        c1, c2 = a0 + 8, a0 + 9
        for j in range(4):
            g.I(f"v_mul_f32 v{Y1+j}, v{c1}, v{Y1+j}")
            g.I(f"v_fmac_f32 v{Y1+j}, v{c2}, v{Y2+j}")
        g.I(f"v_cmp_gt_u32 vcc, {96*4}, v{V_TID}")
        g.I("s_waitcnt vmcnt(0)")
        g.nop(1)
        for j in range(4):
            g.I(f"v_cndmask_b32 v{G2+j}, 0, v{G2+j}, vcc")
        for j in range(4):
            g.I(f"v_add_f32 v{Y1+4+j}, v{G1+j}, v{G2+j}")
        R8 = [Y1 + j for j in range(8)]
        g.nop(2)
        for r in (4, 8):
            for x in R8:
                g.I(f"v_add_f32_dpp v{x}, v{x}, v{x} row_ror:{r} row_mask:0xf bank_mask:0xf")
        reduce_scatter_rows(g, R8)
        g.I(f"v_and_b32 v{a0}, 3, v{V_LANE}")
        g.I(f"v_lshlrev_b32 v{a0}, 4, v{a0}")
        g.I(f"v_and_b32 v{a0+1}, 1, v{V_G}")
        g.I(f"v_lshl_add_u32 v{a0}, v{a0+1}, 3, v{a0}")
        g.I(f"v_lshrrev_b32 v{a0+1}, 1, v{V_G}")
        g.I(f"v_lshl_add_u32 v{a0}, v{a0+1}, 6, v{a0}")
        g.I(f"s_lshl_b32 s{S_T0}, s{S_WAVE}, 7")
        g.I(f"v_add_u32 v{a0}, s{S_T0}, v{a0}")
        g.I(f"ds_write_b64 v{a0}, {vr(R8[0],2)} offset:{L_FIN}")
        g.I("s_waitcnt lgkmcnt(0)")
        g.I("s_barrier")
        g.I(f"s_cmp_lg_u32 s{S_WAVE}, 0")
        g.I("s_cbranch_scc1 L_end2")
        g.I(f"v_and_b32 v{a0}, 15, v{V_LANE}")
        g.I(f"v_lshlrev_b32 v{a0}, 2, v{a0}")
        for w in range(8):
            g.I(f"ds_read_b32 v{V_RING+16+w}, v{a0} offset:{L_FIN+128*w}")
            g.I(f"ds_read_b32 v{V_RING+24+w}, v{a0} offset:{L_FIN+128*w+64}")
        g.I("s_waitcnt lgkmcnt(0)")
        for w in range(1, 8):
            g.I(f"v_add_f32 v{V_RING+16}, v{V_RING+16}, v{V_RING+16+w}")
            g.I(f"v_add_f32 v{V_RING+24}, v{V_RING+24}, v{V_RING+24+w}")
        bf16_round2(g, V_RING + 16, V_RING + 24, a0 + 1)
        g.I(f"v_lshlrev_b32 v{a0+6}, 16, v{a0+6}")
        g.I(f"v_add_f32 v{a0+6}, v{a0+6}, v{V_RING+16}")
        bf16_round1(g, a0 + 6, a0 + 6, a0 + 1)
        g.I(f"v_add_f32 v{a0+6}, v{a0+6}, v{V_RING+24}")
        g.I(f"v_cvt_pk_bf16_f32 v{a0+6}, v{a0+6}, v{a0+6}")
        g.I(f"v_cmp_gt_u32 vcc, 16, v{V_LANE}")
        g.I(f"s_and_saveexec_b64 {sr(S_EX,2)}, vcc")
        g.I(f"s_lshl_b32 s{S_T2}, s{fid_sreg}, 5")
        g.I(f"buffer_store_short v{a0+6}, v{a0+5}, {sr(R_OUT,4)}, s{S_T2} offen")
        stamp(g, cfg, 5)
        g.lab("L_end2")

    g.I("s_cmp_ge_u32 s2, 32")
    g.I("s_cbranch_scc1 L_end")
    finisher(2)
    g.lab("L_end")
    g.I("s_endpgm")

    g.L.append('.section .rodata,"a"')
    g.L.append(".p2align 6")
    g.L.append(f".amdhsa_kernel {kmain}")
    g.L.append("  .amdhsa_next_free_vgpr 256")
    g.L.append("  .amdhsa_next_free_sgpr 102")
    g.L.append("  .amdhsa_accum_offset 256")
    g.L.append("  .amdhsa_group_segment_fixed_size 0")
    g.L.append("  .amdhsa_kernarg_size 96")
    g.L.append("  .amdhsa_user_sgpr_count 2")
    g.L.append("  .amdhsa_user_sgpr_kernarg_segment_ptr 1")
    g.L.append("  .amdhsa_system_sgpr_workgroup_id_x 1")
    g.L.append(".end_amdhsa_kernel")
    return g.text()


if __name__ == "__main__":
    ap = argparse.ArgumentParser()
    ap.add_argument("--nt", type=int, default=1)
    ap.add_argument("--stamp", type=int, default=0)
    ap.add_argument("--loopbar", type=int, default=1)
    ap.add_argument("--lnwave", type=int, default=0)
    ap.add_argument("--nocompute", type=int, default=0)
    ap.add_argument("--notail", type=int, default=0)
    ap.add_argument("--nowo", type=int, default=0)
    ap.add_argument("--noglu", type=int, default=0)
    ap.add_argument("--nowq", type=int, default=0)
    ap.add_argument("--wosched", type=str, default="{0:[0],3:[1,2],4:[3,4],5:[5,6],6:[7]}")
    ap.add_argument("--glu_at", type=int, default=1)
    ap.add_argument("--issue", type=str, default="2,2,3,6")
    ap.add_argument("-o", default="parallel_sum__mha_block_cached__glu_gated_glu__decode.s")
    cfg = ap.parse_args()
    cfg.issue_at = [int(x) for x in cfg.issue.split(",")]
    cfg.wo_sched = eval(cfg.wosched)
    assert len(cfg.issue_at) == 4
    open(cfg.o, "w").write(gen(cfg))
    print("wrote", cfg.o)
```

```python
import sys, argparse
from gen import G, vr, sr, HEADER, KNAME

S_X, S_K, S_V, S_WQ, S_WO, S_BX, S_GT, S_UP = 4, 6, 8, 10, 12, 14, 16, 18
S_DN, S_OUT, S_DBG, S_WS = 20, 22, 24, 26
R_K, R_V, R_WQ, R_WO, R_GT, R_UP, R_DN, R_X, R_WS, R_OUT, R_DBG = 28, 32, 36, 40, 44, 48, 52, 56, 60, 64, 68
S_H, S_SPLIT, S_WAVE, S_OFF, S_CNT = 72, 73, 74, 75, 76
S_SCALE, S_LOG2E, S_MASK, S_P, S_GJ, S_T0, S_T1, S_T2, S_GVALID = 78, 79, 80, 81, 82, 83, 84, 85, 86
S_PLO, S_PHI = 87, 88
S_HOFF = 90
S_RB = 91
S_EX = 96
S_TS = 98

L_XN = 0
L_QP = 1024
L_GU = 5120
L_OP = 5632
L_ML = 9728
L_YP = 10240
L_FIN = 26624
LDS_BYTES = 27648

WS_Y = 0
WS_G = 512 * 1024
WS_ML = 1024 * 1024
WS_BYTES = 1024 * 1024 + 2048 + 4096


def srd(g, r, base_lo, base_hi, nbytes):
    g.I(f"s_mov_b32 s{r}, s{base_lo}")
    g.I(f"s_and_b32 s{r+1}, s{base_hi}, 0xffff")
    g.I(f"s_mov_b32 s{r+2}, {nbytes:#x}")
    g.I(f"s_mov_b32 s{r+3}, 0x00020000")


def srd_off(g, r, base_lo, base_hi, off_sreg, nbytes):
    g.I(f"s_add_u32 s{r}, s{base_lo}, s{off_sreg}")
    g.I(f"s_addc_u32 s{r+1}, s{base_hi}, 0")
    g.I(f"s_and_b32 s{r+1}, s{r+1}, 0xffff")
    g.I(f"s_mov_b32 s{r+2}, {nbytes:#x}")
    g.I(f"s_mov_b32 s{r+3}, 0x00020000")


def bf16_round1(g, dst, src, tmp):
    g.I(f"v_cvt_pk_bf16_f32 v{tmp}, v{src}, v{src}")
    g.I(f"v_lshlrev_b32 v{dst}, 16, v{tmp}")


def bf16_round2(g, a, b, tmp):
    g.I(f"v_cvt_pk_bf16_f32 v{tmp}, v{a}, v{b}")
    g.I(f"v_lshlrev_b32 v{a}, 16, v{tmp}")
    g.I(f"v_and_b32 v{b}, s{S_MASK}, v{tmp}")


def row_allreduce(g, op, regs):
    n = len(regs)
    for r in (8, 4, 2, 1):
        for x in regs:
            g.I(f"v_{op}_dpp v{x}, v{x}, v{x} row_ror:{r} row_mask:0xf bank_mask:0xf")
        if n < 3:
            g.nop(3 - n)


def cross_row_allreduce(g, op, x, t):
    g.I(f"v_mov_b32 v{t}, v{x}")
    g.nop(2)
    g.I(f"v_permlane16_swap_b32 v{x}, v{t}")
    g.nop(1)
    g.I(f"v_{op} v{x}, v{x}, v{t}")
    g.I(f"v_mov_b32 v{t}, v{x}")
    g.nop(2)
    g.I(f"v_permlane32_swap_b32 v{x}, v{t}")
    g.nop(1)
    g.I(f"v_{op} v{x}, v{x}, v{t}")


def wave_allreduce(g, op, x, t):
    row_allreduce(g, op, [x])
    cross_row_allreduce(g, op, x, t)


def reduce_scatter_rows(g, regs):
    n = len(regs)
    h = n // 2
    g.nop(2)
    for k in range(h):
        g.I(f"v_permlane32_swap_b32 v{regs[k]}, v{regs[k+h]}")
    g.nop(1)
    for k in range(h):
        g.I(f"v_add_f32 v{regs[k]}, v{regs[k]}, v{regs[k+h]}")
    qn = h // 2
    g.nop(2)
    for k in range(qn):
        g.I(f"v_permlane16_swap_b32 v{regs[k]}, v{regs[k+qn]}")
    g.nop(1)
    for k in range(qn):
        g.I(f"v_add_f32 v{regs[k]}, v{regs[k]}, v{regs[k+qn]}")


def stamp(g, cfg, idx, wave=0):
    if not cfg.stamp:
        return
    lab = f"L_st{idx}"
    g.I(f"s_cmp_lg_u32 s{S_WAVE}, {wave}")
    g.I(f"s_cbranch_scc1 {lab}")
    g.I(f"s_memrealtime s[{S_TS}:{S_TS+1}]")
    g.I("s_waitcnt lgkmcnt(0)")
    g.I(f"v_mov_b32 v5, s{S_TS}")
    g.I(f"s_lshl_b32 s{S_TS}, s2, 6")
    g.I(f"s_add_u32 s{S_TS}, s{S_TS}, {2*1024*1024 + idx*4}")
    g.I(f"v_mov_b32 v6, s{S_TS}")
    g.I(f"global_store_dword v6, v5, s[{S_WS}:{S_WS+1}]")
    g.lab(lab)


def gen(cfg):
    D = 4
    NT = " nt" if cfg.nt else ""
    g = G()
    V_TID, V_LANE, V_KVOFF, V_G, V_Cc, V_WOA = 0, 1, 2, 3, 4, 7
    V_Q = 8
    V_ACC = 12
    V_M, V_L = 20, 21
    V_S = 22
    V_PP = 32
    V_T = 40
    V_GT, V_UP, V_DN = 46, 50, 54
    V_XROW = 60
    V_QOFF = 61
    TMP8 = [26, 27, 28, 29, 30, 31, 58, 59]
    V_W = 64
    V_RING = 128
    LNW = cfg.lnwave

    g.L.append(HEADER.rstrip("\n"))
    g.L.append(f"; @launch grid=(256,1,1) block=(512,1,1) lds={LDS_BYTES}")
    kmain = KNAME
    g.L.append('.amdgcn_target "amdgcn-amd-amdhsa--gfx950"')
    g.L.append(".text")
    g.L.append(f".globl {kmain}")
    g.L.append(".p2align 8")
    g.L.append(f".type {kmain},@function")
    g.lab(kmain)
    g.I("s_cmp_ge_u32 s2, 256")
    g.I("s_cbranch_scc1 L_end")
    g.I("s_load_dwordx16 s[4:19], s[0:1], 0")
    g.I("s_load_dwordx8 s[20:27], s[0:1], 64")
    g.I(f"v_and_b32 v{V_LANE}, 63, v{V_TID}")
    g.I(f"v_lshrrev_b32 v{V_T}, 6, v{V_TID}")
    g.I(f"v_lshrrev_b32 v{V_G}, 4, v{V_LANE}")
    g.I(f"v_readfirstlane_b32 s{S_WAVE}, v{V_T}")
    g.I(f"v_and_b32 v{V_Cc}, 15, v{V_LANE}")
    g.I(f"s_mov_b32 s{S_SCALE}, 0x3db504f3")
    g.I(f"s_mov_b32 s{S_LOG2E}, 0x3fb8aa3b")
    g.I(f"s_mov_b32 s{S_MASK}, 0xffff0000")
    g.I(f"s_mov_b32 s{S_PLO}, 0x05040100")
    g.I(f"s_mov_b32 s{S_PHI}, 0x07060302")
    g.I(f"s_and_b32 s{S_T0}, s2, 7")
    g.I(f"s_lshr_b32 s{S_T1}, s2, 3")
    g.I(f"s_and_b32 s{S_T2}, s{S_T1}, 3")
    if cfg.hmap == 0:
        g.I(f"s_lshl_b32 s{S_H}, s{S_T0}, 2")
        g.I(f"s_add_u32 s{S_H}, s{S_H}, s{S_T2}")
    else:
        g.I(f"s_lshl_b32 s{S_H}, s{S_T2}, 1")
        g.I(f"s_add_u32 s{S_H}, s{S_H}, s{S_T0}")
        g.I(f"s_and_b32 s{S_H}, s{S_H}, 7")
        g.I(f"s_lshl_b32 s{S_T2}, s{S_T2}, 3")
        g.I(f"s_add_u32 s{S_H}, s{S_H}, s{S_T2}")
    g.I(f"s_lshr_b32 s{S_SPLIT}, s{S_T1}, 2")
    g.I(f"s_lshl_b32 s{S_P}, s{S_H}, 3")
    g.I(f"s_add_u32 s{S_P}, s{S_P}, s{S_SPLIT}")
    g.I(f"s_lshl_b32 s{S_HOFF}, s{S_H}, 2")
    g.I(f"s_mul_i32 s{S_GJ}, s{S_T0}, 28")
    g.I(f"s_add_u32 s{S_GJ}, s{S_GJ}, s{S_T1}")
    g.I(f"s_cmp_lt_u32 s{S_T1}, 28")
    g.I(f"s_cselect_b32 s{S_GVALID}, 1, 0")
    g.I(f"s_cselect_b32 s{S_GJ}, s{S_GJ}, 0")
    V_A = 56
    g.I(f"v_lshlrev_b32 v{V_WOA}, 4, v{V_LANE}")
    g.I(f"v_lshlrev_b32 v{V_A+1}, 14, v{V_G}")
    g.I(f"v_lshl_add_u32 v{V_A+1}, v{V_Cc}, 4, v{V_A+1}")
    g.I(f"s_lshl_b32 s{S_T0}, s{S_WAVE}, 16")
    g.I(f"s_lshl_b32 s{S_T1}, s{S_H}, 8")
    g.I(f"s_add_u32 s{S_RB}, s{S_T0}, s{S_T1}")
    g.I(f"s_lshl_b32 s{S_T1}, s{S_WAVE}, 12")
    g.I(f"v_add_u32 v{V_KVOFF}, s{S_T1}, v{V_WOA}")
    g.I(f"s_lshl_b32 s{S_T2}, s{S_P}, 20")
    g.I("s_waitcnt lgkmcnt(0)")
    stamp(g, cfg, 0)
    srd(g, R_WQ, S_WQ, S_WQ + 1, 512 * 8192)
    srd(g, R_X, S_X, S_X + 1, 1024)
    srd_off(g, R_K, S_K, S_K + 1, S_T2, 0x100000)
    srd_off(g, R_V, S_V, S_V + 1, S_T2, 0x100000)
    g.I(f"s_cmp_lg_u32 s{S_WAVE}, {LNW}")
    g.I("s_cbranch_scc1 L_loads")
    V_XR = V_T
    XF = V_PP
    g.I(f"buffer_load_dwordx4 {vr(V_XR,4)}, v{V_WOA}, {sr(R_X,4)}, 0 offen")
    g.I("s_waitcnt vmcnt(0)")
    stamp(g, cfg, 6, LNW)
    for j in range(4):
        g.I(f"v_lshlrev_b32 v{XF+2*j}, 16, v{V_XR+j}")
        g.I(f"v_and_b32 v{XF+2*j+1}, s{S_MASK}, v{V_XR+j}")
    t0, t1, t2, t3 = V_S, V_S + 1, V_S + 2, V_S + 3
    g.I(f"v_add_f32 v{t0}, v{XF}, v{XF+1}")
    g.I(f"v_add_f32 v{t1}, v{XF+2}, v{XF+3}")
    g.I(f"v_add_f32 v{t2}, v{XF+4}, v{XF+5}")
    g.I(f"v_add_f32 v{t3}, v{XF+6}, v{XF+7}")
    g.I(f"v_add_f32 v{t0}, v{t0}, v{t1}")
    g.I(f"v_add_f32 v{t2}, v{t2}, v{t3}")
    g.I(f"v_add_f32 v{t0}, v{t0}, v{t2}")
    g.nop(2)
    wave_allreduce(g, "add_f32", t0, t1)
    g.I(f"v_mul_f32 v{t0}, 0x3b000000, v{t0}")
    for j in range(8):
        g.I(f"v_sub_f32 v{12+j}, v{XF+j}, v{t0}")
    g.I(f"v_mul_f32 v{t1}, v12, v12")
    g.I(f"v_mul_f32 v{t2}, v13, v13")
    for j in range(2, 8, 2):
        g.I(f"v_fmac_f32 v{t1}, v{12+j}, v{12+j}")
        g.I(f"v_fmac_f32 v{t2}, v{13+j}, v{13+j}")
    g.I(f"v_add_f32 v{t1}, v{t1}, v{t2}")
    g.nop(2)
    wave_allreduce(g, "add_f32", t1, t2)
    g.I(f"v_mul_f32 v{t1}, 0x3b000000, v{t1}")
    bf16_round2(g, t0, t1, t2)
    g.I(f"v_add_f32 v{t1}, 0x3727c5ac, v{t1}")
    for j in range(8):
        g.I(f"v_sub_f32 v{XF+j}, v{XF+j}, v{t0}")
    bf16_round1(g, t1, t1, t2)
    g.I(f"v_sqrt_f32 v{t1}, v{t1}")
    for j in range(0, 8, 2):
        bf16_round2(g, XF + j, XF + j + 1, t2)
    bf16_round1(g, t1, t1, t2)
    g.I(f"v_rcp_f32 v{t3}, v{t1}")
    g.nop(1)
    for j in range(8):
        g.I(f"v_mul_f32 v{12+j}, v{XF+j}, v{t3}")
    for j in range(8):
        g.I(f"v_fma_f32 v{26+(j%4)}, -v{12+j}, v{t1}, v{XF+j}")
        g.I(f"v_fma_f32 v{XF+j}, v{26+(j%4)}, v{t3}, v{12+j}")
    XP = V_Q
    for j in range(4):
        g.I(f"v_cvt_pk_bf16_f32 v{XP+j}, v{XF+2*j}, v{XF+2*j+1}")
    g.I(f"ds_write_b128 v{V_WOA}, {vr(XP,4)} offset:{L_XN}")
    g.lab("L_loads")

    def issue_block(slot, tag):
        kb = V_RING + slot * 32
        for i in range(4):
            g.vm(f"buffer_load_dwordx4 {vr(kb+4*i,4)}, v{V_KVOFF}, {sr(R_K,4)}, s{S_OFF} offen offset:{i*1024}{NT}", tag)
        for i in range(4):
            g.vm(f"buffer_load_dwordx4 {vr(kb+16+4*i,4)}, v{V_KVOFF}, {sr(R_V,4)}, s{S_OFF} offen offset:{i*1024}{NT}", tag)
        g.I(f"s_add_u32 s{S_OFF}, s{S_OFF}, 32768")

    nissued = 0

    def maybe_issue(point):
        nonlocal nissued
        while nissued < D and cfg.issue_at[nissued] == point:
            issue_block(nissued, f"b{nissued}")
            nissued += 1

    g.I(f"s_mov_b32 s{S_OFF}, 0")
    maybe_issue(0)
    for k in range(8):
        g.I(f"s_add_u32 s{S_T0}, s{S_SPLIT}, {k}")
        g.I(f"s_and_b32 s{S_T0}, s{S_T0}, 7")
        g.I(f"s_lshl_b32 s{S_T0}, s{S_T0}, 19")
        g.I(f"s_add_u32 s{S_T0}, s{S_T0}, s{S_RB}")
        g.I(f"s_add_u32 s{S_T1}, s{S_T0}, 8192")
        if not cfg.nowq:
            g.vm(f"buffer_load_dwordx4 {vr(V_W+8*k,4)}, v{V_A+1}, {sr(R_WQ,4)}, s{S_T0} offen", f"wq{k//2}")
            g.vm(f"buffer_load_dwordx4 {vr(V_W+8*k+4,4)}, v{V_A+1}, {sr(R_WQ,4)}, s{S_T1} offen", f"wq{k//2}")
        if k == 0:
            maybe_issue(1)
    maybe_issue(2)
    srd(g, R_GT, S_GT, S_GT + 1, 512 * 3584)
    srd(g, R_UP, S_UP, S_UP + 1, 512 * 3584)
    srd(g, R_DN, S_DN, S_DN + 1, 1792 * 1024)
    srd(g, R_WS, S_WS, S_WS + 1, WS_BYTES)
    srd(g, R_OUT, S_OUT, S_OUT + 1, 1024)
    srd(g, R_DBG, S_DBG, S_DBG + 1, 256)
    g.I(f"s_lshl_b32 s{S_T0}, s{S_H}, 17")
    srd_off(g, R_WO, S_WO, S_WO + 1, S_T0, 0x20000)
    XNP = V_ACC
    g.I(f"s_lshl_b32 s{S_T0}, s{S_WAVE}, 4")
    g.I(f"v_lshlrev_b32 v{V_A}, 2, v{V_G}")
    g.I(f"v_add_u32 v{V_A}, s{S_T0}, v{V_A}")
    for k in range(8):
        g.I(f"s_add_u32 s{S_T0}, s{S_SPLIT}, {k}")
        g.I(f"s_and_b32 s{S_T0}, s{S_T0}, 7")
        g.I(f"s_lshl_b32 s{S_T0}, s{S_T0}, 7")
        g.I(f"v_add_u32 v{XNP+k}, s{S_T0}, v{V_A}")
    g.I(f"v_lshlrev_b32 v{V_A+2}, 1, v{V_TID}")
    g.I("s_waitcnt lgkmcnt(0)")
    g.I("s_barrier")
    stamp(g, cfg, 8)
    for k in range(8):
        g.I(f"ds_read_b32 v{XNP+k}, v{XNP+k} offset:{L_XN}")
    g.I(f"ds_read_u16 v{V_XROW}, v{V_A+2} offset:{L_XN}")
    maybe_issue(3)
    ta, tb, tc, td = 26, 27, 28, 29
    g.I(f"v_and_b32 v{ta}, 1, v{V_G}")
    g.I(f"v_lshlrev_b32 v{ta}, 3, v{ta}")
    g.I(f"v_lshrrev_b32 v{tb}, 1, v{V_G}")
    g.I(f"v_lshl_add_u32 v{ta}, v{tb}, 4, v{ta}")
    g.I(f"v_lshl_add_u32 v{V_QOFF}, v{V_Cc}, 5, v{ta}")
    g.I("s_waitcnt lgkmcnt(0)")
    g.I(f"v_lshlrev_b32 v{V_XROW}, 16, v{V_XROW}")
    QA = V_PP
    for k in range(8):
        if k % 2 == 0:
            g.wait_tag(f"wq{k//2}")
        for j in range(4):
            A, B = V_W + 8 * k + j, V_W + 8 * k + 4 + j
            lo, hi = (ta, tb) if j % 2 == 0 else (tc, td)
            g.I(f"v_perm_b32 v{lo}, v{B}, v{A}, s{S_PLO}")
            g.I(f"v_perm_b32 v{hi}, v{B}, v{A}, s{S_PHI}")
            s2a = "0" if k == 0 else f"v{QA+2*j}"
            s2b = "0" if k == 0 else f"v{QA+2*j+1}"
            g.I(f"v_dot2_f32_bf16 v{QA+2*j}, v{lo}, v{XNP+k}, {s2a}")
            g.I(f"v_dot2_f32_bf16 v{QA+2*j+1}, v{hi}, v{XNP+k}, {s2b}")
        if k == 3:
            maybe_issue(4)
    g.nop(1)
    reduce_scatter_rows(g, [QA + j for j in range(8)])
    g.I(f"s_lshl_b32 s{S_T0}, s{S_WAVE}, 9")
    g.I(f"v_add_u32 v{ta}, s{S_T0}, v{V_QOFF}")
    g.I(f"ds_write_b64 v{ta}, {vr(QA,2)} offset:{L_QP}")
    g.I(f"v_lshlrev_b32 v{tb}, 5, v{V_Cc}")
    maybe_issue(5)
    g.I("s_waitcnt lgkmcnt(0)")
    g.I("s_barrier")
    stamp(g, cfg, 7)
    for w in range(8):
        g.I(f"ds_read_b128 {vr(V_W+8*w,4)}, v{tb} offset:{L_QP+512*w}")
        g.I(f"ds_read_b128 {vr(V_W+8*w+4,4)}, v{tb} offset:{L_QP+512*w+16}")
    g.I(f"v_mov_b32 v{V_M}, 0xff800000")
    g.I(f"v_mov_b32 v{V_L}, 0")
    for j in range(8):
        g.I(f"v_mov_b32 v{V_ACC+j}, 0")
    g.I(f"s_lshl_b32 s{S_T0}, s{S_WAVE}, 11")
    g.I(f"v_add_u32 v{V_WOA}, s{S_T0}, v{V_WOA}")
    for step in (1, 2, 4):
        g.I(f"s_waitcnt lgkmcnt({ {1: 0, 2: 0, 4: 0}[step] })") if step == 1 else None
        for w in range(0, 8, 2 * step):
            for j in range(8):
                g.I(f"v_add_f32 v{V_W+8*w+j}, v{V_W+8*w+j}, v{V_W+8*(w+step)+j}")
    for j in range(4):
        g.I(f"v_cvt_pk_bf16_f32 v{V_Q+j}, v{V_W+2*j}, v{V_W+2*j+1}")
    maybe_issue(6)
    assert nissued == D
    stamp(g, cfg, 1)

    def compute_block(slot):
        if cfg.nocompute:
            return
        kb = V_RING + slot * 32
        vb = kb + 16
        S = V_S
        for j in range(4):
            for i in range(4):
                src2 = "0" if j == 0 else f"v{S+i}"
                g.I(f"v_dot2_f32_bf16 v{S+i}, v{kb+4*i+j}, v{V_Q+j}, {src2}")
        t = V_T
        row_allreduce(g, "add_f32", [S + i for i in range(4)])
        g.I(f"v_cvt_pk_bf16_f32 v{t}, v{S}, v{S+1}")
        g.I(f"v_cvt_pk_bf16_f32 v{t+1}, v{S+2}, v{S+3}")
        g.I(f"v_lshlrev_b32 v{S}, 16, v{t}")
        g.I(f"v_and_b32 v{S+1}, s{S_MASK}, v{t}")
        g.I(f"v_lshlrev_b32 v{S+2}, 16, v{t+1}")
        g.I(f"v_and_b32 v{S+3}, s{S_MASK}, v{t+1}")
        for i in range(4):
            g.I(f"v_mul_f32 v{S+i}, s{S_SCALE}, v{S+i}")
        g.I(f"v_cvt_pk_bf16_f32 v{t}, v{S}, v{S+1}")
        g.I(f"v_cvt_pk_bf16_f32 v{t+1}, v{S+2}, v{S+3}")
        g.I(f"v_lshlrev_b32 v{S}, 16, v{t}")
        g.I(f"v_and_b32 v{S+1}, s{S_MASK}, v{t}")
        g.I(f"v_lshlrev_b32 v{S+2}, 16, v{t+1}")
        g.I(f"v_and_b32 v{S+3}, s{S_MASK}, v{t+1}")
        mn, al, mb = t + 2, t + 4, t + 3
        g.I(f"v_max3_f32 v{mn}, v{V_M}, v{S}, v{S+1}")
        g.I(f"v_max3_f32 v{mn}, v{mn}, v{S+2}, v{S+3}")
        g.I(f"v_sub_f32 v{al}, v{V_M}, v{mn}")
        g.I(f"v_mul_f32 v{mb}, s{S_LOG2E}, v{mn}")
        g.I(f"v_mul_f32 v{al}, s{S_LOG2E}, v{al}")
        for i in range(4):
            g.I(f"v_fma_f32 v{V_PP+i}, v{S+i}, s{S_LOG2E}, -v{mb}")
        g.I(f"v_exp_f32 v{al}, v{al}")
        for i in range(4):
            g.I(f"v_exp_f32 v{V_PP+i}, v{V_PP+i}")
        g.I(f"v_mov_b32 v{V_M}, v{mn}")
        for pr in range(2):
            for j in range(4):
                A, B = vb + 8 * pr + j, vb + 8 * pr + 4 + j
                g.I(f"v_perm_b32 v{kb+8*pr+2*j}, v{B}, v{A}, s{S_PLO}")
                g.I(f"v_perm_b32 v{kb+8*pr+2*j+1}, v{B}, v{A}, s{S_PHI}")
        g.I(f"v_mul_f32 v{V_L}, v{V_L}, v{al}")
        for j in range(4):
            g.I(f"v_pk_mul_f32 {vr(V_ACC+2*j,2)}, {vr(V_ACC+2*j,2)}, {vr(al,2)} op_sel_hi:[1,0]")
        g.I(f"v_cvt_pk_bf16_f32 v{V_PP+4}, v{V_PP}, v{V_PP+1}")
        g.I(f"v_cvt_pk_bf16_f32 v{V_PP+5}, v{V_PP+2}, v{V_PP+3}")
        g.I(f"v_add_f32 v{t}, v{V_PP}, v{V_PP+1}")
        g.I(f"v_add_f32 v{t+1}, v{V_PP+2}, v{V_PP+3}")
        g.I(f"v_add_f32 v{t}, v{t}, v{t+1}")
        g.I(f"v_add_f32 v{V_L}, v{V_L}, v{t}")
        for pr in range(2):
            for jj in range(8):
                g.I(f"v_dot2_f32_bf16 v{V_ACC+jj}, v{kb+8*pr+jj}, v{V_PP+4+pr}, v{V_ACC+jj}")

    def glu_part1():
        g.wait_tag("gu")
        for half, src in ((0, V_GT), (1, V_UP)):
            R = TMP8
            for j in range(4):
                g.I(f"v_lshlrev_b32 v{R[2*j]}, 16, v{src+j}")
                g.I(f"v_and_b32 v{R[2*j+1]}, s{S_MASK}, v{src+j}")
            for j in range(8):
                g.I(f"v_mul_f32 v{R[j]}, v{R[j]}, v{V_XROW}")
            reduce_scatter_rows(g, R)
            g.nop(2)
            row_allreduce(g, "add_f32", [R[0], R[1]])
            g.I(f"v_lshlrev_b32 v{R[2]}, 6, v{V_G}")
            g.I(f"s_lshl_b32 s{S_T0}, s{S_WAVE}, 2")
            g.I(f"v_add_u32 v{R[2]}, s{S_T0}, v{R[2]}")
            g.I(f"v_cmp_eq_u32 vcc, 0, v{V_Cc}")
            g.I(f"s_and_saveexec_b64 {sr(S_EX,2)}, vcc")
            g.I(f"ds_write_b32 v{R[2]}, v{R[0]} offset:{L_GU+256*half}")
            g.I(f"ds_write_b32 v{R[2]}, v{R[1]} offset:{L_GU+256*half+32}")
            g.I(f"s_mov_b64 exec, {sr(S_EX,2)}")
        g.I("s_waitcnt lgkmcnt(0)")

    def glu_part2():
        ta, tb = 62, 63
        R = TMP8
        g.I(f"v_lshrrev_b32 v{ta}, 3, v{V_LANE}")
        g.I(f"v_lshlrev_b32 v{ta}, 5, v{ta}")
        g.I(f"ds_read_b128 {vr(V_GT,4)}, v{ta} offset:{L_GU}")
        g.I(f"ds_read_b128 {vr(V_GT+4,4)}, v{ta} offset:{L_GU+16}")
        g.I(f"ds_read_b128 {vr(26,4)}, v{ta} offset:{L_GU+256}")
        g.I(f"ds_read_b64 {vr(30,2)}, v{ta} offset:{L_GU+272}")
        g.I(f"ds_read_b64 {vr(58,2)}, v{ta} offset:{L_GU+280}")
        g.I("s_waitcnt lgkmcnt(0)")
        for j in range(1, 8):
            g.I(f"v_add_f32 v{V_GT}, v{V_GT}, v{V_GT+j}")
            g.I(f"v_add_f32 v{R[0]}, v{R[0]}, v{R[j]}")
        ga, ua = V_GT, R[0]
        bf16_round2(g, ga, ua, tb)
        e = V_GT + 1
        g.I(f"v_mul_f32 v{e}, s{S_LOG2E}, v{ga}")
        g.I(f"v_sub_f32 v{e}, 0, v{e}")
        g.I(f"v_exp_f32 v{e}, v{e}")
        g.nop(1)
        g.I(f"v_add_f32 v{e}, 1.0, v{e}")
        g.I(f"v_rcp_f32 v{e+1}, v{e}")
        g.nop(1)
        g.I(f"v_fma_f32 v{e+2}, -v{e}, v{e+1}, 1.0")
        g.I(f"v_fma_f32 v{e+1}, v{e+2}, v{e+1}, v{e+1}")
        bf16_round1(g, e + 1, e + 1, tb)
        g.I(f"v_mul_f32 v{e+1}, v{e+1}, v{ua}")
        bf16_round1(g, e + 1, e + 1, tb)
        hh = e + 1
        g.wait_tag("dn")
        for j in range(4):
            g.I(f"v_lshlrev_b32 v{R[2*j]}, 16, v{V_DN+j}")
            g.I(f"v_and_b32 v{R[2*j+1]}, s{S_MASK}, v{V_DN+j}")
        for j in range(8):
            g.I(f"v_mul_f32 v{R[j]}, v{R[j]}, v{hh}")
        g.nop(2)
        for j in range(8):
            g.I(f"v_add_f32_dpp v{R[j]}, v{R[j]}, v{R[j]} row_ror:8 row_mask:0xf bank_mask:0xf")
        reduce_scatter_rows(g, R)
        g_addr(ta, tb)
        g.I(f"s_cmp_eq_u32 s{S_GVALID}, 0")
        g.I("s_cbranch_scc1 L_skip_glu")
        g.I(f"s_and_saveexec_b64 {sr(S_EX,2)}, vcc")
        g.I(f"buffer_store_dwordx2 {vr(R[0],2)}, v{tb}, {sr(R_WS,4)}, s{S_T0} offen sc0 sc1")
        g.I(f"s_mov_b64 exec, {sr(S_EX,2)}")
        g.lab("L_skip_glu")

    def glu_loads():
        if cfg.noglu:
            return
        ta = 62
        g.I(f"s_movk_i32 s{S_T1}, 3584")
        g.I(f"v_mul_lo_u32 v{ta}, v{V_TID}, s{S_T1}")
        g.I(f"s_lshl_b32 s{S_T1}, s{S_GJ}, 4")
        g.vm(f"buffer_load_dwordx4 {vr(V_GT,4)}, v{ta}, {sr(R_GT,4)}, s{S_T1} offen", "gu")
        g.vm(f"buffer_load_dwordx4 {vr(V_UP,4)}, v{ta}, {sr(R_UP,4)}, s{S_T1} offen", "gu")
        g.I(f"v_lshrrev_b32 v63, 3, v{V_LANE}")
        g.I(f"v_lshlrev_b32 v63, 10, v63")
        g.I(f"v_and_b32 v59, 7, v{V_LANE}")
        g.I(f"v_lshl_add_u32 v63, v59, 4, v63")
        g.I(f"s_lshl_b32 s{S_T1}, s{S_GJ}, 13")
        g.I(f"s_lshl_b32 s{S_T0}, s{S_WAVE}, 7")
        g.I(f"s_add_u32 s{S_T1}, s{S_T1}, s{S_T0}")
        g.vm(f"buffer_load_dwordx4 {vr(V_DN,4)}, v63, {sr(R_DN,4)}, s{S_T1} offen", "dn")

    def wo_perm():
        for k in range(8):
            for j in range(4):
                A, B = V_W + 8 * k + j, V_W + 8 * k + 4 + j
                tt = V_T + (j % 2)
                g.I(f"v_perm_b32 v{tt}, v{B}, v{A}, s{S_PLO}")
                g.I(f"v_perm_b32 v{B}, v{B}, v{A}, s{S_PHI}")
                g.I(f"v_mov_b32 v{A}, v{tt}")

    def wo_loads(k):
        if cfg.nowo:
            return
        g.I(f"s_add_u32 s{S_T2}, s{S_SPLIT}, {k}")
        g.I(f"s_and_b32 s{S_T2}, s{S_T2}, 7")
        g.I(f"s_lshl_b32 s{S_T2}, s{S_T2}, 14")
        g.vm(f"buffer_load_dwordx4 {vr(V_W+8*k,4)}, v{V_WOA}, {sr(R_WO,4)}, s{S_T2} offen", "wo")
        g.vm(f"buffer_load_dwordx4 {vr(V_W+8*k+4,4)}, v{V_WOA}, {sr(R_WO,4)}, s{S_T2} offen offset:1024", "wo")

    def y_addr(dst, tmp):
        g.I(f"v_lshrrev_b32 v{dst}, 1, v{V_LANE}")
        g.I(f"v_lshlrev_b32 v{dst}, 14, v{dst}")
        g.I(f"v_and_b32 v{tmp}, 1, v{V_LANE}")
        g.I(f"v_lshl_add_u32 v{dst}, v{tmp}, 5, v{dst}")

    def g_addr(ta, tb):
        g.I(f"v_and_b32 v{ta}, 7, v{V_LANE}")
        g.I(f"v_lshrrev_b32 v{tb}, 1, v{ta}")
        g.I(f"v_lshlrev_b32 v{tb}, 14, v{tb}")
        g.I(f"v_and_b32 v{ta}, 1, v{ta}")
        g.I(f"v_lshl_add_u32 v{tb}, v{ta}, 5, v{tb}")
        g.I(f"v_and_b32 v{ta}, 1, v{V_G}")
        g.I(f"v_lshl_add_u32 v{tb}, v{ta}, 3, v{tb}")
        g.I(f"v_lshrrev_b32 v{ta}, 1, v{V_G}")
        g.I(f"v_lshl_add_u32 v{tb}, v{ta}, 4, v{tb}")
        g.I(f"s_lshl_b32 s{S_T0}, s{S_WAVE}, 16")
        g.I(f"s_lshl_b32 s{S_T1}, s{S_GJ}, 6")
        g.I(f"s_add_u32 s{S_T0}, s{S_T0}, s{S_T1}")
        g.I(f"s_add_u32 s{S_T0}, s{S_T0}, {WS_G}")
        g.I(f"v_and_b32 v{ta}, 8, v{V_LANE}")
        g.I(f"v_cmp_eq_u32 vcc, 0, v{ta}")

    def clears():
        SN = 28
        for j in range(4):
            g.I(f"v_mov_b32 v{SN+j}, -1")
        g_addr(62, 63)
        g.I(f"s_cmp_eq_u32 s{S_GVALID}, 0")
        g.I("s_cbranch_scc1 L_skip_gclr")
        g.I(f"s_and_saveexec_b64 {sr(S_EX,2)}, vcc")
        g.I(f"buffer_store_dwordx2 {vr(SN,2)}, v63, {sr(R_WS,4)}, s{S_T0} offen sc0 sc1")
        g.I(f"s_mov_b64 exec, {sr(S_EX,2)}")
        g.lab("L_skip_gclr")
        g.I(f"s_cmp_lg_u32 s{S_WAVE}, 0")
        g.I("s_cbranch_scc1 L_skip_yclr")
        y_addr(62, 63)
        g.I(f"s_lshl_b32 s{S_T0}, s{S_P}, 6")
        g.I(f"buffer_store_dwordx4 {vr(SN,4)}, v62, {sr(R_WS,4)}, s{S_T0} offen sc0 sc1")
        g.I(f"buffer_store_dwordx4 {vr(SN,4)}, v62, {sr(R_WS,4)}, s{S_T0} offen offset:16 sc0 sc1")
        g.I(f"s_lshl_b32 s{S_T1}, s{S_P}, 3")
        g.I(f"s_add_u32 s{S_T1}, s{S_T1}, {WS_ML}")
        g.I(f"v_mov_b32 v63, 0")
        g.I("s_mov_b64 exec, 1")
        g.I(f"buffer_store_dwordx2 {vr(SN,2)}, v63, {sr(R_WS,4)}, s{S_T1} offen sc0 sc1")
        g.I("s_mov_b64 exec, -1")
        g.lab("L_skip_yclr")

    for j in range(4):
        g.wait_tag(f"b{j}")
        compute_block(j)
        if cfg.loopbar:
            g.I("s_barrier")
        if j == 0:
            clears()
        issue_block(j, f"b{j}")
        for k in cfg.wo_sched.get(j, []):
            wo_loads(k)
        if j == cfg.glu_at:
            glu_loads()
    for j in range(4):
        g.wait_tag(f"b{j}")
        compute_block(j)
        if j == 2:
            glu_part1()
        if cfg.loopbar:
            g.I("s_barrier")
        if j == 0:
            g.I(f"s_cmp_lg_u32 s{S_WAVE}, 0")
            g.I("s_cbranch_scc1 L_skip_sig")
            g.I(f"v_mov_b32 v62, 1")
            g.I(f"v_mov_b32 v63, 0")
            g.I("s_mov_b64 exec, 1")
            g.I(f"buffer_atomic_add v62, v63, {sr(R_DBG,4)}, s{S_HOFF} offen")
            g.I("s_mov_b64 exec, -1")
            g.lab("L_skip_sig")
        issue_block(j, f"b{j}")
        for k in cfg.wo_sched.get(4 + j, []):
            wo_loads(k)
        if j == 3:
            glu_part2()
    for j in range(4):
        g.wait_tag(f"b{j}")
        compute_block(j)
        if cfg.loopbar:
            g.I("s_barrier")
        issue_block(j, f"b{j}")
    g.wait_tag("wo")
    wo_perm()
    g.I(f"s_mov_b32 s{S_CNT}, 5")
    g.lab("L_loop")
    if cfg.stamp:
        g.I(f"s_cmp_lg_u32 s{S_WAVE}, 0")
        g.I(f"s_cbranch_scc1 L_stl")
        g.I(f"s_memrealtime s[{S_TS}:{S_TS+1}]")
        g.I("s_waitcnt lgkmcnt(0)")
        g.I(f"v_mov_b32 v5, s{S_TS}")
        g.I(f"s_lshl_b32 s{S_TS}, s2, 6")
        g.I(f"s_lshl_b32 s{S_TS+1}, s{S_CNT}, 2")
        g.I(f"s_sub_u32 s{S_TS}, s{S_TS}, s{S_TS+1}")
        g.I(f"s_add_u32 s{S_TS}, s{S_TS}, {2*1024*1024 + 15*4}")
        g.I(f"v_mov_b32 v6, s{S_TS}")
        g.I(f"global_store_dword v6, v5, s[{S_WS}:{S_WS+1}]")
        g.lab("L_stl")
    for b in range(D):
        g.I(f"s_waitcnt vmcnt({8*(D-1)})")
        compute_block(b)
        if cfg.loopbar and (b % cfg.loopbar) == 0:
            g.I("s_barrier")
        issue_block(b, f"b{b}")
    g.I(f"s_sub_u32 s{S_CNT}, s{S_CNT}, 1")
    g.I(f"s_cmp_lg_u32 s{S_CNT}, 1")
    g.I("s_cbranch_scc1 L_nochk")
    g.I(f"v_lshlrev_b32 v62, 2, v{V_LANE}")
    g.I(f"v_and_b32 v62, 0x7f, v62")
    g.I(f"buffer_load_dword v63, v62, {sr(R_DBG,4)}, 0 offen sc0 sc1")
    g.lab("L_nochk")
    g.I(f"s_cmp_lg_u32 s{S_CNT}, 0")
    g.I("s_cbranch_scc1 L_loop")
    g.wait_all()
    stamp(g, cfg, 2)
    if cfg.notail:
        g.I("s_branch L_end")
    t = V_T
    mw = t
    g.I(f"v_mov_b32 v{mw}, v{V_M}")
    cross_row_allreduce(g, "max_f32", mw, t + 1)
    g.I(f"v_sub_f32 v{t+2}, v{V_M}, v{mw}")
    g.I(f"v_mul_f32 v{t+2}, s{S_LOG2E}, v{t+2}")
    g.I(f"v_exp_f32 v{t+2}, v{t+2}")
    g.nop(1)
    g.I(f"v_mul_f32 v{V_L}, v{V_L}, v{t+2}")
    for j in range(8):
        g.I(f"v_mul_f32 v{V_ACC+j}, v{V_ACC+j}, v{t+2}")
    cross_row_allreduce(g, "add_f32", V_L, t + 1)
    reduce_scatter_rows(g, [V_ACC + j for j in range(8)])
    g.I(f"s_lshl_b32 s{S_T0}, s{S_WAVE}, 9")
    g.I(f"v_add_u32 v{t+3}, s{S_T0}, v{V_QOFF}")
    g.I(f"ds_write_b64 v{t+3}, {vr(V_ACC,2)} offset:{L_OP}")
    g.I(f"v_mov_b32 v{t+1}, v{V_L}")
    g.I(f"s_lshl_b32 s{S_T0}, s{S_WAVE}, 3")
    g.I(f"v_mov_b32 v{t+3}, s{S_T0}")
    g.I(f"ds_write_b64 v{t+3}, {vr(t,2)} offset:{L_ML}")
    g.I(f"v_mov_b32 v{t+3}, 0")
    g.I(f"v_add_u32 v{t+4}, s{S_SPLIT}, v{V_LANE}")
    g.I(f"v_and_b32 v{t+4}, 7, v{t+4}")
    g.I(f"v_lshlrev_b32 v{t+4}, 6, v{t+4}")
    g.I(f"s_lshl_b32 s{S_T0}, s{S_WAVE}, 3")
    g.I(f"v_add_u32 v{t+4}, s{S_T0}, v{t+4}")
    g.I("s_waitcnt lgkmcnt(0)")
    g.I("s_barrier")
    ML = 24
    for k in range(4):
        g.I(f"ds_read_b128 {vr(ML+4*k,4)}, v{t+3} offset:{L_ML+16*k}")
    OPR = V_RING
    for w in range(8):
        g.I(f"ds_read_b64 {vr(OPR+2*w,2)}, v{t+4} offset:{L_OP+512*w}")
    g.I("s_waitcnt lgkmcnt(8)")
    M = t
    g.I(f"v_max3_f32 v{M}, v{ML}, v{ML+2}, v{ML+4}")
    g.I(f"v_max3_f32 v{M}, v{M}, v{ML+6}, v{ML+8}")
    g.I(f"v_max3_f32 v{M}, v{M}, v{ML+10}, v{ML+12}")
    g.I(f"v_max_f32 v{M}, v{M}, v{ML+14}")
    for w in range(8):
        g.I(f"v_sub_f32 v{ML+2*w}, v{ML+2*w}, v{M}")
    for w in range(8):
        g.I(f"v_mul_f32 v{ML+2*w}, s{S_LOG2E}, v{ML+2*w}")
    for w in range(8):
        g.I(f"v_exp_f32 v{ML+2*w}, v{ML+2*w}")
    oa, ob = t + 5, t + 6
    g.I("s_waitcnt lgkmcnt(0)")
    g.I(f"v_mul_f32 v{oa}, v{ML}, v{OPR}")
    g.I(f"v_mul_f32 v{ob}, v{ML}, v{OPR+1}")
    for w in range(1, 8):
        g.I(f"v_fmac_f32 v{oa}, v{ML+2*w}, v{OPR+2*w}")
        g.I(f"v_fmac_f32 v{ob}, v{ML+2*w}, v{OPR+2*w+1}")
    g.I(f"v_cvt_pk_bf16_f32 v{oa}, v{oa}, v{ob}")
    so = list(range(4, 12))
    Lr = t + 1
    g.I(f"v_mul_f32 v{Lr}, v{ML}, v{ML+1}")
    for k in range(8):
        g.I(f"v_readlane_b32 s{so[k]}, v{oa}, {k}")
    for w in range(1, 8):
        g.I(f"v_fmac_f32 v{Lr}, v{ML+2*w}, v{ML+2*w+1}")
    YA = V_ACC
    for k in range(8):
        for j in range(4):
            A, B = V_W + 8 * k + j, V_W + 8 * k + 4 + j
            c0 = "0" if k == 0 else f"v{YA+2*j}"
            c1 = "0" if k == 0 else f"v{YA+2*j+1}"
            g.I(f"v_dot2_f32_bf16 v{YA+2*j}, v{A}, s{so[k]}, {c0}")
            g.I(f"v_dot2_f32_bf16 v{YA+2*j+1}, v{B}, s{so[k]}, {c1}")
    g.I(f"v_lshlrev_b32 v{t+3}, 5, v{V_LANE}")
    g.I(f"s_lshl_b32 s{S_T0}, s{S_WAVE}, 11")
    g.I(f"v_add_u32 v{t+4}, s{S_T0}, v{t+3}")
    g.nop(1)
    g.I(f"ds_write_b128 v{t+4}, {vr(YA,4)} offset:{L_YP}")
    g.I(f"ds_write_b128 v{t+4}, {vr(YA+4,4)} offset:{L_YP+16}")
    g.I("s_waitcnt lgkmcnt(0)")
    g.I("s_barrier")
    g.I(f"s_cmp_lg_u32 s{S_WAVE}, 0")
    g.I("s_cbranch_scc1 L_after_pub")
    for w in range(8):
        g.I(f"ds_read_b128 {vr(V_RING+8*w,4)}, v{t+3} offset:{L_YP+2048*w}")
        g.I(f"ds_read_b128 {vr(V_RING+8*w+4,4)}, v{t+3} offset:{L_YP+2048*w+16}")
    y_addr(t + 3, t + 4)
    g.I(f"s_lshl_b32 s{S_T0}, s{S_P}, 6")
    g.I(f"s_lshl_b32 s{S_T1}, s{S_P}, 3")
    g.I(f"s_add_u32 s{S_T1}, s{S_T1}, {WS_ML}")
    g.I(f"v_mov_b32 v{t+4}, 0")
    g.I(f"v_cmp_eq_u32 vcc, 0, v{V_LANE}")
    g.I("s_waitcnt lgkmcnt(0)")
    for step in (1, 2, 4):
        for w in range(0, 8, 2 * step):
            for j in range(8):
                g.I(f"v_add_f32 v{V_RING+8*w+j}, v{V_RING+8*w+j}, v{V_RING+8*(w+step)+j}")
    g.I(f"buffer_store_dwordx4 {vr(V_RING,4)}, v{t+3}, {sr(R_WS,4)}, s{S_T0} offen sc0 sc1")
    g.I(f"buffer_store_dwordx4 {vr(V_RING+4,4)}, v{t+3}, {sr(R_WS,4)}, s{S_T0} offen offset:16 sc0 sc1")
    g.I(f"s_and_saveexec_b64 {sr(S_EX,2)}, vcc")
    g.I(f"buffer_store_dwordx2 {vr(t,2)}, v{t+4}, {sr(R_WS,4)}, s{S_T1} offen sc0 sc1")
    g.I(f"s_mov_b64 exec, {sr(S_EX,2)}")
    g.lab("L_after_pub")
    stamp(g, cfg, 3)

    def finisher(fid_sreg):
        t = V_T
        a0 = t
        g.I(f"v_lshlrev_b32 v62, 2, v{V_LANE}")
        g.I(f"v_and_b32 v62, 0x7f, v62")
        g.I(f"s_mov_b32 s{S_CNT}, 0x40000")
        g.lab("L_cpoll")
        g.I(f"v_cmp_gt_u32 vcc, 8, v63")
        g.I("s_cbranch_vccz L_cdone")
        g.I(f"s_sub_u32 s{S_CNT}, s{S_CNT}, 1")
        g.I(f"s_cmp_eq_u32 s{S_CNT}, 0")
        g.I("s_cbranch_scc1 L_cdone")
        g.I(f"buffer_load_dword v63, v62, {sr(R_DBG,4)}, 0 offen sc0 sc1")
        g.I("s_waitcnt vmcnt(0)")
        g.I("s_branch L_cpoll")
        g.lab("L_cdone")
        stamp(g, cfg, 4)
        g.I(f"v_lshlrev_b32 v{a0}, 4, v{V_TID}")
        g.I(f"s_lshl_b32 s{S_T0}, s{fid_sreg}, 14")
        g.I(f"s_add_u32 s{S_T1}, s{S_T0}, 8192")
        g.I(f"s_add_u32 s{S_T2}, s{S_T0}, {WS_G}")
        g.I(f"s_add_u32 s{S_OFF}, s{S_T1}, {WS_G}")
        g.I(f"s_mov_b32 s{S_GJ}, {WS_ML}")
        Y1, Y2, G1, G2 = V_RING, V_RING + 4, V_RING + 8, V_RING + 12
        MLv = V_RING + 16
        g.I(f"v_and_b32 v{a0+1}, 15, v{V_LANE}")
        g.I(f"v_bfe_u32 v{a0+2}, v{V_LANE}, 4, 1")
        g.I(f"v_lshl_add_u32 v{a0+1}, v{a0+2}, 7, v{a0+1}")
        g.I(f"s_lshl_b32 s{S_RB}, s{S_WAVE}, 4")
        g.I(f"v_add_u32 v{a0+1}, s{S_RB}, v{a0+1}")
        g.I(f"v_lshlrev_b32 v{a0+1}, 3, v{a0+1}")
        g.I(f"v_and_b32 v{a0+5}, 15, v{V_TID}")
        g.I(f"v_lshlrev_b32 v{a0+5}, 1, v{a0+5}")
        g.I(f"s_lshl_b32 s{S_RB}, s{fid_sreg}, 5")
        g.I(f"buffer_load_ushort v{a0+6}, v{a0+5}, {sr(R_X,4)}, s{S_RB} offen")
        g.I(f"v_cmp_gt_u32 vcc, {96*4}, v{V_TID}")
        g.I(f"s_mov_b64 s[92:93], vcc")
        for j in range(4):
            g.I(f"v_mov_b32 v{G2+j}, 0")
        g.I(f"s_mov_b32 s{S_CNT}, 0x40000")
        g.lab("L_dpoll")
        g.I(f"buffer_load_dwordx2 {vr(MLv,2)}, v{a0+1}, {sr(R_WS,4)}, s{S_GJ} offen sc0 sc1")
        g.I(f"buffer_load_dwordx4 {vr(Y1,4)}, v{a0}, {sr(R_WS,4)}, s{S_T0} offen sc0 sc1")
        g.I(f"buffer_load_dwordx4 {vr(Y2,4)}, v{a0}, {sr(R_WS,4)}, s{S_T1} offen sc0 sc1")
        g.I(f"buffer_load_dwordx4 {vr(G1,4)}, v{a0}, {sr(R_WS,4)}, s{S_T2} offen sc0 sc1")
        g.I(f"s_and_b64 s[94:95], s[92:93], exec")
        g.I(f"s_cbranch_scc0 L_nog2")
        g.I(f"s_mov_b64 exec, s[92:93]")
        g.I(f"buffer_load_dwordx4 {vr(G2,4)}, v{a0}, {sr(R_WS,4)}, s{S_OFF} offen sc0 sc1")
        g.I(f"s_mov_b64 exec, -1")
        g.lab("L_nog2")
        g.I("s_waitcnt vmcnt(0)")
        mx = a0 + 8
        g.I(f"v_max3_u32 v{mx}, v{Y1}, v{Y1+1}, v{Y1+2}")
        g.I(f"v_max3_u32 v{mx+1}, v{Y1+3}, v{Y2}, v{Y2+1}")
        g.I(f"v_max3_u32 v{mx}, v{mx}, v{Y2+2}, v{Y2+3}")
        g.I(f"v_max3_u32 v{mx+1}, v{mx+1}, v{G1}, v{G1+1}")
        g.I(f"v_max3_u32 v{mx}, v{mx}, v{G1+2}, v{G1+3}")
        g.I(f"v_max3_u32 v{mx+1}, v{mx+1}, v{G2}, v{G2+1}")
        g.I(f"v_max3_u32 v{mx}, v{mx}, v{G2+2}, v{G2+3}")
        g.I(f"v_max3_u32 v{mx+1}, v{mx+1}, v{MLv}, v{MLv+1}")
        g.I(f"v_max_u32 v{mx}, v{mx}, v{mx+1}")
        g.I(f"v_cmp_eq_u32 vcc, -1, v{mx}")
        g.I("s_cbranch_vccz L_ddone")
        g.I(f"s_sub_u32 s{S_CNT}, s{S_CNT}, 1")
        g.I(f"s_cmp_lg_u32 s{S_CNT}, 0")
        g.I("s_cbranch_scc1 L_dpoll")
        g.lab("L_ddone")
        stamp(g, cfg, 9)
        M, W, Ls = a0 + 8, a0 + 9, a0 + 10
        g.I(f"v_mov_b32 v{M}, v{MLv}")
        g.nop(1)
        for dpp in ("quad_perm:[1,0,3,2]", "quad_perm:[2,3,0,1]", "row_half_mirror"):
            g.I(f"v_max_f32_dpp v{M}, v{M}, v{M} {dpp} row_mask:0xf bank_mask:0xf")
            g.nop(2)
        g.I(f"v_sub_f32 v{W}, v{MLv}, v{M}")
        g.I(f"v_mul_f32 v{W}, s{S_LOG2E}, v{W}")
        g.I(f"v_exp_f32 v{W}, v{W}")
        g.nop(1)
        g.I(f"v_mul_f32 v{Ls}, v{W}, v{MLv+1}")
        g.nop(2)
        for dpp in ("quad_perm:[1,0,3,2]", "quad_perm:[2,3,0,1]", "row_half_mirror"):
            g.I(f"v_add_f32_dpp v{Ls}, v{Ls}, v{Ls} {dpp} row_mask:0xf bank_mask:0xf")
            g.nop(2)
        c = a0 + 11
        g.I(f"v_rcp_f32 v{c}, v{Ls}")
        g.nop(1)
        g.I(f"v_fma_f32 v{M}, -v{Ls}, v{c}, 1.0")
        g.I(f"v_fma_f32 v{c}, v{M}, v{c}, v{c}")
        g.I(f"v_mul_f32 v{c}, v{c}, v{W}")
        g.I(f"v_and_b32 v{a0+1}, 0x3c, v{V_LANE}")
        g.I(f"v_add_u32 v{a0+2}, 64, v{a0+1}")
        c1, c2 = a0 + 8, a0 + 9
        g.I(f"ds_bpermute_b32 v{c1}, v{a0+1}, v{c}")
        g.I(f"ds_bpermute_b32 v{c2}, v{a0+2}, v{c}")
        for j in range(4):
            g.I(f"v_add_f32 v{G1+j}, v{G1+j}, v{G2+j}")
        g.I("s_waitcnt lgkmcnt(0)")
        for j in range(4):
            g.I(f"v_mul_f32 v{Y1+j}, v{c1}, v{Y1+j}")
        for j in range(4):
            g.I(f"v_fmac_f32 v{Y1+j}, v{c2}, v{Y2+j}")
        R8 = [Y1 + j for j in range(4)] + [G1 + j for j in range(4)]
        g.nop(2)
        for r in (4, 8):
            for x in R8:
                g.I(f"v_add_f32_dpp v{x}, v{x}, v{x} row_ror:{r} row_mask:0xf bank_mask:0xf")
        reduce_scatter_rows(g, R8)
        g.I(f"v_and_b32 v{a0}, 3, v{V_LANE}")
        g.I(f"v_lshlrev_b32 v{a0}, 4, v{a0}")
        g.I(f"v_and_b32 v{a0+1}, 1, v{V_G}")
        g.I(f"v_lshl_add_u32 v{a0}, v{a0+1}, 3, v{a0}")
        g.I(f"v_lshrrev_b32 v{a0+1}, 1, v{V_G}")
        g.I(f"v_lshl_add_u32 v{a0}, v{a0+1}, 6, v{a0}")
        g.I(f"s_lshl_b32 s{S_T0}, s{S_WAVE}, 7")
        g.I(f"v_add_u32 v{a0}, s{S_T0}, v{a0}")
        g.I(f"ds_write_b64 v{a0}, {vr(R8[0],2)} offset:{L_FIN}")
        g.I("s_waitcnt lgkmcnt(0)")
        g.I("s_barrier")
        g.I(f"s_cmp_lg_u32 s{S_WAVE}, 0")
        g.I("s_cbranch_scc1 L_end2")
        g.I(f"v_and_b32 v{a0}, 15, v{V_LANE}")
        g.I(f"v_lshlrev_b32 v{a0}, 2, v{a0}")
        for w in range(8):
            g.I(f"ds_read_b32 v{V_RING+16+w}, v{a0} offset:{L_FIN+128*w}")
            g.I(f"ds_read_b32 v{V_RING+24+w}, v{a0} offset:{L_FIN+128*w+64}")
        g.I("s_waitcnt lgkmcnt(0)")
        for step in (1, 2, 4):
            for w in range(0, 8, 2 * step):
                g.I(f"v_add_f32 v{V_RING+16+w}, v{V_RING+16+w}, v{V_RING+16+w+step}")
                g.I(f"v_add_f32 v{V_RING+24+w}, v{V_RING+24+w}, v{V_RING+24+w+step}")
        bf16_round2(g, V_RING + 16, V_RING + 24, a0 + 1)
        g.I(f"v_lshlrev_b32 v{a0+6}, 16, v{a0+6}")
        g.I(f"v_add_f32 v{a0+6}, v{a0+6}, v{V_RING+16}")
        bf16_round1(g, a0 + 6, a0 + 6, a0 + 1)
        g.I(f"v_add_f32 v{a0+6}, v{a0+6}, v{V_RING+24}")
        g.I(f"v_cvt_pk_bf16_f32 v{a0+6}, v{a0+6}, v{a0+6}")
        g.I(f"v_cmp_gt_u32 vcc, 16, v{V_LANE}")
        g.I(f"s_and_saveexec_b64 {sr(S_EX,2)}, vcc")
        g.I(f"s_lshl_b32 s{S_T2}, s{fid_sreg}, 5")
        g.I(f"buffer_store_short v{a0+6}, v{a0+5}, {sr(R_OUT,4)}, s{S_T2} offen")
        stamp(g, cfg, 5)
        g.lab("L_end2")

    g.I("s_cmp_ge_u32 s2, 32")
    g.I("s_cbranch_scc1 L_end")
    finisher(2)
    g.lab("L_end")
    g.I("s_endpgm")

    g.L.append('.section .rodata,"a"')
    g.L.append(".p2align 6")
    g.L.append(f".amdhsa_kernel {kmain}")
    g.L.append("  .amdhsa_next_free_vgpr 256")
    g.L.append("  .amdhsa_next_free_sgpr 102")
    g.L.append("  .amdhsa_accum_offset 256")
    g.L.append("  .amdhsa_group_segment_fixed_size 0")
    g.L.append("  .amdhsa_kernarg_size 96")
    g.L.append("  .amdhsa_user_sgpr_count 2")
    g.L.append("  .amdhsa_user_sgpr_kernarg_segment_ptr 1")
    g.L.append("  .amdhsa_system_sgpr_workgroup_id_x 1")
    g.L.append(".end_amdhsa_kernel")
    return g.text()


if __name__ == "__main__":
    ap = argparse.ArgumentParser()
    ap.add_argument("--nt", type=int, default=1)
    ap.add_argument("--stamp", type=int, default=0)
    ap.add_argument("--loopbar", type=int, default=1)
    ap.add_argument("--lnwave", type=int, default=0)
    ap.add_argument("--hmap", type=int, default=1)
    ap.add_argument("--nocompute", type=int, default=0)
    ap.add_argument("--notail", type=int, default=0)
    ap.add_argument("--nowo", type=int, default=0)
    ap.add_argument("--noglu", type=int, default=0)
    ap.add_argument("--nowq", type=int, default=0)
    ap.add_argument("--wosched", type=str, default="{0:[0],3:[1,2],4:[3,4],5:[5,6],6:[7]}")
    ap.add_argument("--glu_at", type=int, default=1)
    ap.add_argument("--issue", type=str, default="2,2,3,6")
    ap.add_argument("-o", default="parallel_sum__mha_block_cached__glu_gated_glu__decode.s")
    cfg = ap.parse_args()
    cfg.issue_at = [int(x) for x in cfg.issue.split(",")]
    cfg.wo_sched = eval(cfg.wosched)
    assert len(cfg.issue_at) == 4
    open(cfg.o, "w").write(gen(cfg))
    print("wrote", cfg.o)
```

```python
import sys, argparse
from gen import G, vr, sr, HEADER, KNAME

S_X, S_K, S_V, S_WQ, S_WO, S_BX, S_GT, S_UP = 4, 6, 8, 10, 12, 14, 16, 18
S_DN, S_OUT, S_DBG, S_WS = 20, 22, 24, 26
R_K, R_V, R_WQ, R_WO, R_GT, R_UP, R_DN, R_X, R_WS, R_OUT, R_DBG = 28, 32, 36, 40, 44, 48, 52, 56, 60, 64, 68
S_H, S_SPLIT, S_WAVE, S_OFF, S_CNT = 72, 73, 74, 75, 76
S_SCALE, S_LOG2E, S_MASK, S_P, S_GJ, S_T0, S_T1, S_T2, S_GVALID = 78, 79, 80, 81, 82, 83, 84, 85, 86
S_PLO, S_PHI = 87, 88
S_HOFF = 90
S_RB = 91
S_EX = 96
S_TS = 98

L_XN = 0
L_QP = 1024
L_GU = 5120
L_OP = 5632
L_ML = 9728
L_YP = 10240
L_FIN = 26624
LDS_BYTES = 27648

WS_Y = 0
WS_G = 512 * 1024
WS_ML = 1024 * 1024
WS_BYTES = 1024 * 1024 + 2048 + 4096


def srd(g, r, base_lo, base_hi, nbytes):
    g.I(f"s_mov_b32 s{r}, s{base_lo}")
    g.I(f"s_and_b32 s{r+1}, s{base_hi}, 0xffff")
    g.I(f"s_mov_b32 s{r+2}, {nbytes:#x}")
    g.I(f"s_mov_b32 s{r+3}, 0x00020000")


def srd_off(g, r, base_lo, base_hi, off_sreg, nbytes):
    g.I(f"s_add_u32 s{r}, s{base_lo}, s{off_sreg}")
    g.I(f"s_addc_u32 s{r+1}, s{base_hi}, 0")
    g.I(f"s_and_b32 s{r+1}, s{r+1}, 0xffff")
    g.I(f"s_mov_b32 s{r+2}, {nbytes:#x}")
    g.I(f"s_mov_b32 s{r+3}, 0x00020000")


def bf16_round1(g, dst, src, tmp):
    g.I(f"v_cvt_pk_bf16_f32 v{tmp}, v{src}, v{src}")
    g.I(f"v_lshlrev_b32 v{dst}, 16, v{tmp}")


def bf16_round2(g, a, b, tmp):
    g.I(f"v_cvt_pk_bf16_f32 v{tmp}, v{a}, v{b}")
    g.I(f"v_lshlrev_b32 v{a}, 16, v{tmp}")
    g.I(f"v_and_b32 v{b}, s{S_MASK}, v{tmp}")


def row_allreduce(g, op, regs):
    n = len(regs)
    for r in (8, 4, 2, 1):
        for x in regs:
            g.I(f"v_{op}_dpp v{x}, v{x}, v{x} row_ror:{r} row_mask:0xf bank_mask:0xf")
        if n < 3:
            g.nop(3 - n)


def cross_row_allreduce(g, op, x, t):
    g.I(f"v_mov_b32 v{t}, v{x}")
    g.nop(2)
    g.I(f"v_permlane16_swap_b32 v{x}, v{t}")
    g.nop(1)
    g.I(f"v_{op} v{x}, v{x}, v{t}")
    g.I(f"v_mov_b32 v{t}, v{x}")
    g.nop(2)
    g.I(f"v_permlane32_swap_b32 v{x}, v{t}")
    g.nop(1)
    g.I(f"v_{op} v{x}, v{x}, v{t}")


def wave_allreduce(g, op, x, t):
    row_allreduce(g, op, [x])
    cross_row_allreduce(g, op, x, t)


def reduce_scatter_rows(g, regs):
    n = len(regs)
    h = n // 2
    g.nop(2)
    for k in range(h):
        g.I(f"v_permlane32_swap_b32 v{regs[k]}, v{regs[k+h]}")
    g.nop(1)
    for k in range(h):
        g.I(f"v_add_f32 v{regs[k]}, v{regs[k]}, v{regs[k+h]}")
    qn = h // 2
    g.nop(2)
    for k in range(qn):
        g.I(f"v_permlane16_swap_b32 v{regs[k]}, v{regs[k+qn]}")
    g.nop(1)
    for k in range(qn):
        g.I(f"v_add_f32 v{regs[k]}, v{regs[k]}, v{regs[k+qn]}")


def stamp(g, cfg, idx, wave=0):
    if not cfg.stamp:
        return
    lab = f"L_st{idx}"
    g.I(f"s_cmp_lg_u32 s{S_WAVE}, {wave}")
    g.I(f"s_cbranch_scc1 {lab}")
    g.I(f"s_memrealtime s[{S_TS}:{S_TS+1}]")
    g.I("s_waitcnt lgkmcnt(0)")
    g.I(f"v_mov_b32 v5, s{S_TS}")
    g.I(f"s_lshl_b32 s{S_TS}, s2, 6")
    g.I(f"s_add_u32 s{S_TS}, s{S_TS}, {2*1024*1024 + idx*4}")
    g.I(f"v_mov_b32 v6, s{S_TS}")
    g.I(f"global_store_dword v6, v5, s[{S_WS}:{S_WS+1}]")
    g.lab(lab)


def gen(cfg):
    D = 4
    NT = " nt" if cfg.nt else ""
    WQNT = " nt" if cfg.wnt & 1 else ""
    WONT = " nt" if cfg.wnt & 2 else ""
    GNT = " nt" if cfg.wnt & 4 else ""
    g = G()
    V_TID, V_LANE, V_KVOFF, V_G, V_Cc, V_WOA = 0, 1, 2, 3, 4, 7
    V_Q = 8
    V_ACC = 12
    V_M, V_L = 20, 21
    V_S = 22
    V_PP = 32
    V_T = 40
    V_GT, V_UP, V_DN = 46, 50, 54
    V_XROW = 60
    V_QOFF = 61
    TMP8 = [26, 27, 28, 29, 30, 31, 58, 59]
    V_W = 64
    V_RING = 128
    LNW = cfg.lnwave

    g.L.append(HEADER.rstrip("\n"))
    g.L.append(f"; @launch grid=(256,1,1) block=(512,1,1) lds={LDS_BYTES}")
    kmain = KNAME
    g.L.append('.amdgcn_target "amdgcn-amd-amdhsa--gfx950"')
    g.L.append(".text")
    g.L.append(f".globl {kmain}")
    g.L.append(".p2align 8")
    g.L.append(f".type {kmain},@function")
    g.lab(kmain)
    g.I("s_cmp_ge_u32 s2, 256")
    g.I("s_cbranch_scc1 L_end")
    g.I("s_load_dwordx16 s[4:19], s[0:1], 0")
    g.I("s_load_dwordx8 s[20:27], s[0:1], 64")
    g.I(f"v_and_b32 v{V_LANE}, 63, v{V_TID}")
    g.I(f"v_lshrrev_b32 v{V_T}, 6, v{V_TID}")
    g.I(f"v_lshrrev_b32 v{V_G}, 4, v{V_LANE}")
    g.I(f"v_readfirstlane_b32 s{S_WAVE}, v{V_T}")
    g.I(f"v_and_b32 v{V_Cc}, 15, v{V_LANE}")
    g.I(f"s_mov_b32 s{S_SCALE}, 0x3db504f3")
    g.I(f"s_mov_b32 s{S_LOG2E}, 0x3fb8aa3b")
    g.I(f"s_mov_b32 s{S_MASK}, 0xffff0000")
    g.I(f"s_mov_b32 s{S_PLO}, 0x05040100")
    g.I(f"s_mov_b32 s{S_PHI}, 0x07060302")
    g.I(f"s_and_b32 s{S_T0}, s2, 7")
    g.I(f"s_lshr_b32 s{S_T1}, s2, 3")
    g.I(f"s_and_b32 s{S_T2}, s{S_T1}, 3")
    if cfg.hmap == 0:
        g.I(f"s_lshl_b32 s{S_H}, s{S_T0}, 2")
        g.I(f"s_add_u32 s{S_H}, s{S_H}, s{S_T2}")
    else:
        g.I(f"s_lshl_b32 s{S_H}, s{S_T2}, 1")
        g.I(f"s_add_u32 s{S_H}, s{S_H}, s{S_T0}")
        g.I(f"s_and_b32 s{S_H}, s{S_H}, 7")
        g.I(f"s_lshl_b32 s{S_T2}, s{S_T2}, 3")
        g.I(f"s_add_u32 s{S_H}, s{S_H}, s{S_T2}")
    g.I(f"s_lshr_b32 s{S_SPLIT}, s{S_T1}, 2")
    g.I(f"s_lshl_b32 s{S_P}, s{S_H}, 3")
    g.I(f"s_add_u32 s{S_P}, s{S_P}, s{S_SPLIT}")
    g.I(f"s_lshl_b32 s{S_HOFF}, s{S_H}, 2")
    g.I(f"s_mul_i32 s{S_GJ}, s{S_T0}, 28")
    g.I(f"s_add_u32 s{S_GJ}, s{S_GJ}, s{S_T1}")
    g.I(f"s_cmp_lt_u32 s{S_T1}, 28")
    g.I(f"s_cselect_b32 s{S_GVALID}, 1, 0")
    g.I(f"s_cselect_b32 s{S_GJ}, s{S_GJ}, 0")
    V_A = 56
    g.I(f"v_lshlrev_b32 v{V_WOA}, 4, v{V_LANE}")
    g.I(f"v_lshlrev_b32 v{V_A+1}, 14, v{V_G}")
    g.I(f"v_lshl_add_u32 v{V_A+1}, v{V_Cc}, 4, v{V_A+1}")
    g.I(f"s_lshl_b32 s{S_T0}, s{S_WAVE}, 16")
    g.I(f"s_lshl_b32 s{S_T1}, s{S_H}, 8")
    g.I(f"s_add_u32 s{S_RB}, s{S_T0}, s{S_T1}")
    g.I(f"s_lshl_b32 s{S_T1}, s{S_WAVE}, 12")
    g.I(f"v_add_u32 v{V_KVOFF}, s{S_T1}, v{V_WOA}")
    g.I(f"s_lshl_b32 s{S_T2}, s{S_P}, 20")
    g.I("s_waitcnt lgkmcnt(0)")
    stamp(g, cfg, 0)
    srd(g, R_WQ, S_WQ, S_WQ + 1, 512 * 8192)
    srd(g, R_X, S_X, S_X + 1, 1024)
    srd_off(g, R_K, S_K, S_K + 1, S_T2, 0x100000)
    srd_off(g, R_V, S_V, S_V + 1, S_T2, 0x100000)
    g.I(f"s_cmp_lg_u32 s{S_WAVE}, {LNW}")
    g.I("s_cbranch_scc1 L_loads")
    V_XR = V_T
    XF = V_PP
    g.I(f"buffer_load_dwordx4 {vr(V_XR,4)}, v{V_WOA}, {sr(R_X,4)}, 0 offen")
    g.I("s_waitcnt vmcnt(0)")
    stamp(g, cfg, 6, LNW)
    for j in range(4):
        g.I(f"v_lshlrev_b32 v{XF+2*j}, 16, v{V_XR+j}")
        g.I(f"v_and_b32 v{XF+2*j+1}, s{S_MASK}, v{V_XR+j}")
    t0, t1, t2, t3 = V_S, V_S + 1, V_S + 2, V_S + 3
    g.I(f"v_add_f32 v{t0}, v{XF}, v{XF+1}")
    g.I(f"v_add_f32 v{t1}, v{XF+2}, v{XF+3}")
    g.I(f"v_add_f32 v{t2}, v{XF+4}, v{XF+5}")
    g.I(f"v_add_f32 v{t3}, v{XF+6}, v{XF+7}")
    g.I(f"v_add_f32 v{t0}, v{t0}, v{t1}")
    g.I(f"v_add_f32 v{t2}, v{t2}, v{t3}")
    g.I(f"v_add_f32 v{t0}, v{t0}, v{t2}")
    g.nop(2)
    wave_allreduce(g, "add_f32", t0, t1)
    g.I(f"v_mul_f32 v{t0}, 0x3b000000, v{t0}")
    for j in range(8):
        g.I(f"v_sub_f32 v{12+j}, v{XF+j}, v{t0}")
    g.I(f"v_mul_f32 v{t1}, v12, v12")
    g.I(f"v_mul_f32 v{t2}, v13, v13")
    for j in range(2, 8, 2):
        g.I(f"v_fmac_f32 v{t1}, v{12+j}, v{12+j}")
        g.I(f"v_fmac_f32 v{t2}, v{13+j}, v{13+j}")
    g.I(f"v_add_f32 v{t1}, v{t1}, v{t2}")
    g.nop(2)
    wave_allreduce(g, "add_f32", t1, t2)
    g.I(f"v_mul_f32 v{t1}, 0x3b000000, v{t1}")
    bf16_round2(g, t0, t1, t2)
    g.I(f"v_add_f32 v{t1}, 0x3727c5ac, v{t1}")
    for j in range(8):
        g.I(f"v_sub_f32 v{XF+j}, v{XF+j}, v{t0}")
    bf16_round1(g, t1, t1, t2)
    g.I(f"v_sqrt_f32 v{t1}, v{t1}")
    for j in range(0, 8, 2):
        bf16_round2(g, XF + j, XF + j + 1, t2)
    bf16_round1(g, t1, t1, t2)
    g.I(f"v_rcp_f32 v{t3}, v{t1}")
    g.nop(1)
    for j in range(8):
        g.I(f"v_mul_f32 v{12+j}, v{XF+j}, v{t3}")
    for j in range(8):
        g.I(f"v_fma_f32 v{26+(j%4)}, -v{12+j}, v{t1}, v{XF+j}")
        g.I(f"v_fma_f32 v{XF+j}, v{26+(j%4)}, v{t3}, v{12+j}")
    XP = V_Q
    for j in range(4):
        g.I(f"v_cvt_pk_bf16_f32 v{XP+j}, v{XF+2*j}, v{XF+2*j+1}")
    g.I(f"ds_write_b128 v{V_WOA}, {vr(XP,4)} offset:{L_XN}")
    g.lab("L_loads")

    def issue_block(slot, tag):
        kb = V_RING + slot * 32
        for i in range(4):
            g.vm(f"buffer_load_dwordx4 {vr(kb+4*i,4)}, v{V_KVOFF}, {sr(R_K,4)}, s{S_OFF} offen offset:{i*1024}{NT}", tag)
        for i in range(4):
            g.vm(f"buffer_load_dwordx4 {vr(kb+16+4*i,4)}, v{V_KVOFF}, {sr(R_V,4)}, s{S_OFF} offen offset:{i*1024}{NT}", tag)
        g.I(f"s_add_u32 s{S_OFF}, s{S_OFF}, 32768")

    nissued = 0

    def maybe_issue(point):
        nonlocal nissued
        while nissued < D and cfg.issue_at[nissued] == point:
            issue_block(nissued, f"b{nissued}")
            nissued += 1

    g.I(f"s_mov_b32 s{S_OFF}, 0")
    maybe_issue(0)
    for k in range(8):
        g.I(f"s_add_u32 s{S_T0}, s{S_SPLIT}, {k}")
        g.I(f"s_and_b32 s{S_T0}, s{S_T0}, 7")
        g.I(f"s_lshl_b32 s{S_T0}, s{S_T0}, 19")
        g.I(f"s_add_u32 s{S_T0}, s{S_T0}, s{S_RB}")
        g.I(f"s_add_u32 s{S_T1}, s{S_T0}, 8192")
        if not cfg.nowq:
            g.vm(f"buffer_load_dwordx4 {vr(V_W+8*k,4)}, v{V_A+1}, {sr(R_WQ,4)}, s{S_T0} offen{WQNT}", f"wq{k//2}")
            g.vm(f"buffer_load_dwordx4 {vr(V_W+8*k+4,4)}, v{V_A+1}, {sr(R_WQ,4)}, s{S_T1} offen{WQNT}", f"wq{k//2}")
        if k == 0:
            maybe_issue(1)
    maybe_issue(2)
    srd(g, R_GT, S_GT, S_GT + 1, 512 * 3584)
    srd(g, R_UP, S_UP, S_UP + 1, 512 * 3584)
    srd(g, R_DN, S_DN, S_DN + 1, 1792 * 1024)
    srd(g, R_WS, S_WS, S_WS + 1, WS_BYTES)
    srd(g, R_OUT, S_OUT, S_OUT + 1, 1024)
    srd(g, R_DBG, S_DBG, S_DBG + 1, 256)
    g.I(f"s_lshl_b32 s{S_T0}, s{S_H}, 17")
    srd_off(g, R_WO, S_WO, S_WO + 1, S_T0, 0x20000)
    XNP = V_ACC
    g.I(f"s_lshl_b32 s{S_T0}, s{S_WAVE}, 4")
    g.I(f"v_lshlrev_b32 v{V_A}, 2, v{V_G}")
    g.I(f"v_add_u32 v{V_A}, s{S_T0}, v{V_A}")
    for k in range(8):
        g.I(f"s_add_u32 s{S_T0}, s{S_SPLIT}, {k}")
        g.I(f"s_and_b32 s{S_T0}, s{S_T0}, 7")
        g.I(f"s_lshl_b32 s{S_T0}, s{S_T0}, 7")
        g.I(f"v_add_u32 v{XNP+k}, s{S_T0}, v{V_A}")
    g.I(f"v_lshlrev_b32 v{V_A+2}, 1, v{V_TID}")
    g.I("s_waitcnt lgkmcnt(0)")
    g.I("s_barrier")
    stamp(g, cfg, 8)
    for k in range(8):
        g.I(f"ds_read_b32 v{XNP+k}, v{XNP+k} offset:{L_XN}")
    g.I(f"ds_read_u16 v{V_XROW}, v{V_A+2} offset:{L_XN}")
    maybe_issue(3)
    ta, tb, tc, td = 26, 27, 28, 29
    g.I(f"v_and_b32 v{ta}, 1, v{V_G}")
    g.I(f"v_lshlrev_b32 v{ta}, 3, v{ta}")
    g.I(f"v_lshrrev_b32 v{tb}, 1, v{V_G}")
    g.I(f"v_lshl_add_u32 v{ta}, v{tb}, 4, v{ta}")
    g.I(f"v_lshl_add_u32 v{V_QOFF}, v{V_Cc}, 5, v{ta}")
    g.I("s_waitcnt lgkmcnt(0)")
    g.I(f"v_lshlrev_b32 v{V_XROW}, 16, v{V_XROW}")
    QA = V_PP
    for k in range(8):
        if k % 2 == 0:
            g.wait_tag(f"wq{k//2}")
        for j in range(4):
            A, B = V_W + 8 * k + j, V_W + 8 * k + 4 + j
            lo, hi = (ta, tb) if j % 2 == 0 else (tc, td)
            g.I(f"v_perm_b32 v{lo}, v{B}, v{A}, s{S_PLO}")
            g.I(f"v_perm_b32 v{hi}, v{B}, v{A}, s{S_PHI}")
            s2a = "0" if k == 0 else f"v{QA+2*j}"
            s2b = "0" if k == 0 else f"v{QA+2*j+1}"
            g.I(f"v_dot2_f32_bf16 v{QA+2*j}, v{lo}, v{XNP+k}, {s2a}")
            g.I(f"v_dot2_f32_bf16 v{QA+2*j+1}, v{hi}, v{XNP+k}, {s2b}")
        if k == 3:
            maybe_issue(4)
    g.nop(1)
    reduce_scatter_rows(g, [QA + j for j in range(8)])
    g.I(f"s_lshl_b32 s{S_T0}, s{S_WAVE}, 9")
    g.I(f"v_add_u32 v{ta}, s{S_T0}, v{V_QOFF}")
    g.I(f"ds_write_b64 v{ta}, {vr(QA,2)} offset:{L_QP}")
    g.I(f"v_lshlrev_b32 v{tb}, 5, v{V_Cc}")
    maybe_issue(5)
    g.I("s_waitcnt lgkmcnt(0)")
    g.I("s_barrier")
    stamp(g, cfg, 7)
    for w in range(8):
        g.I(f"ds_read_b128 {vr(V_W+8*w,4)}, v{tb} offset:{L_QP+512*w}")
        g.I(f"ds_read_b128 {vr(V_W+8*w+4,4)}, v{tb} offset:{L_QP+512*w+16}")
    g.I(f"v_mov_b32 v{V_M}, 0xff800000")
    g.I(f"v_mov_b32 v{V_L}, 0")
    for j in range(8):
        g.I(f"v_mov_b32 v{V_ACC+j}, 0")
    g.I(f"s_lshl_b32 s{S_T0}, s{S_WAVE}, 11")
    g.I(f"v_add_u32 v{V_WOA}, s{S_T0}, v{V_WOA}")
    for step in (1, 2, 4):
        g.I(f"s_waitcnt lgkmcnt({ {1: 0, 2: 0, 4: 0}[step] })") if step == 1 else None
        for w in range(0, 8, 2 * step):
            for j in range(8):
                g.I(f"v_add_f32 v{V_W+8*w+j}, v{V_W+8*w+j}, v{V_W+8*(w+step)+j}")
    for j in range(4):
        g.I(f"v_cvt_pk_bf16_f32 v{V_Q+j}, v{V_W+2*j}, v{V_W+2*j+1}")
    maybe_issue(6)
    assert nissued == D
    stamp(g, cfg, 1)

    def compute_block(slot):
        if cfg.nocompute:
            return
        kb = V_RING + slot * 32
        vb = kb + 16
        S = V_S
        for j in range(4):
            for i in range(4):
                src2 = "0" if j == 0 else f"v{S+i}"
                g.I(f"v_dot2_f32_bf16 v{S+i}, v{kb+4*i+j}, v{V_Q+j}, {src2}")
        t = V_T
        row_allreduce(g, "add_f32", [S + i for i in range(4)])
        g.I(f"v_cvt_pk_bf16_f32 v{t}, v{S}, v{S+1}")
        g.I(f"v_cvt_pk_bf16_f32 v{t+1}, v{S+2}, v{S+3}")
        g.I(f"v_lshlrev_b32 v{S}, 16, v{t}")
        g.I(f"v_and_b32 v{S+1}, s{S_MASK}, v{t}")
        g.I(f"v_lshlrev_b32 v{S+2}, 16, v{t+1}")
        g.I(f"v_and_b32 v{S+3}, s{S_MASK}, v{t+1}")
        for i in range(4):
            g.I(f"v_mul_f32 v{S+i}, s{S_SCALE}, v{S+i}")
        g.I(f"v_cvt_pk_bf16_f32 v{t}, v{S}, v{S+1}")
        g.I(f"v_cvt_pk_bf16_f32 v{t+1}, v{S+2}, v{S+3}")
        g.I(f"v_lshlrev_b32 v{S}, 16, v{t}")
        g.I(f"v_and_b32 v{S+1}, s{S_MASK}, v{t}")
        g.I(f"v_lshlrev_b32 v{S+2}, 16, v{t+1}")
        g.I(f"v_and_b32 v{S+3}, s{S_MASK}, v{t+1}")
        mn, al, mb = t + 2, t + 4, t + 3
        g.I(f"v_max3_f32 v{mn}, v{V_M}, v{S}, v{S+1}")
        g.I(f"v_max3_f32 v{mn}, v{mn}, v{S+2}, v{S+3}")
        g.I(f"v_sub_f32 v{al}, v{V_M}, v{mn}")
        g.I(f"v_mul_f32 v{mb}, s{S_LOG2E}, v{mn}")
        g.I(f"v_mul_f32 v{al}, s{S_LOG2E}, v{al}")
        for i in range(4):
            g.I(f"v_fma_f32 v{V_PP+i}, v{S+i}, s{S_LOG2E}, -v{mb}")
        g.I(f"v_exp_f32 v{al}, v{al}")
        for i in range(4):
            g.I(f"v_exp_f32 v{V_PP+i}, v{V_PP+i}")
        g.I(f"v_mov_b32 v{V_M}, v{mn}")
        for pr in range(2):
            for j in range(4):
                A, B = vb + 8 * pr + j, vb + 8 * pr + 4 + j
                g.I(f"v_perm_b32 v{kb+8*pr+2*j}, v{B}, v{A}, s{S_PLO}")
                g.I(f"v_perm_b32 v{kb+8*pr+2*j+1}, v{B}, v{A}, s{S_PHI}")
        g.I(f"v_mul_f32 v{V_L}, v{V_L}, v{al}")
        for j in range(4):
            g.I(f"v_pk_mul_f32 {vr(V_ACC+2*j,2)}, {vr(V_ACC+2*j,2)}, {vr(al,2)} op_sel_hi:[1,0]")
        g.I(f"v_cvt_pk_bf16_f32 v{V_PP+4}, v{V_PP}, v{V_PP+1}")
        g.I(f"v_cvt_pk_bf16_f32 v{V_PP+5}, v{V_PP+2}, v{V_PP+3}")
        g.I(f"v_add_f32 v{t}, v{V_PP}, v{V_PP+1}")
        g.I(f"v_add_f32 v{t+1}, v{V_PP+2}, v{V_PP+3}")
        g.I(f"v_add_f32 v{t}, v{t}, v{t+1}")
        g.I(f"v_add_f32 v{V_L}, v{V_L}, v{t}")
        for pr in range(2):
            for jj in range(8):
                g.I(f"v_dot2_f32_bf16 v{V_ACC+jj}, v{kb+8*pr+jj}, v{V_PP+4+pr}, v{V_ACC+jj}")

    def glu_part1():
        g.wait_tag("gu")
        for half, src in ((0, V_GT), (1, V_UP)):
            R = TMP8
            for j in range(4):
                g.I(f"v_lshlrev_b32 v{R[2*j]}, 16, v{src+j}")
                g.I(f"v_and_b32 v{R[2*j+1]}, s{S_MASK}, v{src+j}")
            for j in range(8):
                g.I(f"v_mul_f32 v{R[j]}, v{R[j]}, v{V_XROW}")
            reduce_scatter_rows(g, R)
            g.nop(2)
            row_allreduce(g, "add_f32", [R[0], R[1]])
            g.I(f"v_lshlrev_b32 v{R[2]}, 6, v{V_G}")
            g.I(f"s_lshl_b32 s{S_T0}, s{S_WAVE}, 2")
            g.I(f"v_add_u32 v{R[2]}, s{S_T0}, v{R[2]}")
            g.I(f"v_cmp_eq_u32 vcc, 0, v{V_Cc}")
            g.I(f"s_and_saveexec_b64 {sr(S_EX,2)}, vcc")
            g.I(f"ds_write_b32 v{R[2]}, v{R[0]} offset:{L_GU+256*half}")
            g.I(f"ds_write_b32 v{R[2]}, v{R[1]} offset:{L_GU+256*half+32}")
            g.I(f"s_mov_b64 exec, {sr(S_EX,2)}")
        g.I("s_waitcnt lgkmcnt(0)")

    def glu_part2():
        ta, tb = 62, 63
        R = TMP8
        g.I(f"v_lshrrev_b32 v{ta}, 3, v{V_LANE}")
        g.I(f"v_lshlrev_b32 v{ta}, 5, v{ta}")
        g.I(f"ds_read_b128 {vr(V_GT,4)}, v{ta} offset:{L_GU}")
        g.I(f"ds_read_b128 {vr(V_GT+4,4)}, v{ta} offset:{L_GU+16}")
        g.I(f"ds_read_b128 {vr(26,4)}, v{ta} offset:{L_GU+256}")
        g.I(f"ds_read_b64 {vr(30,2)}, v{ta} offset:{L_GU+272}")
        g.I(f"ds_read_b64 {vr(58,2)}, v{ta} offset:{L_GU+280}")
        g.I("s_waitcnt lgkmcnt(0)")
        for j in range(1, 8):
            g.I(f"v_add_f32 v{V_GT}, v{V_GT}, v{V_GT+j}")
            g.I(f"v_add_f32 v{R[0]}, v{R[0]}, v{R[j]}")
        ga, ua = V_GT, R[0]
        bf16_round2(g, ga, ua, tb)
        e = V_GT + 1
        g.I(f"v_mul_f32 v{e}, s{S_LOG2E}, v{ga}")
        g.I(f"v_sub_f32 v{e}, 0, v{e}")
        g.I(f"v_exp_f32 v{e}, v{e}")
        g.nop(1)
        g.I(f"v_add_f32 v{e}, 1.0, v{e}")
        g.I(f"v_rcp_f32 v{e+1}, v{e}")
        g.nop(1)
        g.I(f"v_fma_f32 v{e+2}, -v{e}, v{e+1}, 1.0")
        g.I(f"v_fma_f32 v{e+1}, v{e+2}, v{e+1}, v{e+1}")
        bf16_round1(g, e + 1, e + 1, tb)
        g.I(f"v_mul_f32 v{e+1}, v{e+1}, v{ua}")
        bf16_round1(g, e + 1, e + 1, tb)
        hh = e + 1
        g.wait_tag("dn")
        for j in range(4):
            g.I(f"v_lshlrev_b32 v{R[2*j]}, 16, v{V_DN+j}")
            g.I(f"v_and_b32 v{R[2*j+1]}, s{S_MASK}, v{V_DN+j}")
        for j in range(8):
            g.I(f"v_mul_f32 v{R[j]}, v{R[j]}, v{hh}")
        g.nop(2)
        for j in range(8):
            g.I(f"v_add_f32_dpp v{R[j]}, v{R[j]}, v{R[j]} row_ror:8 row_mask:0xf bank_mask:0xf")
        reduce_scatter_rows(g, R)
        g_addr(ta, tb)
        g.I(f"s_cmp_eq_u32 s{S_GVALID}, 0")
        g.I("s_cbranch_scc1 L_skip_glu")
        g.I(f"s_and_saveexec_b64 {sr(S_EX,2)}, vcc")
        g.I(f"buffer_store_dwordx2 {vr(R[0],2)}, v{tb}, {sr(R_WS,4)}, s{S_T0} offen sc0 sc1")
        g.I(f"s_mov_b64 exec, {sr(S_EX,2)}")
        g.lab("L_skip_glu")

    def glu_loads():
        if cfg.noglu:
            return
        ta = 62
        g.I(f"s_movk_i32 s{S_T1}, 3584")
        g.I(f"v_mul_lo_u32 v{ta}, v{V_TID}, s{S_T1}")
        g.I(f"s_lshl_b32 s{S_T1}, s{S_GJ}, 4")
        g.vm(f"buffer_load_dwordx4 {vr(V_GT,4)}, v{ta}, {sr(R_GT,4)}, s{S_T1} offen{GNT}", "gu")
        g.vm(f"buffer_load_dwordx4 {vr(V_UP,4)}, v{ta}, {sr(R_UP,4)}, s{S_T1} offen{GNT}", "gu")
        g.I(f"v_lshrrev_b32 v63, 3, v{V_LANE}")
        g.I(f"v_lshlrev_b32 v63, 10, v63")
        g.I(f"v_and_b32 v59, 7, v{V_LANE}")
        g.I(f"v_lshl_add_u32 v63, v59, 4, v63")
        g.I(f"s_lshl_b32 s{S_T1}, s{S_GJ}, 13")
        g.I(f"s_lshl_b32 s{S_T0}, s{S_WAVE}, 7")
        g.I(f"s_add_u32 s{S_T1}, s{S_T1}, s{S_T0}")
        g.vm(f"buffer_load_dwordx4 {vr(V_DN,4)}, v63, {sr(R_DN,4)}, s{S_T1} offen{GNT}", "dn")

    def wo_perm():
        for k in range(8):
            for j in range(4):
                A, B = V_W + 8 * k + j, V_W + 8 * k + 4 + j
                tt = V_T + (j % 2)
                g.I(f"v_perm_b32 v{tt}, v{B}, v{A}, s{S_PLO}")
                g.I(f"v_perm_b32 v{B}, v{B}, v{A}, s{S_PHI}")
                g.I(f"v_mov_b32 v{A}, v{tt}")

    def wo_loads(k):
        if cfg.nowo:
            return
        g.I(f"s_add_u32 s{S_T2}, s{S_SPLIT}, {k}")
        g.I(f"s_and_b32 s{S_T2}, s{S_T2}, 7")
        g.I(f"s_lshl_b32 s{S_T2}, s{S_T2}, 14")
        g.vm(f"buffer_load_dwordx4 {vr(V_W+8*k,4)}, v{V_WOA}, {sr(R_WO,4)}, s{S_T2} offen{WONT}", "wo")
        g.vm(f"buffer_load_dwordx4 {vr(V_W+8*k+4,4)}, v{V_WOA}, {sr(R_WO,4)}, s{S_T2} offen offset:1024{WONT}", "wo")

    def y_addr(dst, tmp):
        g.I(f"v_lshrrev_b32 v{dst}, 1, v{V_LANE}")
        g.I(f"v_lshlrev_b32 v{dst}, 14, v{dst}")
        g.I(f"v_and_b32 v{tmp}, 1, v{V_LANE}")
        g.I(f"v_lshl_add_u32 v{dst}, v{tmp}, 5, v{dst}")

    def g_addr(ta, tb):
        g.I(f"v_and_b32 v{ta}, 7, v{V_LANE}")
        g.I(f"v_lshrrev_b32 v{tb}, 1, v{ta}")
        g.I(f"v_lshlrev_b32 v{tb}, 14, v{tb}")
        g.I(f"v_and_b32 v{ta}, 1, v{ta}")
        g.I(f"v_lshl_add_u32 v{tb}, v{ta}, 5, v{tb}")
        g.I(f"v_and_b32 v{ta}, 1, v{V_G}")
        g.I(f"v_lshl_add_u32 v{tb}, v{ta}, 3, v{tb}")
        g.I(f"v_lshrrev_b32 v{ta}, 1, v{V_G}")
        g.I(f"v_lshl_add_u32 v{tb}, v{ta}, 4, v{tb}")
        g.I(f"s_lshl_b32 s{S_T0}, s{S_WAVE}, 16")
        g.I(f"s_lshl_b32 s{S_T1}, s{S_GJ}, 6")
        g.I(f"s_add_u32 s{S_T0}, s{S_T0}, s{S_T1}")
        g.I(f"s_add_u32 s{S_T0}, s{S_T0}, {WS_G}")
        g.I(f"v_and_b32 v{ta}, 8, v{V_LANE}")
        g.I(f"v_cmp_eq_u32 vcc, 0, v{ta}")

    def clears():
        SN = 28
        for j in range(4):
            g.I(f"v_mov_b32 v{SN+j}, -1")
        g_addr(62, 63)
        g.I(f"s_cmp_eq_u32 s{S_GVALID}, 0")
        g.I("s_cbranch_scc1 L_skip_gclr")
        g.I(f"s_and_saveexec_b64 {sr(S_EX,2)}, vcc")
        g.I(f"buffer_store_dwordx2 {vr(SN,2)}, v63, {sr(R_WS,4)}, s{S_T0} offen sc0 sc1")
        g.I(f"s_mov_b64 exec, {sr(S_EX,2)}")
        g.lab("L_skip_gclr")
        g.I(f"s_cmp_lg_u32 s{S_WAVE}, 0")
        g.I("s_cbranch_scc1 L_skip_yclr")
        y_addr(62, 63)
        g.I(f"s_lshl_b32 s{S_T0}, s{S_P}, 6")
        g.I(f"buffer_store_dwordx4 {vr(SN,4)}, v62, {sr(R_WS,4)}, s{S_T0} offen sc0 sc1")
        g.I(f"buffer_store_dwordx4 {vr(SN,4)}, v62, {sr(R_WS,4)}, s{S_T0} offen offset:16 sc0 sc1")
        g.I(f"s_lshl_b32 s{S_T1}, s{S_P}, 3")
        g.I(f"s_add_u32 s{S_T1}, s{S_T1}, {WS_ML}")
        g.I(f"v_mov_b32 v63, 0")
        g.I("s_mov_b64 exec, 1")
        g.I(f"buffer_store_dwordx2 {vr(SN,2)}, v63, {sr(R_WS,4)}, s{S_T1} offen sc0 sc1")
        g.I("s_mov_b64 exec, -1")
        g.lab("L_skip_yclr")

    for j in range(4):
        g.wait_tag(f"b{j}")
        compute_block(j)
        if cfg.loopbar:
            g.I("s_barrier")
        if j == 0:
            clears()
        issue_block(j, f"b{j}")
        for k in cfg.wo_sched.get(j, []):
            wo_loads(k)
        if j == cfg.glu_at:
            glu_loads()
    for j in range(4):
        g.wait_tag(f"b{j}")
        compute_block(j)
        if j == 2:
            glu_part1()
        if cfg.loopbar:
            g.I("s_barrier")
        if j == 0:
            g.I(f"s_cmp_lg_u32 s{S_WAVE}, 0")
            g.I("s_cbranch_scc1 L_skip_sig")
            g.I(f"v_mov_b32 v62, 1")
            g.I(f"v_mov_b32 v63, 0")
            g.I("s_mov_b64 exec, 1")
            g.I(f"buffer_atomic_add v62, v63, {sr(R_DBG,4)}, s{S_HOFF} offen")
            g.I("s_mov_b64 exec, -1")
            g.lab("L_skip_sig")
        issue_block(j, f"b{j}")
        for k in cfg.wo_sched.get(4 + j, []):
            wo_loads(k)
        if j == 3:
            glu_part2()
    for j in range(4):
        g.wait_tag(f"b{j}")
        compute_block(j)
        if cfg.loopbar:
            g.I("s_barrier")
        issue_block(j, f"b{j}")
    g.wait_tag("wo")
    wo_perm()
    g.I(f"s_mov_b32 s{S_CNT}, 5")
    g.lab("L_loop")
    if cfg.stamp:
        g.I(f"s_cmp_lg_u32 s{S_WAVE}, 0")
        g.I(f"s_cbranch_scc1 L_stl")
        g.I(f"s_memrealtime s[{S_TS}:{S_TS+1}]")
        g.I("s_waitcnt lgkmcnt(0)")
        g.I(f"v_mov_b32 v5, s{S_TS}")
        g.I(f"s_lshl_b32 s{S_TS}, s2, 6")
        g.I(f"s_lshl_b32 s{S_TS+1}, s{S_CNT}, 2")
        g.I(f"s_sub_u32 s{S_TS}, s{S_TS}, s{S_TS+1}")
        g.I(f"s_add_u32 s{S_TS}, s{S_TS}, {2*1024*1024 + 15*4}")
        g.I(f"v_mov_b32 v6, s{S_TS}")
        g.I(f"global_store_dword v6, v5, s[{S_WS}:{S_WS+1}]")
        g.lab("L_stl")
    for b in range(D):
        g.I(f"s_waitcnt vmcnt({8*(D-1)})")
        compute_block(b)
        if cfg.loopbar and (b % cfg.loopbar) == 0:
            g.I("s_barrier")
        issue_block(b, f"b{b}")
    g.I(f"s_sub_u32 s{S_CNT}, s{S_CNT}, 1")
    g.I(f"s_cmp_lg_u32 s{S_CNT}, 1")
    g.I("s_cbranch_scc1 L_nochk")
    g.I(f"v_lshlrev_b32 v62, 2, v{V_LANE}")
    g.I(f"v_and_b32 v62, 0x7f, v62")
    g.I(f"buffer_load_dword v63, v62, {sr(R_DBG,4)}, 0 offen sc0 sc1")
    g.lab("L_nochk")
    g.I(f"s_cmp_lg_u32 s{S_CNT}, 0")
    g.I("s_cbranch_scc1 L_loop")
    g.wait_all()
    stamp(g, cfg, 2)
    if cfg.notail:
        g.I("s_branch L_end")
    t = V_T
    mw = t
    g.I(f"v_mov_b32 v{mw}, v{V_M}")
    cross_row_allreduce(g, "max_f32", mw, t + 1)
    g.I(f"v_sub_f32 v{t+2}, v{V_M}, v{mw}")
    g.I(f"v_mul_f32 v{t+2}, s{S_LOG2E}, v{t+2}")
    g.I(f"v_exp_f32 v{t+2}, v{t+2}")
    g.nop(1)
    g.I(f"v_mul_f32 v{V_L}, v{V_L}, v{t+2}")
    for j in range(8):
        g.I(f"v_mul_f32 v{V_ACC+j}, v{V_ACC+j}, v{t+2}")
    cross_row_allreduce(g, "add_f32", V_L, t + 1)
    reduce_scatter_rows(g, [V_ACC + j for j in range(8)])
    g.I(f"s_lshl_b32 s{S_T0}, s{S_WAVE}, 9")
    g.I(f"v_add_u32 v{t+3}, s{S_T0}, v{V_QOFF}")
    g.I(f"ds_write_b64 v{t+3}, {vr(V_ACC,2)} offset:{L_OP}")
    g.I(f"v_mov_b32 v{t+1}, v{V_L}")
    g.I(f"s_lshl_b32 s{S_T0}, s{S_WAVE}, 3")
    g.I(f"v_mov_b32 v{t+3}, s{S_T0}")
    g.I(f"ds_write_b64 v{t+3}, {vr(t,2)} offset:{L_ML}")
    g.I(f"v_mov_b32 v{t+3}, 0")
    g.I(f"v_add_u32 v{t+4}, s{S_SPLIT}, v{V_LANE}")
    g.I(f"v_and_b32 v{t+4}, 7, v{t+4}")
    g.I(f"v_lshlrev_b32 v{t+4}, 6, v{t+4}")
    g.I(f"s_lshl_b32 s{S_T0}, s{S_WAVE}, 3")
    g.I(f"v_add_u32 v{t+4}, s{S_T0}, v{t+4}")
    g.I("s_waitcnt lgkmcnt(0)")
    g.I("s_barrier")
    ML = 24
    for k in range(4):
        g.I(f"ds_read_b128 {vr(ML+4*k,4)}, v{t+3} offset:{L_ML+16*k}")
    OPR = V_RING
    for w in range(8):
        g.I(f"ds_read_b64 {vr(OPR+2*w,2)}, v{t+4} offset:{L_OP+512*w}")
    g.I("s_waitcnt lgkmcnt(8)")
    M = t
    g.I(f"v_max3_f32 v{M}, v{ML}, v{ML+2}, v{ML+4}")
    g.I(f"v_max3_f32 v{M}, v{M}, v{ML+6}, v{ML+8}")
    g.I(f"v_max3_f32 v{M}, v{M}, v{ML+10}, v{ML+12}")
    g.I(f"v_max_f32 v{M}, v{M}, v{ML+14}")
    for w in range(8):
        g.I(f"v_sub_f32 v{ML+2*w}, v{ML+2*w}, v{M}")
    for w in range(8):
        g.I(f"v_mul_f32 v{ML+2*w}, s{S_LOG2E}, v{ML+2*w}")
    for w in range(8):
        g.I(f"v_exp_f32 v{ML+2*w}, v{ML+2*w}")
    oa, ob = t + 5, t + 6
    g.I("s_waitcnt lgkmcnt(0)")
    g.I(f"v_mul_f32 v{oa}, v{ML}, v{OPR}")
    g.I(f"v_mul_f32 v{ob}, v{ML}, v{OPR+1}")
    for w in range(1, 8):
        g.I(f"v_fmac_f32 v{oa}, v{ML+2*w}, v{OPR+2*w}")
        g.I(f"v_fmac_f32 v{ob}, v{ML+2*w}, v{OPR+2*w+1}")
    g.I(f"v_cvt_pk_bf16_f32 v{oa}, v{oa}, v{ob}")
    so = list(range(4, 12))
    Lr = t + 1
    g.I(f"v_mul_f32 v{Lr}, v{ML}, v{ML+1}")
    for k in range(8):
        g.I(f"v_readlane_b32 s{so[k]}, v{oa}, {k}")
    for w in range(1, 8):
        g.I(f"v_fmac_f32 v{Lr}, v{ML+2*w}, v{ML+2*w+1}")
    YA = V_ACC
    for k in range(8):
        for j in range(4):
            A, B = V_W + 8 * k + j, V_W + 8 * k + 4 + j
            c0 = "0" if k == 0 else f"v{YA+2*j}"
            c1 = "0" if k == 0 else f"v{YA+2*j+1}"
            g.I(f"v_dot2_f32_bf16 v{YA+2*j}, v{A}, s{so[k]}, {c0}")
            g.I(f"v_dot2_f32_bf16 v{YA+2*j+1}, v{B}, s{so[k]}, {c1}")
    g.I(f"v_lshlrev_b32 v{t+3}, 5, v{V_LANE}")
    g.I(f"s_lshl_b32 s{S_T0}, s{S_WAVE}, 11")
    g.I(f"v_add_u32 v{t+4}, s{S_T0}, v{t+3}")
    g.nop(1)
    g.I(f"ds_write_b128 v{t+4}, {vr(YA,4)} offset:{L_YP}")
    g.I(f"ds_write_b128 v{t+4}, {vr(YA+4,4)} offset:{L_YP+16}")
    g.I("s_waitcnt lgkmcnt(0)")
    g.I("s_barrier")
    g.I(f"s_cmp_lg_u32 s{S_WAVE}, 0")
    g.I("s_cbranch_scc1 L_after_pub")
    for w in range(8):
        g.I(f"ds_read_b128 {vr(V_RING+8*w,4)}, v{t+3} offset:{L_YP+2048*w}")
        g.I(f"ds_read_b128 {vr(V_RING+8*w+4,4)}, v{t+3} offset:{L_YP+2048*w+16}")
    y_addr(t + 3, t + 4)
    g.I(f"s_lshl_b32 s{S_T0}, s{S_P}, 6")
    g.I(f"s_lshl_b32 s{S_T1}, s{S_P}, 3")
    g.I(f"s_add_u32 s{S_T1}, s{S_T1}, {WS_ML}")
    g.I(f"v_mov_b32 v{t+4}, 0")
    g.I(f"v_cmp_eq_u32 vcc, 0, v{V_LANE}")
    g.I("s_waitcnt lgkmcnt(0)")
    for step in (1, 2, 4):
        for w in range(0, 8, 2 * step):
            for j in range(8):
                g.I(f"v_add_f32 v{V_RING+8*w+j}, v{V_RING+8*w+j}, v{V_RING+8*(w+step)+j}")
    g.I(f"buffer_store_dwordx4 {vr(V_RING,4)}, v{t+3}, {sr(R_WS,4)}, s{S_T0} offen sc0 sc1")
    g.I(f"buffer_store_dwordx4 {vr(V_RING+4,4)}, v{t+3}, {sr(R_WS,4)}, s{S_T0} offen offset:16 sc0 sc1")
    g.I(f"s_and_saveexec_b64 {sr(S_EX,2)}, vcc")
    g.I(f"buffer_store_dwordx2 {vr(t,2)}, v{t+4}, {sr(R_WS,4)}, s{S_T1} offen sc0 sc1")
    g.I(f"s_mov_b64 exec, {sr(S_EX,2)}")
    g.lab("L_after_pub")
    stamp(g, cfg, 3)

    def finisher(fid_sreg):
        t = V_T
        a0 = t
        g.I(f"v_lshlrev_b32 v62, 2, v{V_LANE}")
        g.I(f"v_and_b32 v62, 0x7f, v62")
        g.I(f"s_mov_b32 s{S_CNT}, 0x40000")
        g.lab("L_cpoll")
        g.I(f"v_cmp_gt_u32 vcc, 8, v63")
        g.I("s_cbranch_vccz L_cdone")
        g.I(f"s_sub_u32 s{S_CNT}, s{S_CNT}, 1")
        g.I(f"s_cmp_eq_u32 s{S_CNT}, 0")
        g.I("s_cbranch_scc1 L_cdone")
        g.I(f"buffer_load_dword v63, v62, {sr(R_DBG,4)}, 0 offen sc0 sc1")
        g.I("s_waitcnt vmcnt(0)")
        g.I("s_branch L_cpoll")
        g.lab("L_cdone")
        stamp(g, cfg, 4)
        g.I(f"v_lshlrev_b32 v{a0}, 4, v{V_TID}")
        g.I(f"s_lshl_b32 s{S_T0}, s{fid_sreg}, 14")
        g.I(f"s_add_u32 s{S_T1}, s{S_T0}, 8192")
        g.I(f"s_add_u32 s{S_T2}, s{S_T0}, {WS_G}")
        g.I(f"s_add_u32 s{S_OFF}, s{S_T1}, {WS_G}")
        g.I(f"s_mov_b32 s{S_GJ}, {WS_ML}")
        Y1, Y2, G1, G2 = V_RING, V_RING + 4, V_RING + 8, V_RING + 12
        MLv = V_RING + 16
        g.I(f"v_and_b32 v{a0+1}, 15, v{V_LANE}")
        g.I(f"v_bfe_u32 v{a0+2}, v{V_LANE}, 4, 1")
        g.I(f"v_lshl_add_u32 v{a0+1}, v{a0+2}, 7, v{a0+1}")
        g.I(f"s_lshl_b32 s{S_RB}, s{S_WAVE}, 4")
        g.I(f"v_add_u32 v{a0+1}, s{S_RB}, v{a0+1}")
        g.I(f"v_lshlrev_b32 v{a0+1}, 3, v{a0+1}")
        g.I(f"v_and_b32 v{a0+5}, 15, v{V_TID}")
        g.I(f"v_lshlrev_b32 v{a0+5}, 1, v{a0+5}")
        g.I(f"s_lshl_b32 s{S_RB}, s{fid_sreg}, 5")
        g.I(f"buffer_load_ushort v{a0+6}, v{a0+5}, {sr(R_X,4)}, s{S_RB} offen")
        g.I(f"v_cmp_gt_u32 vcc, {96*4}, v{V_TID}")
        g.I(f"s_mov_b64 s[92:93], vcc")
        for j in range(4):
            g.I(f"v_mov_b32 v{G2+j}, 0")
        g.I(f"s_mov_b32 s{S_CNT}, 0x40000")
        g.lab("L_dpoll")
        g.I(f"buffer_load_dwordx2 {vr(MLv,2)}, v{a0+1}, {sr(R_WS,4)}, s{S_GJ} offen sc0 sc1")
        g.I(f"buffer_load_dwordx4 {vr(Y1,4)}, v{a0}, {sr(R_WS,4)}, s{S_T0} offen sc0 sc1")
        g.I(f"buffer_load_dwordx4 {vr(Y2,4)}, v{a0}, {sr(R_WS,4)}, s{S_T1} offen sc0 sc1")
        g.I(f"buffer_load_dwordx4 {vr(G1,4)}, v{a0}, {sr(R_WS,4)}, s{S_T2} offen sc0 sc1")
        g.I(f"s_and_b64 s[94:95], s[92:93], exec")
        g.I(f"s_cbranch_scc0 L_nog2")
        g.I(f"s_mov_b64 exec, s[92:93]")
        g.I(f"buffer_load_dwordx4 {vr(G2,4)}, v{a0}, {sr(R_WS,4)}, s{S_OFF} offen sc0 sc1")
        g.I(f"s_mov_b64 exec, -1")
        g.lab("L_nog2")
        g.I("s_waitcnt vmcnt(0)")
        mx = a0 + 8
        g.I(f"v_max3_u32 v{mx}, v{Y1}, v{Y1+1}, v{Y1+2}")
        g.I(f"v_max3_u32 v{mx+1}, v{Y1+3}, v{Y2}, v{Y2+1}")
        g.I(f"v_max3_u32 v{mx}, v{mx}, v{Y2+2}, v{Y2+3}")
        g.I(f"v_max3_u32 v{mx+1}, v{mx+1}, v{G1}, v{G1+1}")
        g.I(f"v_max3_u32 v{mx}, v{mx}, v{G1+2}, v{G1+3}")
        g.I(f"v_max3_u32 v{mx+1}, v{mx+1}, v{G2}, v{G2+1}")
        g.I(f"v_max3_u32 v{mx}, v{mx}, v{G2+2}, v{G2+3}")
        g.I(f"v_max3_u32 v{mx+1}, v{mx+1}, v{MLv}, v{MLv+1}")
        g.I(f"v_max_u32 v{mx}, v{mx}, v{mx+1}")
        g.I(f"v_cmp_eq_u32 vcc, -1, v{mx}")
        g.I("s_cbranch_vccz L_ddone")
        g.I(f"s_sub_u32 s{S_CNT}, s{S_CNT}, 1")
        g.I(f"s_cmp_lg_u32 s{S_CNT}, 0")
        g.I("s_cbranch_scc1 L_dpoll")
        g.lab("L_ddone")
        stamp(g, cfg, 9)
        M, W, Ls = a0 + 8, a0 + 9, a0 + 10
        g.I(f"v_mov_b32 v{M}, v{MLv}")
        g.nop(1)
        for dpp in ("quad_perm:[1,0,3,2]", "quad_perm:[2,3,0,1]", "row_half_mirror"):
            g.I(f"v_max_f32_dpp v{M}, v{M}, v{M} {dpp} row_mask:0xf bank_mask:0xf")
            g.nop(2)
        g.I(f"v_sub_f32 v{W}, v{MLv}, v{M}")
        g.I(f"v_mul_f32 v{W}, s{S_LOG2E}, v{W}")
        g.I(f"v_exp_f32 v{W}, v{W}")
        g.nop(1)
        g.I(f"v_mul_f32 v{Ls}, v{W}, v{MLv+1}")
        g.nop(2)
        for dpp in ("quad_perm:[1,0,3,2]", "quad_perm:[2,3,0,1]", "row_half_mirror"):
            g.I(f"v_add_f32_dpp v{Ls}, v{Ls}, v{Ls} {dpp} row_mask:0xf bank_mask:0xf")
            g.nop(2)
        c = a0 + 11
        g.I(f"v_rcp_f32 v{c}, v{Ls}")
        g.nop(1)
        g.I(f"v_fma_f32 v{M}, -v{Ls}, v{c}, 1.0")
        g.I(f"v_fma_f32 v{c}, v{M}, v{c}, v{c}")
        g.I(f"v_mul_f32 v{c}, v{c}, v{W}")
        g.I(f"v_and_b32 v{a0+1}, 0x3c, v{V_LANE}")
        g.I(f"v_add_u32 v{a0+2}, 64, v{a0+1}")
        c1, c2 = a0 + 8, a0 + 9
        g.I(f"ds_bpermute_b32 v{c1}, v{a0+1}, v{c}")
        g.I(f"ds_bpermute_b32 v{c2}, v{a0+2}, v{c}")
        for j in range(4):
            g.I(f"v_add_f32 v{G1+j}, v{G1+j}, v{G2+j}")
        g.I("s_waitcnt lgkmcnt(0)")
        for j in range(4):
            g.I(f"v_mul_f32 v{Y1+j}, v{c1}, v{Y1+j}")
        for j in range(4):
            g.I(f"v_fmac_f32 v{Y1+j}, v{c2}, v{Y2+j}")
        R8 = [Y1 + j for j in range(4)] + [G1 + j for j in range(4)]
        g.nop(2)
        for r in (4, 8):
            for x in R8:
                g.I(f"v_add_f32_dpp v{x}, v{x}, v{x} row_ror:{r} row_mask:0xf bank_mask:0xf")
        reduce_scatter_rows(g, R8)
        g.I(f"v_and_b32 v{a0}, 3, v{V_LANE}")
        g.I(f"v_lshlrev_b32 v{a0}, 4, v{a0}")
        g.I(f"v_and_b32 v{a0+1}, 1, v{V_G}")
        g.I(f"v_lshl_add_u32 v{a0}, v{a0+1}, 3, v{a0}")
        g.I(f"v_lshrrev_b32 v{a0+1}, 1, v{V_G}")
        g.I(f"v_lshl_add_u32 v{a0}, v{a0+1}, 6, v{a0}")
        g.I(f"s_lshl_b32 s{S_T0}, s{S_WAVE}, 7")
        g.I(f"v_add_u32 v{a0}, s{S_T0}, v{a0}")
        g.I(f"ds_write_b64 v{a0}, {vr(R8[0],2)} offset:{L_FIN}")
        g.I("s_waitcnt lgkmcnt(0)")
        g.I("s_barrier")
        g.I(f"s_cmp_lg_u32 s{S_WAVE}, 0")
        g.I("s_cbranch_scc1 L_end2")
        g.I(f"v_and_b32 v{a0}, 15, v{V_LANE}")
        g.I(f"v_lshlrev_b32 v{a0}, 2, v{a0}")
        for w in range(8):
            g.I(f"ds_read_b32 v{V_RING+16+w}, v{a0} offset:{L_FIN+128*w}")
            g.I(f"ds_read_b32 v{V_RING+24+w}, v{a0} offset:{L_FIN+128*w+64}")
        g.I("s_waitcnt lgkmcnt(0)")
        for step in (1, 2, 4):
            for w in range(0, 8, 2 * step):
                g.I(f"v_add_f32 v{V_RING+16+w}, v{V_RING+16+w}, v{V_RING+16+w+step}")
                g.I(f"v_add_f32 v{V_RING+24+w}, v{V_RING+24+w}, v{V_RING+24+w+step}")
        bf16_round2(g, V_RING + 16, V_RING + 24, a0 + 1)
        g.I(f"v_lshlrev_b32 v{a0+6}, 16, v{a0+6}")
        g.I(f"v_add_f32 v{a0+6}, v{a0+6}, v{V_RING+16}")
        bf16_round1(g, a0 + 6, a0 + 6, a0 + 1)
        g.I(f"v_add_f32 v{a0+6}, v{a0+6}, v{V_RING+24}")
        g.I(f"v_cvt_pk_bf16_f32 v{a0+6}, v{a0+6}, v{a0+6}")
        g.I(f"v_cmp_gt_u32 vcc, 16, v{V_LANE}")
        g.I(f"s_and_saveexec_b64 {sr(S_EX,2)}, vcc")
        g.I(f"s_lshl_b32 s{S_T2}, s{fid_sreg}, 5")
        g.I(f"buffer_store_short v{a0+6}, v{a0+5}, {sr(R_OUT,4)}, s{S_T2} offen")
        stamp(g, cfg, 5)
        g.lab("L_end2")

    g.I("s_cmp_ge_u32 s2, 32")
    g.I("s_cbranch_scc1 L_end")
    finisher(2)
    g.lab("L_end")
    g.I("s_endpgm")

    g.L.append('.section .rodata,"a"')
    g.L.append(".p2align 6")
    g.L.append(f".amdhsa_kernel {kmain}")
    g.L.append("  .amdhsa_next_free_vgpr 256")
    g.L.append("  .amdhsa_next_free_sgpr 102")
    g.L.append("  .amdhsa_accum_offset 256")
    g.L.append("  .amdhsa_group_segment_fixed_size 0")
    g.L.append("  .amdhsa_kernarg_size 96")
    g.L.append("  .amdhsa_user_sgpr_count 2")
    g.L.append("  .amdhsa_user_sgpr_kernarg_segment_ptr 1")
    g.L.append("  .amdhsa_system_sgpr_workgroup_id_x 1")
    g.L.append(".end_amdhsa_kernel")
    return g.text()


if __name__ == "__main__":
    ap = argparse.ArgumentParser()
    ap.add_argument("--nt", type=int, default=1)
    ap.add_argument("--stamp", type=int, default=0)
    ap.add_argument("--loopbar", type=int, default=1)
    ap.add_argument("--lnwave", type=int, default=0)
    ap.add_argument("--wnt", type=int, default=0)
    ap.add_argument("--hmap", type=int, default=1)
    ap.add_argument("--nocompute", type=int, default=0)
    ap.add_argument("--notail", type=int, default=0)
    ap.add_argument("--nowo", type=int, default=0)
    ap.add_argument("--noglu", type=int, default=0)
    ap.add_argument("--nowq", type=int, default=0)
    ap.add_argument("--wosched", type=str, default="{0:[0],3:[1,2],4:[3,4],5:[5,6],6:[7]}")
    ap.add_argument("--glu_at", type=int, default=1)
    ap.add_argument("--issue", type=str, default="2,2,3,6")
    ap.add_argument("-o", default="parallel_sum__mha_block_cached__glu_gated_glu__decode.s")
    cfg = ap.parse_args()
    cfg.issue_at = [int(x) for x in cfg.issue.split(",")]
    cfg.wo_sched = eval(cfg.wosched)
    assert len(cfg.issue_at) == 4
    open(cfg.o, "w").write(gen(cfg))
    print("wrote", cfg.o)
```

```python
import sys, argparse
from gen import G, vr, sr, HEADER, KNAME

S_X, S_K, S_V, S_WQ, S_WO, S_BX, S_GT, S_UP = 4, 6, 8, 10, 12, 14, 16, 18
S_DN, S_OUT, S_DBG, S_WS = 20, 22, 24, 26
R_K, R_V, R_WQ, R_WO, R_GT, R_UP, R_DN, R_X, R_WS, R_OUT, R_DBG = 28, 32, 36, 40, 44, 48, 52, 56, 60, 64, 68
S_H, S_SPLIT, S_WAVE, S_OFF, S_CNT = 72, 73, 74, 75, 76
S_SCALE, S_LOG2E, S_MASK, S_P, S_GJ, S_T0, S_T1, S_T2, S_GVALID = 78, 79, 80, 81, 82, 83, 84, 85, 86
S_PLO, S_PHI = 87, 88
S_HOFF = 90
S_RB = 91
S_EX = 96
S_TS = 98

L_XN = 0
L_QP = 1024
L_GU = 5120
L_OP = 5632
L_ML = 9728
L_YP = 10240
L_FIN = 26624
LDS_BYTES = 27648

WS_Y = 0
WS_G = 512 * 1024
WS_ML = 1024 * 1024
WS_BYTES = 1024 * 1024 + 2048 + 4096


def srd(g, r, base_lo, base_hi, nbytes):
    g.I(f"s_mov_b32 s{r}, s{base_lo}")
    g.I(f"s_and_b32 s{r+1}, s{base_hi}, 0xffff")
    g.I(f"s_mov_b32 s{r+2}, {nbytes:#x}")
    g.I(f"s_mov_b32 s{r+3}, 0x00020000")


def srd_off(g, r, base_lo, base_hi, off_sreg, nbytes):
    g.I(f"s_add_u32 s{r}, s{base_lo}, s{off_sreg}")
    g.I(f"s_addc_u32 s{r+1}, s{base_hi}, 0")
    g.I(f"s_and_b32 s{r+1}, s{r+1}, 0xffff")
    g.I(f"s_mov_b32 s{r+2}, {nbytes:#x}")
    g.I(f"s_mov_b32 s{r+3}, 0x00020000")


def bf16_round1(g, dst, src, tmp):
    g.I(f"v_cvt_pk_bf16_f32 v{tmp}, v{src}, v{src}")
    g.I(f"v_lshlrev_b32 v{dst}, 16, v{tmp}")


def bf16_round2(g, a, b, tmp):
    g.I(f"v_cvt_pk_bf16_f32 v{tmp}, v{a}, v{b}")
    g.I(f"v_lshlrev_b32 v{a}, 16, v{tmp}")
    g.I(f"v_and_b32 v{b}, s{S_MASK}, v{tmp}")


def row_allreduce(g, op, regs):
    n = len(regs)
    for r in (8, 4, 2, 1):
        for x in regs:
            g.I(f"v_{op}_dpp v{x}, v{x}, v{x} row_ror:{r} row_mask:0xf bank_mask:0xf")
        if n < 3:
            g.nop(3 - n)


def cross_row_allreduce(g, op, x, t):
    g.I(f"v_mov_b32 v{t}, v{x}")
    g.nop(2)
    g.I(f"v_permlane16_swap_b32 v{x}, v{t}")
    g.nop(1)
    g.I(f"v_{op} v{x}, v{x}, v{t}")
    g.I(f"v_mov_b32 v{t}, v{x}")
    g.nop(2)
    g.I(f"v_permlane32_swap_b32 v{x}, v{t}")
    g.nop(1)
    g.I(f"v_{op} v{x}, v{x}, v{t}")


def wave_allreduce(g, op, x, t):
    row_allreduce(g, op, [x])
    cross_row_allreduce(g, op, x, t)


def reduce_scatter_rows(g, regs):
    n = len(regs)
    h = n // 2
    g.nop(2)
    for k in range(h):
        g.I(f"v_permlane32_swap_b32 v{regs[k]}, v{regs[k+h]}")
    g.nop(1)
    for k in range(h):
        g.I(f"v_add_f32 v{regs[k]}, v{regs[k]}, v{regs[k+h]}")
    qn = h // 2
    g.nop(2)
    for k in range(qn):
        g.I(f"v_permlane16_swap_b32 v{regs[k]}, v{regs[k+qn]}")
    g.nop(1)
    for k in range(qn):
        g.I(f"v_add_f32 v{regs[k]}, v{regs[k]}, v{regs[k+qn]}")


def stamp(g, cfg, idx, wave=0):
    if not cfg.stamp:
        return
    lab = f"L_st{idx}"
    g.I(f"s_cmp_lg_u32 s{S_WAVE}, {wave}")
    g.I(f"s_cbranch_scc1 {lab}")
    g.I(f"s_memrealtime s[{S_TS}:{S_TS+1}]")
    g.I("s_waitcnt lgkmcnt(0)")
    g.I(f"v_mov_b32 v5, s{S_TS}")
    g.I(f"s_lshl_b32 s{S_TS}, s2, 6")
    g.I(f"s_add_u32 s{S_TS}, s{S_TS}, {2*1024*1024 + idx*4}")
    g.I(f"v_mov_b32 v6, s{S_TS}")
    g.I(f"global_store_dword v6, v5, s[{S_WS}:{S_WS+1}]")
    g.lab(lab)


def gen(cfg):
    D = 4
    NT = " nt" if cfg.nt else ""
    WQNT = " nt" if cfg.wnt & 1 else ""
    WONT = " nt" if cfg.wnt & 2 else ""
    GNT = " nt" if cfg.wnt & 4 else ""
    DNT = " nt" if cfg.wnt & 8 else ""
    g = G()
    V_TID, V_LANE, V_KVOFF, V_G, V_Cc, V_WOA = 0, 1, 2, 3, 4, 7
    V_Q = 8
    V_ACC = 12
    V_M, V_L = 20, 21
    V_S = 22
    V_PP = 32
    V_T = 40
    V_GT, V_UP, V_DN = 46, 50, 54
    V_XROW = 60
    V_QOFF = 61
    TMP8 = [26, 27, 28, 29, 30, 31, 58, 59]
    V_W = 64
    V_RING = 128
    LNW = cfg.lnwave

    g.L.append(HEADER.rstrip("\n"))
    g.L.append(f"; @launch grid=(256,1,1) block=(512,1,1) lds={LDS_BYTES}")
    kmain = KNAME
    g.L.append('.amdgcn_target "amdgcn-amd-amdhsa--gfx950"')
    g.L.append(".text")
    g.L.append(f".globl {kmain}")
    g.L.append(".p2align 8")
    g.L.append(f".type {kmain},@function")
    g.lab(kmain)
    g.I("s_cmp_ge_u32 s2, 256")
    g.I("s_cbranch_scc1 L_end")
    g.I("s_load_dwordx16 s[4:19], s[0:1], 0")
    g.I("s_load_dwordx8 s[20:27], s[0:1], 64")
    g.I(f"v_and_b32 v{V_LANE}, 63, v{V_TID}")
    g.I(f"v_lshrrev_b32 v{V_T}, 6, v{V_TID}")
    g.I(f"v_lshrrev_b32 v{V_G}, 4, v{V_LANE}")
    g.I(f"v_readfirstlane_b32 s{S_WAVE}, v{V_T}")
    g.I(f"v_and_b32 v{V_Cc}, 15, v{V_LANE}")
    g.I(f"s_mov_b32 s{S_SCALE}, 0x3db504f3")
    g.I(f"s_mov_b32 s{S_LOG2E}, 0x3fb8aa3b")
    g.I(f"s_mov_b32 s{S_MASK}, 0xffff0000")
    g.I(f"s_mov_b32 s{S_PLO}, 0x05040100")
    g.I(f"s_mov_b32 s{S_PHI}, 0x07060302")
    g.I(f"s_and_b32 s{S_T0}, s2, 7")
    g.I(f"s_lshr_b32 s{S_T1}, s2, 3")
    g.I(f"s_and_b32 s{S_T2}, s{S_T1}, 3")
    if cfg.hmap == 0:
        g.I(f"s_lshl_b32 s{S_H}, s{S_T0}, 2")
        g.I(f"s_add_u32 s{S_H}, s{S_H}, s{S_T2}")
    else:
        g.I(f"s_lshl_b32 s{S_H}, s{S_T2}, 1")
        g.I(f"s_add_u32 s{S_H}, s{S_H}, s{S_T0}")
        g.I(f"s_and_b32 s{S_H}, s{S_H}, 7")
        g.I(f"s_lshl_b32 s{S_T2}, s{S_T2}, 3")
        g.I(f"s_add_u32 s{S_H}, s{S_H}, s{S_T2}")
    g.I(f"s_lshr_b32 s{S_SPLIT}, s{S_T1}, 2")
    g.I(f"s_lshl_b32 s{S_P}, s{S_H}, 3")
    g.I(f"s_add_u32 s{S_P}, s{S_P}, s{S_SPLIT}")
    g.I(f"s_lshl_b32 s{S_HOFF}, s{S_H}, 2")
    g.I(f"s_mul_i32 s{S_GJ}, s{S_T0}, 28")
    g.I(f"s_add_u32 s{S_GJ}, s{S_GJ}, s{S_T1}")
    g.I(f"s_cmp_lt_u32 s{S_T1}, 28")
    g.I(f"s_cselect_b32 s{S_GVALID}, 1, 0")
    g.I(f"s_cselect_b32 s{S_GJ}, s{S_GJ}, 0")
    V_A = 56
    g.I(f"v_lshlrev_b32 v{V_WOA}, 4, v{V_LANE}")
    g.I(f"v_lshlrev_b32 v{V_A+1}, 14, v{V_G}")
    g.I(f"v_lshl_add_u32 v{V_A+1}, v{V_Cc}, 4, v{V_A+1}")
    g.I(f"s_lshl_b32 s{S_T0}, s{S_WAVE}, 16")
    g.I(f"s_lshl_b32 s{S_T1}, s{S_H}, 8")
    g.I(f"s_add_u32 s{S_RB}, s{S_T0}, s{S_T1}")
    g.I(f"s_lshl_b32 s{S_T1}, s{S_WAVE}, 12")
    g.I(f"v_add_u32 v{V_KVOFF}, s{S_T1}, v{V_WOA}")
    g.I(f"s_lshl_b32 s{S_T2}, s{S_P}, 20")
    g.I("s_waitcnt lgkmcnt(0)")
    stamp(g, cfg, 0)
    if cfg.touch:
        TB = 92
        g.I(f"s_mov_b64 s[{TB}:{TB+1}], s[{S_WQ}:{S_WQ+1}]")
        g.I(f"s_mov_b32 s{TB+2}, 0x200000")
        def sel(w, ptr, off_code):
            g.I(f"s_cmp_eq_u32 s{S_WAVE}, {w}")
            g.I(f"s_cselect_b64 s[{TB}:{TB+1}], s[{ptr}:{ptr+1}], s[{TB}:{TB+1}]")
            g.I(f"s_cselect_b32 s{TB+2}, {off_code}, s{TB+2}")
        g.I(f"s_lshl_b32 s{TB+3}, s{S_H}, 17")
        sel(1, S_WO, f"s{TB+3}")
        sel(2, S_GT, "0")
        sel(3, S_UP, "0")
        g.I(f"s_lshl_b32 s{TB+3}, s{S_GJ}, 13")
        sel(4, S_DN, f"s{TB+3}")
        sel(5, S_WS, "0")
        sel(6, S_DBG, "0")
        sel(7, S_OUT, "0")
        g.I(f"v_mov_b32 v6, s{TB+2}")
        g.I(f"global_load_dword v5, v6, s[{TB}:{TB+1}]")
    srd(g, R_WQ, S_WQ, S_WQ + 1, 512 * 8192)
    srd(g, R_X, S_X, S_X + 1, 1024)
    srd_off(g, R_K, S_K, S_K + 1, S_T2, 0x100000)
    srd_off(g, R_V, S_V, S_V + 1, S_T2, 0x100000)
    g.I(f"s_cmp_lg_u32 s{S_WAVE}, {LNW}")
    g.I("s_cbranch_scc1 L_loads")
    V_XR = V_T
    XF = V_PP
    g.I(f"buffer_load_dwordx4 {vr(V_XR,4)}, v{V_WOA}, {sr(R_X,4)}, 0 offen")
    g.I("s_waitcnt vmcnt(0)")
    stamp(g, cfg, 6, LNW)
    for j in range(4):
        g.I(f"v_lshlrev_b32 v{XF+2*j}, 16, v{V_XR+j}")
        g.I(f"v_and_b32 v{XF+2*j+1}, s{S_MASK}, v{V_XR+j}")
    t0, t1, t2, t3 = V_S, V_S + 1, V_S + 2, V_S + 3
    g.I(f"v_add_f32 v{t0}, v{XF}, v{XF+1}")
    g.I(f"v_add_f32 v{t1}, v{XF+2}, v{XF+3}")
    g.I(f"v_add_f32 v{t2}, v{XF+4}, v{XF+5}")
    g.I(f"v_add_f32 v{t3}, v{XF+6}, v{XF+7}")
    g.I(f"v_add_f32 v{t0}, v{t0}, v{t1}")
    g.I(f"v_add_f32 v{t2}, v{t2}, v{t3}")
    g.I(f"v_add_f32 v{t0}, v{t0}, v{t2}")
    g.nop(2)
    wave_allreduce(g, "add_f32", t0, t1)
    g.I(f"v_mul_f32 v{t0}, 0x3b000000, v{t0}")
    for j in range(8):
        g.I(f"v_sub_f32 v{12+j}, v{XF+j}, v{t0}")
    g.I(f"v_mul_f32 v{t1}, v12, v12")
    g.I(f"v_mul_f32 v{t2}, v13, v13")
    for j in range(2, 8, 2):
        g.I(f"v_fmac_f32 v{t1}, v{12+j}, v{12+j}")
        g.I(f"v_fmac_f32 v{t2}, v{13+j}, v{13+j}")
    g.I(f"v_add_f32 v{t1}, v{t1}, v{t2}")
    g.nop(2)
    wave_allreduce(g, "add_f32", t1, t2)
    g.I(f"v_mul_f32 v{t1}, 0x3b000000, v{t1}")
    bf16_round2(g, t0, t1, t2)
    g.I(f"v_add_f32 v{t1}, 0x3727c5ac, v{t1}")
    for j in range(8):
        g.I(f"v_sub_f32 v{XF+j}, v{XF+j}, v{t0}")
    bf16_round1(g, t1, t1, t2)
    g.I(f"v_sqrt_f32 v{t1}, v{t1}")
    for j in range(0, 8, 2):
        bf16_round2(g, XF + j, XF + j + 1, t2)
    bf16_round1(g, t1, t1, t2)
    g.I(f"v_rcp_f32 v{t3}, v{t1}")
    g.nop(1)
    for j in range(8):
        g.I(f"v_mul_f32 v{12+j}, v{XF+j}, v{t3}")
    for j in range(8):
        g.I(f"v_fma_f32 v{26+(j%4)}, -v{12+j}, v{t1}, v{XF+j}")
        g.I(f"v_fma_f32 v{XF+j}, v{26+(j%4)}, v{t3}, v{12+j}")
    XP = V_Q
    for j in range(4):
        g.I(f"v_cvt_pk_bf16_f32 v{XP+j}, v{XF+2*j}, v{XF+2*j+1}")
    g.I(f"ds_write_b128 v{V_WOA}, {vr(XP,4)} offset:{L_XN}")
    g.lab("L_loads")

    def issue_block(slot, tag):
        kb = V_RING + slot * 32
        for i in range(4):
            g.vm(f"buffer_load_dwordx4 {vr(kb+4*i,4)}, v{V_KVOFF}, {sr(R_K,4)}, s{S_OFF} offen offset:{i*1024}{NT}", tag)
        for i in range(4):
            g.vm(f"buffer_load_dwordx4 {vr(kb+16+4*i,4)}, v{V_KVOFF}, {sr(R_V,4)}, s{S_OFF} offen offset:{i*1024}{NT}", tag)
        g.I(f"s_add_u32 s{S_OFF}, s{S_OFF}, 32768")

    nissued = 0

    def maybe_issue(point):
        nonlocal nissued
        while nissued < D and cfg.issue_at[nissued] == point:
            issue_block(nissued, f"b{nissued}")
            nissued += 1

    g.I(f"s_mov_b32 s{S_OFF}, 0")
    maybe_issue(0)
    for k in range(8):
        g.I(f"s_add_u32 s{S_T0}, s{S_SPLIT}, {k}")
        g.I(f"s_and_b32 s{S_T0}, s{S_T0}, 7")
        g.I(f"s_lshl_b32 s{S_T0}, s{S_T0}, 19")
        g.I(f"s_add_u32 s{S_T0}, s{S_T0}, s{S_RB}")
        g.I(f"s_add_u32 s{S_T1}, s{S_T0}, 8192")
        if not cfg.nowq and not (cfg.wq1 and k > 0):
            g.vm(f"buffer_load_dwordx4 {vr(V_W+8*k,4)}, v{V_A+1}, {sr(R_WQ,4)}, s{S_T0} offen{WQNT}", f"wq{k//2}")
            g.vm(f"buffer_load_dwordx4 {vr(V_W+8*k+4,4)}, v{V_A+1}, {sr(R_WQ,4)}, s{S_T1} offen{WQNT}", f"wq{k//2}")
        if k == 0:
            maybe_issue(1)
    maybe_issue(2)
    srd(g, R_GT, S_GT, S_GT + 1, 512 * 3584)
    srd(g, R_UP, S_UP, S_UP + 1, 512 * 3584)
    srd(g, R_DN, S_DN, S_DN + 1, 1792 * 1024)
    srd(g, R_WS, S_WS, S_WS + 1, WS_BYTES)
    srd(g, R_OUT, S_OUT, S_OUT + 1, 1024)
    srd(g, R_DBG, S_DBG, S_DBG + 1, 256)
    g.I(f"s_lshl_b32 s{S_T0}, s{S_H}, 17")
    srd_off(g, R_WO, S_WO, S_WO + 1, S_T0, 0x20000)
    XNP = V_ACC
    g.I(f"s_lshl_b32 s{S_T0}, s{S_WAVE}, 4")
    g.I(f"v_lshlrev_b32 v{V_A}, 2, v{V_G}")
    g.I(f"v_add_u32 v{V_A}, s{S_T0}, v{V_A}")
    for k in range(8):
        g.I(f"s_add_u32 s{S_T0}, s{S_SPLIT}, {k}")
        g.I(f"s_and_b32 s{S_T0}, s{S_T0}, 7")
        g.I(f"s_lshl_b32 s{S_T0}, s{S_T0}, 7")
        g.I(f"v_add_u32 v{XNP+k}, s{S_T0}, v{V_A}")
    g.I(f"v_lshlrev_b32 v{V_A+2}, 1, v{V_TID}")
    g.I("s_waitcnt lgkmcnt(0)")
    g.I("s_barrier")
    stamp(g, cfg, 8)
    for k in range(8):
        g.I(f"ds_read_b32 v{XNP+k}, v{XNP+k} offset:{L_XN}")
    g.I(f"ds_read_u16 v{V_XROW}, v{V_A+2} offset:{L_XN}")
    maybe_issue(3)
    ta, tb, tc, td = 26, 27, 28, 29
    g.I(f"v_and_b32 v{ta}, 1, v{V_G}")
    g.I(f"v_lshlrev_b32 v{ta}, 3, v{ta}")
    g.I(f"v_lshrrev_b32 v{tb}, 1, v{V_G}")
    g.I(f"v_lshl_add_u32 v{ta}, v{tb}, 4, v{ta}")
    g.I(f"v_lshl_add_u32 v{V_QOFF}, v{V_Cc}, 5, v{ta}")
    g.I("s_waitcnt lgkmcnt(0)")
    g.I(f"v_lshlrev_b32 v{V_XROW}, 16, v{V_XROW}")
    QA = V_PP
    for k in range(8):
        if k % 2 == 0:
            g.wait_tag(f"wq{k//2}")
        for j in range(4):
            A, B = V_W + 8 * k + j, V_W + 8 * k + 4 + j
            lo, hi = (ta, tb) if j % 2 == 0 else (tc, td)
            g.I(f"v_perm_b32 v{lo}, v{B}, v{A}, s{S_PLO}")
            g.I(f"v_perm_b32 v{hi}, v{B}, v{A}, s{S_PHI}")
            s2a = "0" if k == 0 else f"v{QA+2*j}"
            s2b = "0" if k == 0 else f"v{QA+2*j+1}"
            g.I(f"v_dot2_f32_bf16 v{QA+2*j}, v{lo}, v{XNP+k}, {s2a}")
            g.I(f"v_dot2_f32_bf16 v{QA+2*j+1}, v{hi}, v{XNP+k}, {s2b}")
        if k == 3:
            maybe_issue(4)
    g.nop(1)
    reduce_scatter_rows(g, [QA + j for j in range(8)])
    g.I(f"s_lshl_b32 s{S_T0}, s{S_WAVE}, 9")
    g.I(f"v_add_u32 v{ta}, s{S_T0}, v{V_QOFF}")
    g.I(f"ds_write_b64 v{ta}, {vr(QA,2)} offset:{L_QP}")
    g.I(f"v_lshlrev_b32 v{tb}, 5, v{V_Cc}")
    maybe_issue(5)
    g.I("s_waitcnt lgkmcnt(0)")
    g.I("s_barrier")
    stamp(g, cfg, 7)
    for w in range(8):
        g.I(f"ds_read_b128 {vr(V_W+8*w,4)}, v{tb} offset:{L_QP+512*w}")
        g.I(f"ds_read_b128 {vr(V_W+8*w+4,4)}, v{tb} offset:{L_QP+512*w+16}")
    g.I(f"v_mov_b32 v{V_M}, 0xff800000")
    g.I(f"v_mov_b32 v{V_L}, 0")
    for j in range(8):
        g.I(f"v_mov_b32 v{V_ACC+j}, 0")
    g.I(f"s_lshl_b32 s{S_T0}, s{S_WAVE}, 11")
    g.I(f"v_add_u32 v{V_WOA}, s{S_T0}, v{V_WOA}")
    for step in (1, 2, 4):
        g.I(f"s_waitcnt lgkmcnt({ {1: 0, 2: 0, 4: 0}[step] })") if step == 1 else None
        for w in range(0, 8, 2 * step):
            for j in range(8):
                g.I(f"v_add_f32 v{V_W+8*w+j}, v{V_W+8*w+j}, v{V_W+8*(w+step)+j}")
    for j in range(4):
        g.I(f"v_cvt_pk_bf16_f32 v{V_Q+j}, v{V_W+2*j}, v{V_W+2*j+1}")
    maybe_issue(6)
    assert nissued == D
    stamp(g, cfg, 1)

    def compute_block(slot):
        if cfg.nocompute:
            return
        kb = V_RING + slot * 32
        vb = kb + 16
        S = V_S
        for j in range(4):
            for i in range(4):
                src2 = "0" if j == 0 else f"v{S+i}"
                g.I(f"v_dot2_f32_bf16 v{S+i}, v{kb+4*i+j}, v{V_Q+j}, {src2}")
        t = V_T
        row_allreduce(g, "add_f32", [S + i for i in range(4)])
        g.I(f"v_cvt_pk_bf16_f32 v{t}, v{S}, v{S+1}")
        g.I(f"v_cvt_pk_bf16_f32 v{t+1}, v{S+2}, v{S+3}")
        g.I(f"v_lshlrev_b32 v{S}, 16, v{t}")
        g.I(f"v_and_b32 v{S+1}, s{S_MASK}, v{t}")
        g.I(f"v_lshlrev_b32 v{S+2}, 16, v{t+1}")
        g.I(f"v_and_b32 v{S+3}, s{S_MASK}, v{t+1}")
        for i in range(4):
            g.I(f"v_mul_f32 v{S+i}, s{S_SCALE}, v{S+i}")
        g.I(f"v_cvt_pk_bf16_f32 v{t}, v{S}, v{S+1}")
        g.I(f"v_cvt_pk_bf16_f32 v{t+1}, v{S+2}, v{S+3}")
        g.I(f"v_lshlrev_b32 v{S}, 16, v{t}")
        g.I(f"v_and_b32 v{S+1}, s{S_MASK}, v{t}")
        g.I(f"v_lshlrev_b32 v{S+2}, 16, v{t+1}")
        g.I(f"v_and_b32 v{S+3}, s{S_MASK}, v{t+1}")
        mn, al, mb = t + 2, t + 4, t + 3
        g.I(f"v_max3_f32 v{mn}, v{V_M}, v{S}, v{S+1}")
        g.I(f"v_max3_f32 v{mn}, v{mn}, v{S+2}, v{S+3}")
        g.I(f"v_sub_f32 v{al}, v{V_M}, v{mn}")
        g.I(f"v_mul_f32 v{mb}, s{S_LOG2E}, v{mn}")
        g.I(f"v_mul_f32 v{al}, s{S_LOG2E}, v{al}")
        for i in range(4):
            g.I(f"v_fma_f32 v{V_PP+i}, v{S+i}, s{S_LOG2E}, -v{mb}")
        g.I(f"v_exp_f32 v{al}, v{al}")
        for i in range(4):
            g.I(f"v_exp_f32 v{V_PP+i}, v{V_PP+i}")
        g.I(f"v_mov_b32 v{V_M}, v{mn}")
        for pr in range(2):
            for j in range(4):
                A, B = vb + 8 * pr + j, vb + 8 * pr + 4 + j
                g.I(f"v_perm_b32 v{kb+8*pr+2*j}, v{B}, v{A}, s{S_PLO}")
                g.I(f"v_perm_b32 v{kb+8*pr+2*j+1}, v{B}, v{A}, s{S_PHI}")
        g.I(f"v_mul_f32 v{V_L}, v{V_L}, v{al}")
        for j in range(4):
            g.I(f"v_pk_mul_f32 {vr(V_ACC+2*j,2)}, {vr(V_ACC+2*j,2)}, {vr(al,2)} op_sel_hi:[1,0]")
        g.I(f"v_cvt_pk_bf16_f32 v{V_PP+4}, v{V_PP}, v{V_PP+1}")
        g.I(f"v_cvt_pk_bf16_f32 v{V_PP+5}, v{V_PP+2}, v{V_PP+3}")
        g.I(f"v_add_f32 v{t}, v{V_PP}, v{V_PP+1}")
        g.I(f"v_add_f32 v{t+1}, v{V_PP+2}, v{V_PP+3}")
        g.I(f"v_add_f32 v{t}, v{t}, v{t+1}")
        g.I(f"v_add_f32 v{V_L}, v{V_L}, v{t}")
        for pr in range(2):
            for jj in range(8):
                g.I(f"v_dot2_f32_bf16 v{V_ACC+jj}, v{kb+8*pr+jj}, v{V_PP+4+pr}, v{V_ACC+jj}")

    def glu_part1():
        g.wait_tag("gu")
        for half, src in ((0, V_GT), (1, V_UP)):
            R = TMP8
            for j in range(4):
                g.I(f"v_lshlrev_b32 v{R[2*j]}, 16, v{src+j}")
                g.I(f"v_and_b32 v{R[2*j+1]}, s{S_MASK}, v{src+j}")
            for j in range(8):
                g.I(f"v_mul_f32 v{R[j]}, v{R[j]}, v{V_XROW}")
            reduce_scatter_rows(g, R)
            g.nop(2)
            row_allreduce(g, "add_f32", [R[0], R[1]])
            g.I(f"v_lshlrev_b32 v{R[2]}, 6, v{V_G}")
            g.I(f"s_lshl_b32 s{S_T0}, s{S_WAVE}, 2")
            g.I(f"v_add_u32 v{R[2]}, s{S_T0}, v{R[2]}")
            g.I(f"v_cmp_eq_u32 vcc, 0, v{V_Cc}")
            g.I(f"s_and_saveexec_b64 {sr(S_EX,2)}, vcc")
            g.I(f"ds_write_b32 v{R[2]}, v{R[0]} offset:{L_GU+256*half}")
            g.I(f"ds_write_b32 v{R[2]}, v{R[1]} offset:{L_GU+256*half+32}")
            g.I(f"s_mov_b64 exec, {sr(S_EX,2)}")
        g.I("s_waitcnt lgkmcnt(0)")

    def glu_part2():
        ta, tb = 62, 63
        R = TMP8
        g.I(f"v_lshrrev_b32 v{ta}, 3, v{V_LANE}")
        g.I(f"v_lshlrev_b32 v{ta}, 5, v{ta}")
        g.I(f"ds_read_b128 {vr(V_GT,4)}, v{ta} offset:{L_GU}")
        g.I(f"ds_read_b128 {vr(V_GT+4,4)}, v{ta} offset:{L_GU+16}")
        g.I(f"ds_read_b128 {vr(26,4)}, v{ta} offset:{L_GU+256}")
        g.I(f"ds_read_b64 {vr(30,2)}, v{ta} offset:{L_GU+272}")
        g.I(f"ds_read_b64 {vr(58,2)}, v{ta} offset:{L_GU+280}")
        g.I("s_waitcnt lgkmcnt(0)")
        for j in range(1, 8):
            g.I(f"v_add_f32 v{V_GT}, v{V_GT}, v{V_GT+j}")
            g.I(f"v_add_f32 v{R[0]}, v{R[0]}, v{R[j]}")
        ga, ua = V_GT, R[0]
        bf16_round2(g, ga, ua, tb)
        e = V_GT + 1
        g.I(f"v_mul_f32 v{e}, s{S_LOG2E}, v{ga}")
        g.I(f"v_sub_f32 v{e}, 0, v{e}")
        g.I(f"v_exp_f32 v{e}, v{e}")
        g.nop(1)
        g.I(f"v_add_f32 v{e}, 1.0, v{e}")
        g.I(f"v_rcp_f32 v{e+1}, v{e}")
        g.nop(1)
        g.I(f"v_fma_f32 v{e+2}, -v{e}, v{e+1}, 1.0")
        g.I(f"v_fma_f32 v{e+1}, v{e+2}, v{e+1}, v{e+1}")
        bf16_round1(g, e + 1, e + 1, tb)
        g.I(f"v_mul_f32 v{e+1}, v{e+1}, v{ua}")
        bf16_round1(g, e + 1, e + 1, tb)
        hh = e + 1
        g.wait_tag("dn")
        for j in range(4):
            g.I(f"v_lshlrev_b32 v{R[2*j]}, 16, v{V_DN+j}")
            g.I(f"v_and_b32 v{R[2*j+1]}, s{S_MASK}, v{V_DN+j}")
        for j in range(8):
            g.I(f"v_mul_f32 v{R[j]}, v{R[j]}, v{hh}")
        g.nop(2)
        for j in range(8):
            g.I(f"v_add_f32_dpp v{R[j]}, v{R[j]}, v{R[j]} row_ror:8 row_mask:0xf bank_mask:0xf")
        reduce_scatter_rows(g, R)
        g_addr(ta, tb)
        g.I(f"s_cmp_eq_u32 s{S_GVALID}, 0")
        g.I("s_cbranch_scc1 L_skip_glu")
        g.I(f"s_and_saveexec_b64 {sr(S_EX,2)}, vcc")
        g.I(f"buffer_store_dwordx2 {vr(R[0],2)}, v{tb}, {sr(R_WS,4)}, s{S_T0} offen sc0 sc1")
        g.I(f"s_mov_b64 exec, {sr(S_EX,2)}")
        g.lab("L_skip_glu")

    def glu_loads():
        if cfg.noglu:
            return
        ta = 62
        g.I(f"s_movk_i32 s{S_T1}, 3584")
        if cfg.glueff:
            g.I(f"v_lshrrev_b32 v{ta}, 3, v{V_TID}")
            g.I(f"v_mul_lo_u32 v{ta}, v{ta}, s{S_T1}")
            g.I(f"v_and_b32 v63, 7, v{V_LANE}")
            g.I(f"v_lshl_add_u32 v{ta}, v63, 4, v{ta}")
            g.I(f"s_and_b32 s{S_T0}, s{S_GJ}, 7")
            g.I(f"s_mul_i32 s{S_T0}, s{S_T0}, {64*3584}")
            g.I(f"s_lshr_b32 s{S_T1}, s{S_GJ}, 3")
            g.I(f"s_lshl_b32 s{S_T1}, s{S_T1}, 7")
            g.I(f"s_add_u32 s{S_T1}, s{S_T1}, s{S_T0}")
        else:
            g.I(f"v_mul_lo_u32 v{ta}, v{V_TID}, s{S_T1}")
            g.I(f"s_lshl_b32 s{S_T1}, s{S_GJ}, 4")
        g.vm(f"buffer_load_dwordx4 {vr(V_GT,4)}, v{ta}, {sr(R_GT,4)}, s{S_T1} offen{GNT}", "gu")
        g.vm(f"buffer_load_dwordx4 {vr(V_UP,4)}, v{ta}, {sr(R_UP,4)}, s{S_T1} offen{GNT}", "gu")
        g.I(f"v_lshrrev_b32 v63, 3, v{V_LANE}")
        g.I(f"v_lshlrev_b32 v63, 10, v63")
        g.I(f"v_and_b32 v59, 7, v{V_LANE}")
        g.I(f"v_lshl_add_u32 v63, v59, 4, v63")
        g.I(f"s_lshl_b32 s{S_T1}, s{S_GJ}, 13")
        g.I(f"s_lshl_b32 s{S_T0}, s{S_WAVE}, 7")
        g.I(f"s_add_u32 s{S_T1}, s{S_T1}, s{S_T0}")
        g.vm(f"buffer_load_dwordx4 {vr(V_DN,4)}, v63, {sr(R_DN,4)}, s{S_T1} offen{DNT}", "dn")

    def wo_perm():
        for k in range(8):
            for j in range(4):
                A, B = V_W + 8 * k + j, V_W + 8 * k + 4 + j
                tt = V_T + (j % 2)
                g.I(f"v_perm_b32 v{tt}, v{B}, v{A}, s{S_PLO}")
                g.I(f"v_perm_b32 v{B}, v{B}, v{A}, s{S_PHI}")
                g.I(f"v_mov_b32 v{A}, v{tt}")

    def wo_loads(k):
        if cfg.nowo:
            return
        g.I(f"s_add_u32 s{S_T2}, s{S_SPLIT}, {k}")
        g.I(f"s_and_b32 s{S_T2}, s{S_T2}, 7")
        g.I(f"s_lshl_b32 s{S_T2}, s{S_T2}, 14")
        g.vm(f"buffer_load_dwordx4 {vr(V_W+8*k,4)}, v{V_WOA}, {sr(R_WO,4)}, s{S_T2} offen{WONT}", "wo")
        g.vm(f"buffer_load_dwordx4 {vr(V_W+8*k+4,4)}, v{V_WOA}, {sr(R_WO,4)}, s{S_T2} offen offset:1024{WONT}", "wo")

    def y_addr(dst, tmp):
        g.I(f"v_lshrrev_b32 v{dst}, 1, v{V_LANE}")
        g.I(f"v_lshlrev_b32 v{dst}, 14, v{dst}")
        g.I(f"v_and_b32 v{tmp}, 1, v{V_LANE}")
        g.I(f"v_lshl_add_u32 v{dst}, v{tmp}, 5, v{dst}")

    def g_addr(ta, tb):
        g.I(f"v_and_b32 v{ta}, 7, v{V_LANE}")
        g.I(f"v_lshrrev_b32 v{tb}, 1, v{ta}")
        g.I(f"v_lshlrev_b32 v{tb}, 14, v{tb}")
        g.I(f"v_and_b32 v{ta}, 1, v{ta}")
        g.I(f"v_lshl_add_u32 v{tb}, v{ta}, 5, v{tb}")
        g.I(f"v_and_b32 v{ta}, 1, v{V_G}")
        g.I(f"v_lshl_add_u32 v{tb}, v{ta}, 3, v{tb}")
        g.I(f"v_lshrrev_b32 v{ta}, 1, v{V_G}")
        g.I(f"v_lshl_add_u32 v{tb}, v{ta}, 4, v{tb}")
        g.I(f"s_lshl_b32 s{S_T0}, s{S_WAVE}, 16")
        g.I(f"s_lshl_b32 s{S_T1}, s{S_GJ}, 6")
        g.I(f"s_add_u32 s{S_T0}, s{S_T0}, s{S_T1}")
        g.I(f"s_add_u32 s{S_T0}, s{S_T0}, {WS_G}")
        g.I(f"v_and_b32 v{ta}, 8, v{V_LANE}")
        g.I(f"v_cmp_eq_u32 vcc, 0, v{ta}")

    def clears():
        SN = 28
        for j in range(4):
            g.I(f"v_mov_b32 v{SN+j}, -1")
        g_addr(62, 63)
        g.I(f"s_cmp_eq_u32 s{S_GVALID}, 0")
        g.I("s_cbranch_scc1 L_skip_gclr")
        g.I(f"s_and_saveexec_b64 {sr(S_EX,2)}, vcc")
        g.I(f"buffer_store_dwordx2 {vr(SN,2)}, v63, {sr(R_WS,4)}, s{S_T0} offen sc0 sc1")
        g.I(f"s_mov_b64 exec, {sr(S_EX,2)}")
        g.lab("L_skip_gclr")
        g.I(f"s_cmp_lg_u32 s{S_WAVE}, 0")
        g.I("s_cbranch_scc1 L_skip_yclr")
        y_addr(62, 63)
        g.I(f"s_lshl_b32 s{S_T0}, s{S_P}, 6")
        g.I(f"buffer_store_dwordx4 {vr(SN,4)}, v62, {sr(R_WS,4)}, s{S_T0} offen sc0 sc1")
        g.I(f"buffer_store_dwordx4 {vr(SN,4)}, v62, {sr(R_WS,4)}, s{S_T0} offen offset:16 sc0 sc1")
        g.I(f"s_lshl_b32 s{S_T1}, s{S_P}, 3")
        g.I(f"s_add_u32 s{S_T1}, s{S_T1}, {WS_ML}")
        g.I(f"v_mov_b32 v63, 0")
        g.I("s_mov_b64 exec, 1")
        g.I(f"buffer_store_dwordx2 {vr(SN,2)}, v63, {sr(R_WS,4)}, s{S_T1} offen sc0 sc1")
        g.I("s_mov_b64 exec, -1")
        g.lab("L_skip_yclr")

    for j in range(4):
        g.wait_tag(f"b{j}")
        compute_block(j)
        if cfg.loopbar:
            g.I("s_barrier")
        if j == 0:
            clears()
        issue_block(j, f"b{j}")
        for k in cfg.wo_sched.get(j, []):
            wo_loads(k)
        if j == cfg.glu_at:
            glu_loads()
    for j in range(4):
        g.wait_tag(f"b{j}")
        compute_block(j)
        if j == 2:
            glu_part1()
        if cfg.loopbar:
            g.I("s_barrier")
        if j == 0:
            g.I(f"s_cmp_lg_u32 s{S_WAVE}, 0")
            g.I("s_cbranch_scc1 L_skip_sig")
            g.I(f"v_mov_b32 v62, 1")
            g.I(f"v_mov_b32 v63, 0")
            g.I("s_mov_b64 exec, 1")
            g.I(f"buffer_atomic_add v62, v63, {sr(R_DBG,4)}, s{S_HOFF} offen")
            g.I("s_mov_b64 exec, -1")
            g.lab("L_skip_sig")
        issue_block(j, f"b{j}")
        for k in cfg.wo_sched.get(4 + j, []):
            wo_loads(k)
        if j == 3:
            glu_part2()
    for j in range(4):
        g.wait_tag(f"b{j}")
        compute_block(j)
        if cfg.loopbar:
            g.I("s_barrier")
        issue_block(j, f"b{j}")
    g.wait_tag("wo")
    wo_perm()
    g.I(f"s_mov_b32 s{S_CNT}, 5")
    g.lab("L_loop")
    if cfg.stamp:
        g.I(f"s_cmp_lg_u32 s{S_WAVE}, 0")
        g.I(f"s_cbranch_scc1 L_stl")
        g.I(f"s_memrealtime s[{S_TS}:{S_TS+1}]")
        g.I("s_waitcnt lgkmcnt(0)")
        g.I(f"v_mov_b32 v5, s{S_TS}")
        g.I(f"s_lshl_b32 s{S_TS}, s2, 6")
        g.I(f"s_lshl_b32 s{S_TS+1}, s{S_CNT}, 2")
        g.I(f"s_sub_u32 s{S_TS}, s{S_TS}, s{S_TS+1}")
        g.I(f"s_add_u32 s{S_TS}, s{S_TS}, {2*1024*1024 + 15*4}")
        g.I(f"v_mov_b32 v6, s{S_TS}")
        g.I(f"global_store_dword v6, v5, s[{S_WS}:{S_WS+1}]")
        g.lab("L_stl")
    for b in range(D):
        g.I(f"s_waitcnt vmcnt({8*(D-1)})")
        compute_block(b)
        if cfg.loopbar and (b % cfg.loopbar) == 0:
            g.I("s_barrier")
        issue_block(b, f"b{b}")
    g.I(f"s_sub_u32 s{S_CNT}, s{S_CNT}, 1")
    g.I(f"s_cmp_lg_u32 s{S_CNT}, 1")
    g.I("s_cbranch_scc1 L_nochk")
    g.I(f"v_lshlrev_b32 v62, 2, v{V_LANE}")
    g.I(f"v_and_b32 v62, 0x7f, v62")
    g.I(f"buffer_load_dword v63, v62, {sr(R_DBG,4)}, 0 offen sc0 sc1")
    g.lab("L_nochk")
    g.I(f"s_cmp_lg_u32 s{S_CNT}, 0")
    g.I("s_cbranch_scc1 L_loop")
    g.wait_all()
    stamp(g, cfg, 2)
    if cfg.notail:
        g.I("s_branch L_end")
    t = V_T
    mw = t
    g.I(f"v_mov_b32 v{mw}, v{V_M}")
    cross_row_allreduce(g, "max_f32", mw, t + 1)
    g.I(f"v_sub_f32 v{t+2}, v{V_M}, v{mw}")
    g.I(f"v_mul_f32 v{t+2}, s{S_LOG2E}, v{t+2}")
    g.I(f"v_exp_f32 v{t+2}, v{t+2}")
    g.nop(1)
    g.I(f"v_mul_f32 v{V_L}, v{V_L}, v{t+2}")
    for j in range(8):
        g.I(f"v_mul_f32 v{V_ACC+j}, v{V_ACC+j}, v{t+2}")
    cross_row_allreduce(g, "add_f32", V_L, t + 1)
    reduce_scatter_rows(g, [V_ACC + j for j in range(8)])
    g.I(f"s_lshl_b32 s{S_T0}, s{S_WAVE}, 9")
    g.I(f"v_add_u32 v{t+3}, s{S_T0}, v{V_QOFF}")
    g.I(f"ds_write_b64 v{t+3}, {vr(V_ACC,2)} offset:{L_OP}")
    g.I(f"v_mov_b32 v{t+1}, v{V_L}")
    g.I(f"s_lshl_b32 s{S_T0}, s{S_WAVE}, 3")
    g.I(f"v_mov_b32 v{t+3}, s{S_T0}")
    g.I(f"ds_write_b64 v{t+3}, {vr(t,2)} offset:{L_ML}")
    g.I(f"v_mov_b32 v{t+3}, 0")
    g.I(f"v_add_u32 v{t+4}, s{S_SPLIT}, v{V_LANE}")
    g.I(f"v_and_b32 v{t+4}, 7, v{t+4}")
    g.I(f"v_lshlrev_b32 v{t+4}, 6, v{t+4}")
    g.I(f"s_lshl_b32 s{S_T0}, s{S_WAVE}, 3")
    g.I(f"v_add_u32 v{t+4}, s{S_T0}, v{t+4}")
    g.I("s_waitcnt lgkmcnt(0)")
    g.I("s_barrier")
    ML = 24
    for k in range(4):
        g.I(f"ds_read_b128 {vr(ML+4*k,4)}, v{t+3} offset:{L_ML+16*k}")
    OPR = V_RING
    for w in range(8):
        g.I(f"ds_read_b64 {vr(OPR+2*w,2)}, v{t+4} offset:{L_OP+512*w}")
    g.I("s_waitcnt lgkmcnt(8)")
    M = t
    g.I(f"v_max3_f32 v{M}, v{ML}, v{ML+2}, v{ML+4}")
    g.I(f"v_max3_f32 v{M}, v{M}, v{ML+6}, v{ML+8}")
    g.I(f"v_max3_f32 v{M}, v{M}, v{ML+10}, v{ML+12}")
    g.I(f"v_max_f32 v{M}, v{M}, v{ML+14}")
    for w in range(8):
        g.I(f"v_sub_f32 v{ML+2*w}, v{ML+2*w}, v{M}")
    for w in range(8):
        g.I(f"v_mul_f32 v{ML+2*w}, s{S_LOG2E}, v{ML+2*w}")
    for w in range(8):
        g.I(f"v_exp_f32 v{ML+2*w}, v{ML+2*w}")
    oa, ob = t + 5, t + 6
    g.I("s_waitcnt lgkmcnt(0)")
    g.I(f"v_mul_f32 v{oa}, v{ML}, v{OPR}")
    g.I(f"v_mul_f32 v{ob}, v{ML}, v{OPR+1}")
    for w in range(1, 8):
        g.I(f"v_fmac_f32 v{oa}, v{ML+2*w}, v{OPR+2*w}")
        g.I(f"v_fmac_f32 v{ob}, v{ML+2*w}, v{OPR+2*w+1}")
    g.I(f"v_cvt_pk_bf16_f32 v{oa}, v{oa}, v{ob}")
    so = list(range(4, 12))
    Lr = t + 1
    g.I(f"v_mul_f32 v{Lr}, v{ML}, v{ML+1}")
    for k in range(8):
        g.I(f"v_readlane_b32 s{so[k]}, v{oa}, {k}")
    for w in range(1, 8):
        g.I(f"v_fmac_f32 v{Lr}, v{ML+2*w}, v{ML+2*w+1}")
    YA = V_ACC
    for k in range(8):
        for j in range(4):
            A, B = V_W + 8 * k + j, V_W + 8 * k + 4 + j
            c0 = "0" if k == 0 else f"v{YA+2*j}"
            c1 = "0" if k == 0 else f"v{YA+2*j+1}"
            g.I(f"v_dot2_f32_bf16 v{YA+2*j}, v{A}, s{so[k]}, {c0}")
            g.I(f"v_dot2_f32_bf16 v{YA+2*j+1}, v{B}, s{so[k]}, {c1}")
    g.I(f"v_lshlrev_b32 v{t+3}, 5, v{V_LANE}")
    g.I(f"s_lshl_b32 s{S_T0}, s{S_WAVE}, 11")
    g.I(f"v_add_u32 v{t+4}, s{S_T0}, v{t+3}")
    g.nop(1)
    g.I(f"ds_write_b128 v{t+4}, {vr(YA,4)} offset:{L_YP}")
    g.I(f"ds_write_b128 v{t+4}, {vr(YA+4,4)} offset:{L_YP+16}")
    g.I("s_waitcnt lgkmcnt(0)")
    g.I("s_barrier")
    g.I(f"s_cmp_lg_u32 s{S_WAVE}, 0")
    g.I("s_cbranch_scc1 L_after_pub")
    for w in range(8):
        g.I(f"ds_read_b128 {vr(V_RING+8*w,4)}, v{t+3} offset:{L_YP+2048*w}")
        g.I(f"ds_read_b128 {vr(V_RING+8*w+4,4)}, v{t+3} offset:{L_YP+2048*w+16}")
    y_addr(t + 3, t + 4)
    g.I(f"s_lshl_b32 s{S_T0}, s{S_P}, 6")
    g.I(f"s_lshl_b32 s{S_T1}, s{S_P}, 3")
    g.I(f"s_add_u32 s{S_T1}, s{S_T1}, {WS_ML}")
    g.I(f"v_mov_b32 v{t+4}, 0")
    g.I(f"v_cmp_eq_u32 vcc, 0, v{V_LANE}")
    g.I("s_waitcnt lgkmcnt(0)")
    for step in (1, 2, 4):
        for w in range(0, 8, 2 * step):
            for j in range(8):
                g.I(f"v_add_f32 v{V_RING+8*w+j}, v{V_RING+8*w+j}, v{V_RING+8*(w+step)+j}")
    g.I(f"buffer_store_dwordx4 {vr(V_RING,4)}, v{t+3}, {sr(R_WS,4)}, s{S_T0} offen sc0 sc1")
    g.I(f"buffer_store_dwordx4 {vr(V_RING+4,4)}, v{t+3}, {sr(R_WS,4)}, s{S_T0} offen offset:16 sc0 sc1")
    g.I(f"s_and_saveexec_b64 {sr(S_EX,2)}, vcc")
    g.I(f"buffer_store_dwordx2 {vr(t,2)}, v{t+4}, {sr(R_WS,4)}, s{S_T1} offen sc0 sc1")
    g.I(f"s_mov_b64 exec, {sr(S_EX,2)}")
    g.lab("L_after_pub")
    stamp(g, cfg, 3)

    def finisher(fid_sreg):
        t = V_T
        a0 = t
        g.I(f"v_lshlrev_b32 v62, 2, v{V_LANE}")
        g.I(f"v_and_b32 v62, 0x7f, v62")
        g.I(f"s_mov_b32 s{S_CNT}, 0x40000")
        g.lab("L_cpoll")
        g.I(f"v_cmp_gt_u32 vcc, 8, v63")
        g.I("s_cbranch_vccz L_cdone")
        g.I(f"s_sub_u32 s{S_CNT}, s{S_CNT}, 1")
        g.I(f"s_cmp_eq_u32 s{S_CNT}, 0")
        g.I("s_cbranch_scc1 L_cdone")
        g.I(f"buffer_load_dword v63, v62, {sr(R_DBG,4)}, 0 offen sc0 sc1")
        g.I("s_waitcnt vmcnt(0)")
        g.I("s_branch L_cpoll")
        g.lab("L_cdone")
        stamp(g, cfg, 4)
        g.I(f"v_lshlrev_b32 v{a0}, 4, v{V_TID}")
        g.I(f"s_lshl_b32 s{S_T0}, s{fid_sreg}, 14")
        g.I(f"s_add_u32 s{S_T1}, s{S_T0}, 8192")
        g.I(f"s_add_u32 s{S_T2}, s{S_T0}, {WS_G}")
        g.I(f"s_add_u32 s{S_OFF}, s{S_T1}, {WS_G}")
        g.I(f"s_mov_b32 s{S_GJ}, {WS_ML}")
        Y1, Y2, G1, G2 = V_RING, V_RING + 4, V_RING + 8, V_RING + 12
        MLv = V_RING + 16
        g.I(f"v_and_b32 v{a0+1}, 15, v{V_LANE}")
        g.I(f"v_bfe_u32 v{a0+2}, v{V_LANE}, 4, 1")
        g.I(f"v_lshl_add_u32 v{a0+1}, v{a0+2}, 7, v{a0+1}")
        g.I(f"s_lshl_b32 s{S_RB}, s{S_WAVE}, 4")
        g.I(f"v_add_u32 v{a0+1}, s{S_RB}, v{a0+1}")
        g.I(f"v_lshlrev_b32 v{a0+1}, 3, v{a0+1}")
        g.I(f"v_and_b32 v{a0+5}, 15, v{V_TID}")
        g.I(f"v_lshlrev_b32 v{a0+5}, 1, v{a0+5}")
        g.I(f"s_lshl_b32 s{S_RB}, s{fid_sreg}, 5")
        g.I(f"buffer_load_ushort v{a0+6}, v{a0+5}, {sr(R_X,4)}, s{S_RB} offen")
        g.I(f"v_cmp_gt_u32 vcc, {96*4}, v{V_TID}")
        g.I(f"s_mov_b64 s[92:93], vcc")
        for j in range(4):
            g.I(f"v_mov_b32 v{G2+j}, 0")
        g.I(f"s_mov_b32 s{S_CNT}, 0x40000")
        g.lab("L_dpoll")
        g.I(f"buffer_load_dwordx2 {vr(MLv,2)}, v{a0+1}, {sr(R_WS,4)}, s{S_GJ} offen sc0 sc1")
        g.I(f"buffer_load_dwordx4 {vr(Y1,4)}, v{a0}, {sr(R_WS,4)}, s{S_T0} offen sc0 sc1")
        g.I(f"buffer_load_dwordx4 {vr(Y2,4)}, v{a0}, {sr(R_WS,4)}, s{S_T1} offen sc0 sc1")
        g.I(f"buffer_load_dwordx4 {vr(G1,4)}, v{a0}, {sr(R_WS,4)}, s{S_T2} offen sc0 sc1")
        g.I(f"s_and_b64 s[94:95], s[92:93], exec")
        g.I(f"s_cbranch_scc0 L_nog2")
        g.I(f"s_mov_b64 exec, s[92:93]")
        g.I(f"buffer_load_dwordx4 {vr(G2,4)}, v{a0}, {sr(R_WS,4)}, s{S_OFF} offen sc0 sc1")
        g.I(f"s_mov_b64 exec, -1")
        g.lab("L_nog2")
        g.I("s_waitcnt vmcnt(0)")
        mx = a0 + 8
        g.I(f"v_max3_u32 v{mx}, v{Y1}, v{Y1+1}, v{Y1+2}")
        g.I(f"v_max3_u32 v{mx+1}, v{Y1+3}, v{Y2}, v{Y2+1}")
        g.I(f"v_max3_u32 v{mx}, v{mx}, v{Y2+2}, v{Y2+3}")
        g.I(f"v_max3_u32 v{mx+1}, v{mx+1}, v{G1}, v{G1+1}")
        g.I(f"v_max3_u32 v{mx}, v{mx}, v{G1+2}, v{G1+3}")
        g.I(f"v_max3_u32 v{mx+1}, v{mx+1}, v{G2}, v{G2+1}")
        g.I(f"v_max3_u32 v{mx}, v{mx}, v{G2+2}, v{G2+3}")
        g.I(f"v_max3_u32 v{mx+1}, v{mx+1}, v{MLv}, v{MLv+1}")
        g.I(f"v_max_u32 v{mx}, v{mx}, v{mx+1}")
        g.I(f"v_cmp_eq_u32 vcc, -1, v{mx}")
        g.I("s_cbranch_vccz L_ddone")
        g.I(f"s_sub_u32 s{S_CNT}, s{S_CNT}, 1")
        g.I(f"s_cmp_lg_u32 s{S_CNT}, 0")
        g.I("s_cbranch_scc1 L_dpoll")
        g.lab("L_ddone")
        stamp(g, cfg, 9)
        M, W, Ls = a0 + 8, a0 + 9, a0 + 10
        g.I(f"v_mov_b32 v{M}, v{MLv}")
        g.nop(1)
        for dpp in ("quad_perm:[1,0,3,2]", "quad_perm:[2,3,0,1]", "row_half_mirror"):
            g.I(f"v_max_f32_dpp v{M}, v{M}, v{M} {dpp} row_mask:0xf bank_mask:0xf")
            g.nop(2)
        g.I(f"v_sub_f32 v{W}, v{MLv}, v{M}")
        g.I(f"v_mul_f32 v{W}, s{S_LOG2E}, v{W}")
        g.I(f"v_exp_f32 v{W}, v{W}")
        g.nop(1)
        g.I(f"v_mul_f32 v{Ls}, v{W}, v{MLv+1}")
        g.nop(2)
        for dpp in ("quad_perm:[1,0,3,2]", "quad_perm:[2,3,0,1]", "row_half_mirror"):
            g.I(f"v_add_f32_dpp v{Ls}, v{Ls}, v{Ls} {dpp} row_mask:0xf bank_mask:0xf")
            g.nop(2)
        c = a0 + 11
        g.I(f"v_rcp_f32 v{c}, v{Ls}")
        g.nop(1)
        g.I(f"v_fma_f32 v{M}, -v{Ls}, v{c}, 1.0")
        g.I(f"v_fma_f32 v{c}, v{M}, v{c}, v{c}")
        g.I(f"v_mul_f32 v{c}, v{c}, v{W}")
        g.I(f"v_and_b32 v{a0+1}, 0x3c, v{V_LANE}")
        g.I(f"v_add_u32 v{a0+2}, 64, v{a0+1}")
        c1, c2 = a0 + 8, a0 + 9
        g.I(f"ds_bpermute_b32 v{c1}, v{a0+1}, v{c}")
        g.I(f"ds_bpermute_b32 v{c2}, v{a0+2}, v{c}")
        for j in range(4):
            g.I(f"v_add_f32 v{G1+j}, v{G1+j}, v{G2+j}")
        g.I("s_waitcnt lgkmcnt(0)")
        for j in range(4):
            g.I(f"v_mul_f32 v{Y1+j}, v{c1}, v{Y1+j}")
        for j in range(4):
            g.I(f"v_fmac_f32 v{Y1+j}, v{c2}, v{Y2+j}")
        R8 = [Y1 + j for j in range(4)] + [G1 + j for j in range(4)]
        g.nop(2)
        for r in (4, 8):
            for x in R8:
                g.I(f"v_add_f32_dpp v{x}, v{x}, v{x} row_ror:{r} row_mask:0xf bank_mask:0xf")
        reduce_scatter_rows(g, R8)
        g.I(f"v_and_b32 v{a0}, 3, v{V_LANE}")
        g.I(f"v_lshlrev_b32 v{a0}, 4, v{a0}")
        g.I(f"v_and_b32 v{a0+1}, 1, v{V_G}")
        g.I(f"v_lshl_add_u32 v{a0}, v{a0+1}, 3, v{a0}")
        g.I(f"v_lshrrev_b32 v{a0+1}, 1, v{V_G}")
        g.I(f"v_lshl_add_u32 v{a0}, v{a0+1}, 6, v{a0}")
        g.I(f"s_lshl_b32 s{S_T0}, s{S_WAVE}, 7")
        g.I(f"v_add_u32 v{a0}, s{S_T0}, v{a0}")
        g.I(f"ds_write_b64 v{a0}, {vr(R8[0],2)} offset:{L_FIN}")
        g.I("s_waitcnt lgkmcnt(0)")
        g.I("s_barrier")
        g.I(f"s_cmp_lg_u32 s{S_WAVE}, 0")
        g.I("s_cbranch_scc1 L_end2")
        g.I(f"v_and_b32 v{a0}, 15, v{V_LANE}")
        g.I(f"v_lshlrev_b32 v{a0}, 2, v{a0}")
        for w in range(8):
            g.I(f"ds_read_b32 v{V_RING+16+w}, v{a0} offset:{L_FIN+128*w}")
            g.I(f"ds_read_b32 v{V_RING+24+w}, v{a0} offset:{L_FIN+128*w+64}")
        g.I("s_waitcnt lgkmcnt(0)")
        for step in (1, 2, 4):
            for w in range(0, 8, 2 * step):
                g.I(f"v_add_f32 v{V_RING+16+w}, v{V_RING+16+w}, v{V_RING+16+w+step}")
                g.I(f"v_add_f32 v{V_RING+24+w}, v{V_RING+24+w}, v{V_RING+24+w+step}")
        bf16_round2(g, V_RING + 16, V_RING + 24, a0 + 1)
        g.I(f"v_lshlrev_b32 v{a0+6}, 16, v{a0+6}")
        g.I(f"v_add_f32 v{a0+6}, v{a0+6}, v{V_RING+16}")
        bf16_round1(g, a0 + 6, a0 + 6, a0 + 1)
        g.I(f"v_add_f32 v{a0+6}, v{a0+6}, v{V_RING+24}")
        g.I(f"v_cvt_pk_bf16_f32 v{a0+6}, v{a0+6}, v{a0+6}")
        g.I(f"v_cmp_gt_u32 vcc, 16, v{V_LANE}")
        g.I(f"s_and_saveexec_b64 {sr(S_EX,2)}, vcc")
        g.I(f"s_lshl_b32 s{S_T2}, s{fid_sreg}, 5")
        g.I(f"buffer_store_short v{a0+6}, v{a0+5}, {sr(R_OUT,4)}, s{S_T2} offen")
        stamp(g, cfg, 5)
        g.lab("L_end2")

    g.I("s_cmp_ge_u32 s2, 32")
    g.I("s_cbranch_scc1 L_end")
    finisher(2)
    g.lab("L_end")
    g.I("s_endpgm")

    g.L.append('.section .rodata,"a"')
    g.L.append(".p2align 6")
    g.L.append(f".amdhsa_kernel {kmain}")
    g.L.append("  .amdhsa_next_free_vgpr 256")
    g.L.append("  .amdhsa_next_free_sgpr 102")
    g.L.append("  .amdhsa_accum_offset 256")
    g.L.append("  .amdhsa_group_segment_fixed_size 0")
    g.L.append("  .amdhsa_kernarg_size 96")
    g.L.append("  .amdhsa_user_sgpr_count 2")
    g.L.append("  .amdhsa_user_sgpr_kernarg_segment_ptr 1")
    g.L.append("  .amdhsa_system_sgpr_workgroup_id_x 1")
    g.L.append(".end_amdhsa_kernel")
    return g.text()


if __name__ == "__main__":
    ap = argparse.ArgumentParser()
    ap.add_argument("--nt", type=int, default=1)
    ap.add_argument("--stamp", type=int, default=0)
    ap.add_argument("--loopbar", type=int, default=1)
    ap.add_argument("--lnwave", type=int, default=0)
    ap.add_argument("--touch", type=int, default=1)
    ap.add_argument("--wq1", type=int, default=0)
    ap.add_argument("--glueff", type=int, default=0)
    ap.add_argument("--wnt", type=int, default=0)
    ap.add_argument("--hmap", type=int, default=1)
    ap.add_argument("--nocompute", type=int, default=0)
    ap.add_argument("--notail", type=int, default=0)
    ap.add_argument("--nowo", type=int, default=0)
    ap.add_argument("--noglu", type=int, default=0)
    ap.add_argument("--nowq", type=int, default=0)
    ap.add_argument("--wosched", type=str, default="{0:[0],3:[1,2],4:[3,4],5:[5,6],6:[7]}")
    ap.add_argument("--glu_at", type=int, default=1)
    ap.add_argument("--issue", type=str, default="2,2,3,6")
    ap.add_argument("-o", default="parallel_sum__mha_block_cached__glu_gated_glu__decode.s")
    cfg = ap.parse_args()
    cfg.issue_at = [int(x) for x in cfg.issue.split(",")]
    cfg.wo_sched = eval(cfg.wosched)
    assert len(cfg.issue_at) == 4
    open(cfg.o, "w").write(gen(cfg))
    print("wrote", cfg.o)
```

```python
import sys, argparse
from gen import G, vr, sr, HEADER, KNAME

S_X, S_K, S_V, S_WQ, S_WO, S_BX, S_GT, S_UP = 4, 6, 8, 10, 12, 14, 16, 18
S_DN, S_OUT, S_DBG, S_WS = 20, 22, 24, 26
R_K, R_V, R_WQ, R_WO, R_GT, R_UP, R_DN, R_X, R_WS, R_OUT, R_DBG = 28, 32, 36, 40, 44, 48, 52, 56, 60, 64, 68
S_H, S_SPLIT, S_WAVE, S_OFF, S_CNT = 72, 73, 74, 75, 76
S_SCALE, S_LOG2E, S_MASK, S_P, S_GJ, S_T0, S_T1, S_T2, S_GVALID = 78, 79, 80, 81, 82, 83, 84, 85, 86
S_PLO, S_PHI = 87, 88
S_HOFF = 90
S_RB = 91
S_EX = 96
S_TS = 98

L_XN = 0
L_QP = 1024
L_GU = 5120
L_OP = 5632
L_ML = 9728
L_YP = 10240
L_FIN = 26624
LDS_BYTES = 27648

WS_Y = 0
WS_G = 512 * 1024
WS_ML = 1024 * 1024
WS_BYTES = 1024 * 1024 + 2048 + 4096


def srd(g, r, base_lo, base_hi, nbytes):
    g.I(f"s_mov_b32 s{r}, s{base_lo}")
    g.I(f"s_and_b32 s{r+1}, s{base_hi}, 0xffff")
    g.I(f"s_mov_b32 s{r+2}, {nbytes:#x}")
    g.I(f"s_mov_b32 s{r+3}, 0x00020000")


def srd_off(g, r, base_lo, base_hi, off_sreg, nbytes):
    g.I(f"s_add_u32 s{r}, s{base_lo}, s{off_sreg}")
    g.I(f"s_addc_u32 s{r+1}, s{base_hi}, 0")
    g.I(f"s_and_b32 s{r+1}, s{r+1}, 0xffff")
    g.I(f"s_mov_b32 s{r+2}, {nbytes:#x}")
    g.I(f"s_mov_b32 s{r+3}, 0x00020000")


def bf16_round1(g, dst, src, tmp):
    g.I(f"v_cvt_pk_bf16_f32 v{tmp}, v{src}, v{src}")
    g.I(f"v_lshlrev_b32 v{dst}, 16, v{tmp}")


def bf16_round2(g, a, b, tmp):
    g.I(f"v_cvt_pk_bf16_f32 v{tmp}, v{a}, v{b}")
    g.I(f"v_lshlrev_b32 v{a}, 16, v{tmp}")
    g.I(f"v_and_b32 v{b}, s{S_MASK}, v{tmp}")


def row_allreduce(g, op, regs):
    n = len(regs)
    for r in (8, 4, 2, 1):
        for x in regs:
            g.I(f"v_{op}_dpp v{x}, v{x}, v{x} row_ror:{r} row_mask:0xf bank_mask:0xf")
        if n < 3:
            g.nop(3 - n)


def cross_row_allreduce(g, op, x, t):
    g.I(f"v_mov_b32 v{t}, v{x}")
    g.nop(2)
    g.I(f"v_permlane16_swap_b32 v{x}, v{t}")
    g.nop(1)
    g.I(f"v_{op} v{x}, v{x}, v{t}")
    g.I(f"v_mov_b32 v{t}, v{x}")
    g.nop(2)
    g.I(f"v_permlane32_swap_b32 v{x}, v{t}")
    g.nop(1)
    g.I(f"v_{op} v{x}, v{x}, v{t}")


def wave_allreduce(g, op, x, t):
    row_allreduce(g, op, [x])
    cross_row_allreduce(g, op, x, t)


def reduce_scatter_rows(g, regs):
    n = len(regs)
    h = n // 2
    g.nop(2)
    for k in range(h):
        g.I(f"v_permlane32_swap_b32 v{regs[k]}, v{regs[k+h]}")
    g.nop(1)
    for k in range(h):
        g.I(f"v_add_f32 v{regs[k]}, v{regs[k]}, v{regs[k+h]}")
    qn = h // 2
    g.nop(2)
    for k in range(qn):
        g.I(f"v_permlane16_swap_b32 v{regs[k]}, v{regs[k+qn]}")
    g.nop(1)
    for k in range(qn):
        g.I(f"v_add_f32 v{regs[k]}, v{regs[k]}, v{regs[k+qn]}")


def stamp(g, cfg, idx, wave=0):
    if not cfg.stamp:
        return
    lab = f"L_st{idx}"
    g.I(f"s_cmp_lg_u32 s{S_WAVE}, {wave}")
    g.I(f"s_cbranch_scc1 {lab}")
    g.I(f"s_memrealtime s[{S_TS}:{S_TS+1}]")
    g.I("s_waitcnt lgkmcnt(0)")
    g.I(f"v_mov_b32 v5, s{S_TS}")
    g.I(f"s_lshl_b32 s{S_TS}, s2, 6")
    g.I(f"s_add_u32 s{S_TS}, s{S_TS}, {2*1024*1024 + idx*4}")
    g.I(f"v_mov_b32 v6, s{S_TS}")
    g.I(f"global_store_dword v6, v5, s[{S_WS}:{S_WS+1}]")
    g.lab(lab)


def gen(cfg):
    D = 4
    NT = " nt" if cfg.nt else ""
    WQNT = " nt" if cfg.wnt & 1 else ""
    WONT = " nt" if cfg.wnt & 2 else ""
    GNT = " nt" if cfg.wnt & 4 else ""
    DNT = " nt" if cfg.wnt & 8 else ""
    g = G()
    V_TID, V_LANE, V_KVOFF, V_G, V_Cc, V_WOA = 0, 1, 2, 3, 4, 7
    V_Q = 8
    V_ACC = 12
    V_M, V_L = 20, 21
    V_S = 22
    V_PP = 32
    V_T = 40
    V_GT, V_UP, V_DN = 46, 50, 54
    V_XROW = 60
    V_QOFF = 61
    TMP8 = [26, 27, 28, 29, 30, 31, 58, 59]
    V_W = 64
    V_RING = 128
    LNW = cfg.lnwave

    g.L.append(HEADER.rstrip("\n"))
    g.L.append(f"; @launch grid=(256,1,1) block=(512,1,1) lds={LDS_BYTES}")
    kmain = KNAME
    g.L.append('.amdgcn_target "amdgcn-amd-amdhsa--gfx950"')
    g.L.append(".text")
    g.L.append(f".globl {kmain}")
    g.L.append(".p2align 8")
    g.L.append(f".type {kmain},@function")
    g.lab(kmain)
    g.I("s_cmp_ge_u32 s2, 256")
    g.I("s_cbranch_scc1 L_end")
    g.I("s_load_dwordx16 s[4:19], s[0:1], 0")
    g.I("s_load_dwordx8 s[20:27], s[0:1], 64")
    g.I(f"v_and_b32 v{V_LANE}, 63, v{V_TID}")
    g.I(f"v_lshrrev_b32 v{V_T}, 6, v{V_TID}")
    g.I(f"v_lshrrev_b32 v{V_G}, 4, v{V_LANE}")
    g.I(f"v_readfirstlane_b32 s{S_WAVE}, v{V_T}")
    g.I(f"v_and_b32 v{V_Cc}, 15, v{V_LANE}")
    g.I(f"s_mov_b32 s{S_SCALE}, 0x3db504f3")
    g.I(f"s_mov_b32 s{S_LOG2E}, 0x3fb8aa3b")
    g.I(f"s_mov_b32 s{S_MASK}, 0xffff0000")
    g.I(f"s_mov_b32 s{S_PLO}, 0x05040100")
    g.I(f"s_mov_b32 s{S_PHI}, 0x07060302")
    g.I(f"s_and_b32 s{S_T0}, s2, 7")
    g.I(f"s_lshr_b32 s{S_T1}, s2, 3")
    g.I(f"s_and_b32 s{S_T2}, s{S_T1}, 3")
    if cfg.hmap == 0:
        g.I(f"s_lshl_b32 s{S_H}, s{S_T0}, 2")
        g.I(f"s_add_u32 s{S_H}, s{S_H}, s{S_T2}")
    else:
        g.I(f"s_lshl_b32 s{S_H}, s{S_T2}, 1")
        g.I(f"s_add_u32 s{S_H}, s{S_H}, s{S_T0}")
        g.I(f"s_and_b32 s{S_H}, s{S_H}, 7")
        g.I(f"s_lshl_b32 s{S_T2}, s{S_T2}, 3")
        g.I(f"s_add_u32 s{S_H}, s{S_H}, s{S_T2}")
    g.I(f"s_lshr_b32 s{S_SPLIT}, s{S_T1}, 2")
    g.I(f"s_lshl_b32 s{S_P}, s{S_H}, 3")
    g.I(f"s_add_u32 s{S_P}, s{S_P}, s{S_SPLIT}")
    g.I(f"s_lshl_b32 s{S_HOFF}, s{S_H}, 2")
    g.I(f"s_mul_i32 s{S_GJ}, s{S_T0}, 28")
    g.I(f"s_add_u32 s{S_GJ}, s{S_GJ}, s{S_T1}")
    g.I(f"s_cmp_lt_u32 s{S_T1}, 28")
    g.I(f"s_cselect_b32 s{S_GVALID}, 1, 0")
    g.I(f"s_cselect_b32 s{S_GJ}, s{S_GJ}, 0")
    V_A = 56
    g.I(f"v_lshlrev_b32 v{V_WOA}, 4, v{V_LANE}")
    g.I(f"v_lshlrev_b32 v{V_A+1}, 14, v{V_G}")
    g.I(f"v_lshl_add_u32 v{V_A+1}, v{V_Cc}, 4, v{V_A+1}")
    g.I(f"s_lshl_b32 s{S_T0}, s{S_WAVE}, 16")
    g.I(f"s_lshl_b32 s{S_T1}, s{S_H}, 8")
    g.I(f"s_add_u32 s{S_RB}, s{S_T0}, s{S_T1}")
    g.I(f"s_lshl_b32 s{S_T1}, s{S_WAVE}, 12")
    g.I(f"v_add_u32 v{V_KVOFF}, s{S_T1}, v{V_WOA}")
    g.I(f"s_lshl_b32 s{S_T2}, s{S_P}, 20")
    g.I("s_waitcnt lgkmcnt(0)")
    stamp(g, cfg, 0)
    if cfg.touch:
        TB = 92
        g.I(f"s_mov_b64 s[{TB}:{TB+1}], s[{S_WQ}:{S_WQ+1}]")
        g.I(f"s_mov_b32 s{TB+2}, 0x200000")
        def sel(w, ptr, off_code):
            g.I(f"s_cmp_eq_u32 s{S_WAVE}, {w}")
            g.I(f"s_cselect_b64 s[{TB}:{TB+1}], s[{ptr}:{ptr+1}], s[{TB}:{TB+1}]")
            g.I(f"s_cselect_b32 s{TB+2}, {off_code}, s{TB+2}")
        g.I(f"s_lshl_b32 s{TB+3}, s{S_H}, 17")
        sel(1, S_WO, f"s{TB+3}")
        sel(2, S_GT, "0")
        sel(3, S_UP, "0")
        g.I(f"s_lshl_b32 s{TB+3}, s{S_GJ}, 13")
        sel(4, S_DN, f"s{TB+3}")
        sel(5, S_WS, "0")
        sel(6, S_DBG, "0")
        sel(7, S_OUT, "0")
        g.I(f"v_mov_b32 v6, s{TB+2}")
        g.I(f"global_load_dword v5, v6, s[{TB}:{TB+1}]")
    srd(g, R_WQ, S_WQ, S_WQ + 1, 512 * 8192)
    srd(g, R_X, S_X, S_X + 1, 1024)
    srd_off(g, R_K, S_K, S_K + 1, S_T2, 0x100000)
    srd_off(g, R_V, S_V, S_V + 1, S_T2, 0x100000)
    g.I(f"s_cmp_lg_u32 s{S_WAVE}, {LNW}")
    g.I("s_cbranch_scc1 L_loads")
    if cfg.noln:
        g.I("s_branch L_loads")
    V_XR = V_T
    XF = V_PP
    g.I(f"buffer_load_dwordx4 {vr(V_XR,4)}, v{V_WOA}, {sr(R_X,4)}, 0 offen")
    g.I("s_waitcnt vmcnt(0)")
    stamp(g, cfg, 6, LNW)
    for j in range(4):
        g.I(f"v_lshlrev_b32 v{XF+2*j}, 16, v{V_XR+j}")
        g.I(f"v_and_b32 v{XF+2*j+1}, s{S_MASK}, v{V_XR+j}")
    t0, t1, t2, t3 = V_S, V_S + 1, V_S + 2, V_S + 3
    g.I(f"v_add_f32 v{t0}, v{XF}, v{XF+1}")
    g.I(f"v_add_f32 v{t1}, v{XF+2}, v{XF+3}")
    g.I(f"v_add_f32 v{t2}, v{XF+4}, v{XF+5}")
    g.I(f"v_add_f32 v{t3}, v{XF+6}, v{XF+7}")
    g.I(f"v_add_f32 v{t0}, v{t0}, v{t1}")
    g.I(f"v_add_f32 v{t2}, v{t2}, v{t3}")
    g.I(f"v_add_f32 v{t0}, v{t0}, v{t2}")
    g.nop(2)
    wave_allreduce(g, "add_f32", t0, t1)
    g.I(f"v_mul_f32 v{t0}, 0x3b000000, v{t0}")
    for j in range(8):
        g.I(f"v_sub_f32 v{12+j}, v{XF+j}, v{t0}")
    g.I(f"v_mul_f32 v{t1}, v12, v12")
    g.I(f"v_mul_f32 v{t2}, v13, v13")
    for j in range(2, 8, 2):
        g.I(f"v_fmac_f32 v{t1}, v{12+j}, v{12+j}")
        g.I(f"v_fmac_f32 v{t2}, v{13+j}, v{13+j}")
    g.I(f"v_add_f32 v{t1}, v{t1}, v{t2}")
    g.nop(2)
    wave_allreduce(g, "add_f32", t1, t2)
    g.I(f"v_mul_f32 v{t1}, 0x3b000000, v{t1}")
    bf16_round2(g, t0, t1, t2)
    g.I(f"v_add_f32 v{t1}, 0x3727c5ac, v{t1}")
    for j in range(8):
        g.I(f"v_sub_f32 v{XF+j}, v{XF+j}, v{t0}")
    bf16_round1(g, t1, t1, t2)
    g.I(f"v_sqrt_f32 v{t1}, v{t1}")
    for j in range(0, 8, 2):
        bf16_round2(g, XF + j, XF + j + 1, t2)
    bf16_round1(g, t1, t1, t2)
    g.I(f"v_rcp_f32 v{t3}, v{t1}")
    g.nop(1)
    for j in range(8):
        g.I(f"v_mul_f32 v{12+j}, v{XF+j}, v{t3}")
    for j in range(8):
        g.I(f"v_fma_f32 v{26+(j%4)}, -v{12+j}, v{t1}, v{XF+j}")
        g.I(f"v_fma_f32 v{XF+j}, v{26+(j%4)}, v{t3}, v{12+j}")
    XP = V_Q
    for j in range(4):
        g.I(f"v_cvt_pk_bf16_f32 v{XP+j}, v{XF+2*j}, v{XF+2*j+1}")
    g.I(f"ds_write_b128 v{V_WOA}, {vr(XP,4)} offset:{L_XN}")
    g.lab("L_loads")

    def issue_block(slot, tag):
        kb = V_RING + slot * 32
        for i in range(4):
            g.vm(f"buffer_load_dwordx4 {vr(kb+4*i,4)}, v{V_KVOFF}, {sr(R_K,4)}, s{S_OFF} offen offset:{i*1024}{NT}", tag)
        for i in range(4):
            g.vm(f"buffer_load_dwordx4 {vr(kb+16+4*i,4)}, v{V_KVOFF}, {sr(R_V,4)}, s{S_OFF} offen offset:{i*1024}{NT}", tag)
        g.I(f"s_add_u32 s{S_OFF}, s{S_OFF}, 32768")

    nissued = 0

    def maybe_issue(point):
        nonlocal nissued
        while nissued < D and cfg.issue_at[nissued] == point:
            issue_block(nissued, f"b{nissued}")
            nissued += 1

    g.I(f"s_mov_b32 s{S_OFF}, 0")
    maybe_issue(0)
    for k in range(8):
        g.I(f"s_add_u32 s{S_T0}, s{S_SPLIT}, {k}")
        g.I(f"s_and_b32 s{S_T0}, s{S_T0}, 7")
        g.I(f"s_lshl_b32 s{S_T0}, s{S_T0}, 19")
        g.I(f"s_add_u32 s{S_T0}, s{S_T0}, s{S_RB}")
        g.I(f"s_add_u32 s{S_T1}, s{S_T0}, 8192")
        if not cfg.nowq and not (cfg.wq1 and k > 0):
            g.vm(f"buffer_load_dwordx4 {vr(V_W+8*k,4)}, v{V_A+1}, {sr(R_WQ,4)}, s{S_T0} offen{WQNT}", f"wq{k//2}")
            g.vm(f"buffer_load_dwordx4 {vr(V_W+8*k+4,4)}, v{V_A+1}, {sr(R_WQ,4)}, s{S_T1} offen{WQNT}", f"wq{k//2}")
        if k == 0:
            maybe_issue(1)
    maybe_issue(2)
    srd(g, R_GT, S_GT, S_GT + 1, 512 * 3584)
    srd(g, R_UP, S_UP, S_UP + 1, 512 * 3584)
    srd(g, R_DN, S_DN, S_DN + 1, 1792 * 1024)
    srd(g, R_WS, S_WS, S_WS + 1, WS_BYTES)
    srd(g, R_OUT, S_OUT, S_OUT + 1, 1024)
    srd(g, R_DBG, S_DBG, S_DBG + 1, 256)
    g.I(f"s_lshl_b32 s{S_T0}, s{S_H}, 17")
    srd_off(g, R_WO, S_WO, S_WO + 1, S_T0, 0x20000)
    XNP = V_ACC
    g.I(f"s_lshl_b32 s{S_T0}, s{S_WAVE}, 4")
    g.I(f"v_lshlrev_b32 v{V_A}, 2, v{V_G}")
    g.I(f"v_add_u32 v{V_A}, s{S_T0}, v{V_A}")
    for k in range(8):
        g.I(f"s_add_u32 s{S_T0}, s{S_SPLIT}, {k}")
        g.I(f"s_and_b32 s{S_T0}, s{S_T0}, 7")
        g.I(f"s_lshl_b32 s{S_T0}, s{S_T0}, 7")
        g.I(f"v_add_u32 v{XNP+k}, s{S_T0}, v{V_A}")
    g.I(f"v_lshlrev_b32 v{V_A+2}, 1, v{V_TID}")
    g.I("s_waitcnt lgkmcnt(0)")
    g.I("s_barrier")
    stamp(g, cfg, 8)
    for k in range(8):
        g.I(f"ds_read_b32 v{XNP+k}, v{XNP+k} offset:{L_XN}")
    g.I(f"ds_read_u16 v{V_XROW}, v{V_A+2} offset:{L_XN}")
    maybe_issue(3)
    ta, tb, tc, td = 26, 27, 28, 29
    g.I(f"v_and_b32 v{ta}, 1, v{V_G}")
    g.I(f"v_lshlrev_b32 v{ta}, 3, v{ta}")
    g.I(f"v_lshrrev_b32 v{tb}, 1, v{V_G}")
    g.I(f"v_lshl_add_u32 v{ta}, v{tb}, 4, v{ta}")
    g.I(f"v_lshl_add_u32 v{V_QOFF}, v{V_Cc}, 5, v{ta}")
    g.I("s_waitcnt lgkmcnt(0)")
    g.I(f"v_lshlrev_b32 v{V_XROW}, 16, v{V_XROW}")
    QA = V_PP
    for k in range(8):
        if k % 2 == 0:
            g.wait_tag(f"wq{k//2}")
        for j in range(4):
            A, B = V_W + 8 * k + j, V_W + 8 * k + 4 + j
            lo, hi = (ta, tb) if j % 2 == 0 else (tc, td)
            g.I(f"v_perm_b32 v{lo}, v{B}, v{A}, s{S_PLO}")
            g.I(f"v_perm_b32 v{hi}, v{B}, v{A}, s{S_PHI}")
            s2a = "0" if k == 0 else f"v{QA+2*j}"
            s2b = "0" if k == 0 else f"v{QA+2*j+1}"
            g.I(f"v_dot2_f32_bf16 v{QA+2*j}, v{lo}, v{XNP+k}, {s2a}")
            g.I(f"v_dot2_f32_bf16 v{QA+2*j+1}, v{hi}, v{XNP+k}, {s2b}")
        if k == 3:
            maybe_issue(4)
    g.nop(1)
    reduce_scatter_rows(g, [QA + j for j in range(8)])
    g.I(f"s_lshl_b32 s{S_T0}, s{S_WAVE}, 9")
    g.I(f"v_add_u32 v{ta}, s{S_T0}, v{V_QOFF}")
    g.I(f"ds_write_b64 v{ta}, {vr(QA,2)} offset:{L_QP}")
    g.I(f"v_lshlrev_b32 v{tb}, 5, v{V_Cc}")
    maybe_issue(5)
    g.I("s_waitcnt lgkmcnt(0)")
    g.I("s_barrier")
    stamp(g, cfg, 7)
    for w in range(8):
        g.I(f"ds_read_b128 {vr(V_W+8*w,4)}, v{tb} offset:{L_QP+512*w}")
        g.I(f"ds_read_b128 {vr(V_W+8*w+4,4)}, v{tb} offset:{L_QP+512*w+16}")
    g.I(f"v_mov_b32 v{V_M}, 0xff800000")
    g.I(f"v_mov_b32 v{V_L}, 0")
    for j in range(8):
        g.I(f"v_mov_b32 v{V_ACC+j}, 0")
    g.I(f"s_lshl_b32 s{S_T0}, s{S_WAVE}, 11")
    g.I(f"v_add_u32 v{V_WOA}, s{S_T0}, v{V_WOA}")
    for step in (1, 2, 4):
        g.I(f"s_waitcnt lgkmcnt({ {1: 0, 2: 0, 4: 0}[step] })") if step == 1 else None
        for w in range(0, 8, 2 * step):
            for j in range(8):
                g.I(f"v_add_f32 v{V_W+8*w+j}, v{V_W+8*w+j}, v{V_W+8*(w+step)+j}")
    for j in range(4):
        g.I(f"v_cvt_pk_bf16_f32 v{V_Q+j}, v{V_W+2*j}, v{V_W+2*j+1}")
    maybe_issue(6)
    assert nissued == D
    stamp(g, cfg, 1)

    def compute_block(slot):
        if cfg.nocompute:
            return
        kb = V_RING + slot * 32
        vb = kb + 16
        S = V_S
        for j in range(4):
            for i in range(4):
                src2 = "0" if j == 0 else f"v{S+i}"
                g.I(f"v_dot2_f32_bf16 v{S+i}, v{kb+4*i+j}, v{V_Q+j}, {src2}")
        t = V_T
        row_allreduce(g, "add_f32", [S + i for i in range(4)])
        g.I(f"v_cvt_pk_bf16_f32 v{t}, v{S}, v{S+1}")
        g.I(f"v_cvt_pk_bf16_f32 v{t+1}, v{S+2}, v{S+3}")
        g.I(f"v_lshlrev_b32 v{S}, 16, v{t}")
        g.I(f"v_and_b32 v{S+1}, s{S_MASK}, v{t}")
        g.I(f"v_lshlrev_b32 v{S+2}, 16, v{t+1}")
        g.I(f"v_and_b32 v{S+3}, s{S_MASK}, v{t+1}")
        for i in range(4):
            g.I(f"v_mul_f32 v{S+i}, s{S_SCALE}, v{S+i}")
        g.I(f"v_cvt_pk_bf16_f32 v{t}, v{S}, v{S+1}")
        g.I(f"v_cvt_pk_bf16_f32 v{t+1}, v{S+2}, v{S+3}")
        g.I(f"v_lshlrev_b32 v{S}, 16, v{t}")
        g.I(f"v_and_b32 v{S+1}, s{S_MASK}, v{t}")
        g.I(f"v_lshlrev_b32 v{S+2}, 16, v{t+1}")
        g.I(f"v_and_b32 v{S+3}, s{S_MASK}, v{t+1}")
        mn, al, mb = t + 2, t + 4, t + 3
        g.I(f"v_max3_f32 v{mn}, v{V_M}, v{S}, v{S+1}")
        g.I(f"v_max3_f32 v{mn}, v{mn}, v{S+2}, v{S+3}")
        g.I(f"v_sub_f32 v{al}, v{V_M}, v{mn}")
        g.I(f"v_mul_f32 v{mb}, s{S_LOG2E}, v{mn}")
        g.I(f"v_mul_f32 v{al}, s{S_LOG2E}, v{al}")
        for i in range(4):
            g.I(f"v_fma_f32 v{V_PP+i}, v{S+i}, s{S_LOG2E}, -v{mb}")
        g.I(f"v_exp_f32 v{al}, v{al}")
        for i in range(4):
            g.I(f"v_exp_f32 v{V_PP+i}, v{V_PP+i}")
        g.I(f"v_mov_b32 v{V_M}, v{mn}")
        for pr in range(2):
            for j in range(4):
                A, B = vb + 8 * pr + j, vb + 8 * pr + 4 + j
                g.I(f"v_perm_b32 v{kb+8*pr+2*j}, v{B}, v{A}, s{S_PLO}")
                g.I(f"v_perm_b32 v{kb+8*pr+2*j+1}, v{B}, v{A}, s{S_PHI}")
        g.I(f"v_mul_f32 v{V_L}, v{V_L}, v{al}")
        for j in range(4):
            g.I(f"v_pk_mul_f32 {vr(V_ACC+2*j,2)}, {vr(V_ACC+2*j,2)}, {vr(al,2)} op_sel_hi:[1,0]")
        g.I(f"v_cvt_pk_bf16_f32 v{V_PP+4}, v{V_PP}, v{V_PP+1}")
        g.I(f"v_cvt_pk_bf16_f32 v{V_PP+5}, v{V_PP+2}, v{V_PP+3}")
        g.I(f"v_add_f32 v{t}, v{V_PP}, v{V_PP+1}")
        g.I(f"v_add_f32 v{t+1}, v{V_PP+2}, v{V_PP+3}")
        g.I(f"v_add_f32 v{t}, v{t}, v{t+1}")
        g.I(f"v_add_f32 v{V_L}, v{V_L}, v{t}")
        for pr in range(2):
            for jj in range(8):
                g.I(f"v_dot2_f32_bf16 v{V_ACC+jj}, v{kb+8*pr+jj}, v{V_PP+4+pr}, v{V_ACC+jj}")

    def glu_part1():
        if cfg.noglu:
            return
        g.wait_tag("gu")
        for half, src in ((0, V_GT), (1, V_UP)):
            R = TMP8
            for j in range(4):
                g.I(f"v_lshlrev_b32 v{R[2*j]}, 16, v{src+j}")
                g.I(f"v_and_b32 v{R[2*j+1]}, s{S_MASK}, v{src+j}")
            for j in range(8):
                g.I(f"v_mul_f32 v{R[j]}, v{R[j]}, v{V_XROW}")
            reduce_scatter_rows(g, R)
            g.nop(2)
            row_allreduce(g, "add_f32", [R[0], R[1]])
            g.I(f"v_lshlrev_b32 v{R[2]}, 6, v{V_G}")
            g.I(f"s_lshl_b32 s{S_T0}, s{S_WAVE}, 2")
            g.I(f"v_add_u32 v{R[2]}, s{S_T0}, v{R[2]}")
            g.I(f"v_cmp_eq_u32 vcc, 0, v{V_Cc}")
            g.I(f"s_and_saveexec_b64 {sr(S_EX,2)}, vcc")
            g.I(f"ds_write_b32 v{R[2]}, v{R[0]} offset:{L_GU+256*half}")
            g.I(f"ds_write_b32 v{R[2]}, v{R[1]} offset:{L_GU+256*half+32}")
            g.I(f"s_mov_b64 exec, {sr(S_EX,2)}")
        g.I("s_waitcnt lgkmcnt(0)")

    def glu_part2():
        if cfg.noglu:
            return
        ta, tb = 62, 63
        R = TMP8
        g.I(f"v_lshrrev_b32 v{ta}, 3, v{V_LANE}")
        g.I(f"v_lshlrev_b32 v{ta}, 5, v{ta}")
        g.I(f"ds_read_b128 {vr(V_GT,4)}, v{ta} offset:{L_GU}")
        g.I(f"ds_read_b128 {vr(V_GT+4,4)}, v{ta} offset:{L_GU+16}")
        g.I(f"ds_read_b128 {vr(26,4)}, v{ta} offset:{L_GU+256}")
        g.I(f"ds_read_b64 {vr(30,2)}, v{ta} offset:{L_GU+272}")
        g.I(f"ds_read_b64 {vr(58,2)}, v{ta} offset:{L_GU+280}")
        g.I("s_waitcnt lgkmcnt(0)")
        for j in range(1, 8):
            g.I(f"v_add_f32 v{V_GT}, v{V_GT}, v{V_GT+j}")
            g.I(f"v_add_f32 v{R[0]}, v{R[0]}, v{R[j]}")
        ga, ua = V_GT, R[0]
        bf16_round2(g, ga, ua, tb)
        e = V_GT + 1
        g.I(f"v_mul_f32 v{e}, s{S_LOG2E}, v{ga}")
        g.I(f"v_sub_f32 v{e}, 0, v{e}")
        g.I(f"v_exp_f32 v{e}, v{e}")
        g.nop(1)
        g.I(f"v_add_f32 v{e}, 1.0, v{e}")
        g.I(f"v_rcp_f32 v{e+1}, v{e}")
        g.nop(1)
        g.I(f"v_fma_f32 v{e+2}, -v{e}, v{e+1}, 1.0")
        g.I(f"v_fma_f32 v{e+1}, v{e+2}, v{e+1}, v{e+1}")
        bf16_round1(g, e + 1, e + 1, tb)
        g.I(f"v_mul_f32 v{e+1}, v{e+1}, v{ua}")
        bf16_round1(g, e + 1, e + 1, tb)
        hh = e + 1
        g.wait_tag("dn")
        for j in range(4):
            g.I(f"v_lshlrev_b32 v{R[2*j]}, 16, v{V_DN+j}")
            g.I(f"v_and_b32 v{R[2*j+1]}, s{S_MASK}, v{V_DN+j}")
        for j in range(8):
            g.I(f"v_mul_f32 v{R[j]}, v{R[j]}, v{hh}")
        g.nop(2)
        for j in range(8):
            g.I(f"v_add_f32_dpp v{R[j]}, v{R[j]}, v{R[j]} row_ror:8 row_mask:0xf bank_mask:0xf")
        reduce_scatter_rows(g, R)
        g_addr(ta, tb)
        g.I(f"s_cmp_eq_u32 s{S_GVALID}, 0")
        g.I("s_cbranch_scc1 L_skip_glu")
        g.I(f"s_and_saveexec_b64 {sr(S_EX,2)}, vcc")
        g.I(f"buffer_store_dwordx2 {vr(R[0],2)}, v{tb}, {sr(R_WS,4)}, s{S_T0} offen sc0 sc1")
        g.I(f"s_mov_b64 exec, {sr(S_EX,2)}")
        g.lab("L_skip_glu")

    def glu_loads():
        if cfg.noglu:
            return
        ta = 62
        g.I(f"s_movk_i32 s{S_T1}, 3584")
        if cfg.glueff:
            g.I(f"v_lshrrev_b32 v{ta}, 3, v{V_TID}")
            g.I(f"v_mul_lo_u32 v{ta}, v{ta}, s{S_T1}")
            g.I(f"v_and_b32 v63, 7, v{V_LANE}")
            g.I(f"v_lshl_add_u32 v{ta}, v63, 4, v{ta}")
            g.I(f"s_and_b32 s{S_T0}, s{S_GJ}, 7")
            g.I(f"s_mul_i32 s{S_T0}, s{S_T0}, {64*3584}")
            g.I(f"s_lshr_b32 s{S_T1}, s{S_GJ}, 3")
            g.I(f"s_lshl_b32 s{S_T1}, s{S_T1}, 7")
            g.I(f"s_add_u32 s{S_T1}, s{S_T1}, s{S_T0}")
        else:
            g.I(f"v_mul_lo_u32 v{ta}, v{V_TID}, s{S_T1}")
            g.I(f"s_lshl_b32 s{S_T1}, s{S_GJ}, 4")
        g.vm(f"buffer_load_dwordx4 {vr(V_GT,4)}, v{ta}, {sr(R_GT,4)}, s{S_T1} offen{GNT}", "gu")
        g.vm(f"buffer_load_dwordx4 {vr(V_UP,4)}, v{ta}, {sr(R_UP,4)}, s{S_T1} offen{GNT}", "gu")
        g.I(f"v_lshrrev_b32 v63, 3, v{V_LANE}")
        g.I(f"v_lshlrev_b32 v63, 10, v63")
        g.I(f"v_and_b32 v59, 7, v{V_LANE}")
        g.I(f"v_lshl_add_u32 v63, v59, 4, v63")
        g.I(f"s_lshl_b32 s{S_T1}, s{S_GJ}, 13")
        g.I(f"s_lshl_b32 s{S_T0}, s{S_WAVE}, 7")
        g.I(f"s_add_u32 s{S_T1}, s{S_T1}, s{S_T0}")
        g.vm(f"buffer_load_dwordx4 {vr(V_DN,4)}, v63, {sr(R_DN,4)}, s{S_T1} offen{DNT}", "dn")

    def wo_perm():
        for k in range(8):
            for j in range(4):
                A, B = V_W + 8 * k + j, V_W + 8 * k + 4 + j
                tt = V_T + (j % 2)
                g.I(f"v_perm_b32 v{tt}, v{B}, v{A}, s{S_PLO}")
                g.I(f"v_perm_b32 v{B}, v{B}, v{A}, s{S_PHI}")
                g.I(f"v_mov_b32 v{A}, v{tt}")

    def wo_loads(k):
        if cfg.nowo:
            return
        g.I(f"s_add_u32 s{S_T2}, s{S_SPLIT}, {k}")
        g.I(f"s_and_b32 s{S_T2}, s{S_T2}, 7")
        g.I(f"s_lshl_b32 s{S_T2}, s{S_T2}, 14")
        g.vm(f"buffer_load_dwordx4 {vr(V_W+8*k,4)}, v{V_WOA}, {sr(R_WO,4)}, s{S_T2} offen{WONT}", "wo")
        g.vm(f"buffer_load_dwordx4 {vr(V_W+8*k+4,4)}, v{V_WOA}, {sr(R_WO,4)}, s{S_T2} offen offset:1024{WONT}", "wo")

    def y_addr(dst, tmp):
        g.I(f"v_lshrrev_b32 v{dst}, 3, v{V_LANE}")
        g.I(f"v_lshlrev_b32 v{dst}, 15, v{dst}")
        g.I(f"v_and_b32 v{tmp}, 7, v{V_LANE}")
        g.I(f"v_lshl_add_u32 v{dst}, v{tmp}, 4, v{dst}")

    def g_addr(ta, tb):
        g.I(f"v_and_b32 v{ta}, 7, v{V_LANE}")
        g.I(f"v_lshrrev_b32 v{tb}, 2, v{ta}")
        g.I(f"v_lshlrev_b32 v{tb}, 15, v{tb}")
        g.I(f"v_and_b32 v{ta}, 3, v{ta}")
        g.I(f"v_lshl_add_u32 v{tb}, v{ta}, 5, v{tb}")
        g.I(f"v_and_b32 v{ta}, 1, v{V_G}")
        g.I(f"v_lshl_add_u32 v{tb}, v{ta}, 3, v{tb}")
        g.I(f"v_lshrrev_b32 v{ta}, 1, v{V_G}")
        g.I(f"v_lshl_add_u32 v{tb}, v{ta}, 4, v{tb}")
        g.I(f"s_lshl_b32 s{S_T0}, s{S_WAVE}, 16")
        g.I(f"s_lshl_b32 s{S_T1}, s{S_GJ}, 7")
        g.I(f"s_add_u32 s{S_T0}, s{S_T0}, s{S_T1}")
        g.I(f"s_add_u32 s{S_T0}, s{S_T0}, {WS_G}")
        g.I(f"v_and_b32 v{ta}, 8, v{V_LANE}")
        g.I(f"v_cmp_eq_u32 vcc, 0, v{ta}")

    def clears():
        if cfg.noclr:
            return
        SN = 28
        for j in range(4):
            g.I(f"v_mov_b32 v{SN+j}, -1")
        g.I(f"s_cmp_lg_u32 s{S_WAVE}, 0")
        g.I("s_cbranch_scc1 L_skip_yclr")
        y_addr(62, 63)
        g.I(f"s_lshl_b32 s{S_T0}, s{S_P}, 7")
        g.I(f"s_add_u32 s{S_T1}, s{S_T0}, {8*32768}")
        g.I(f"buffer_store_dwordx4 {vr(SN,4)}, v62, {sr(R_WS,4)}, s{S_T0} offen sc0 sc1")
        g.I(f"buffer_store_dwordx4 {vr(SN,4)}, v62, {sr(R_WS,4)}, s{S_T1} offen sc0 sc1")
        g.I(f"s_lshl_b32 s{S_T1}, s{S_P}, 3")
        g.I(f"s_add_u32 s{S_T1}, s{S_T1}, {WS_ML}")
        g.I(f"v_mov_b32 v63, 0")
        g.I("s_mov_b64 exec, 1")
        g.I(f"buffer_store_dwordx2 {vr(SN,2)}, v63, {sr(R_WS,4)}, s{S_T1} offen sc0 sc1")
        g.I("s_mov_b64 exec, -1")
        g.lab("L_skip_yclr")

    for j in range(4):
        g.wait_tag(f"b{j}")
        compute_block(j)
        if cfg.loopbar:
            g.I("s_barrier")
        if j == 0:
            clears()
        issue_block(j, f"b{j}")
        for k in cfg.wo_sched.get(j, []):
            wo_loads(k)
        if j == cfg.glu_at:
            glu_loads()
    for j in range(4):
        g.wait_tag(f"b{j}")
        compute_block(j)
        if j == 2:
            glu_part1()
        if cfg.loopbar:
            g.I("s_barrier")
        issue_block(j, f"b{j}")
        for k in cfg.wo_sched.get(4 + j, []):
            wo_loads(k)
        if j == 3:
            glu_part2()
    for j in range(4):
        g.wait_tag(f"b{j}")
        compute_block(j)
        if cfg.loopbar:
            g.I("s_barrier")
        issue_block(j, f"b{j}")
    g.wait_tag("wo")
    wo_perm()
    g.I(f"s_mov_b32 s{S_CNT}, 5")
    g.lab("L_loop")
    if cfg.stamp:
        g.I(f"s_cmp_lg_u32 s{S_WAVE}, 0")
        g.I(f"s_cbranch_scc1 L_stl")
        g.I(f"s_memrealtime s[{S_TS}:{S_TS+1}]")
        g.I("s_waitcnt lgkmcnt(0)")
        g.I(f"v_mov_b32 v5, s{S_TS}")
        g.I(f"s_lshl_b32 s{S_TS}, s2, 6")
        g.I(f"s_lshl_b32 s{S_TS+1}, s{S_CNT}, 2")
        g.I(f"s_sub_u32 s{S_TS}, s{S_TS}, s{S_TS+1}")
        g.I(f"s_add_u32 s{S_TS}, s{S_TS}, {2*1024*1024 + 15*4}")
        g.I(f"v_mov_b32 v6, s{S_TS}")
        g.I(f"global_store_dword v6, v5, s[{S_WS}:{S_WS+1}]")
        g.lab("L_stl")
    for b in range(D):
        g.I(f"s_waitcnt vmcnt({8*(D-1)})")
        compute_block(b)
        if cfg.loopbar and (b % cfg.loopbar) == 0:
            g.I("s_barrier")
        if b == 0 and not cfg.noclr:
            g.I(f"s_cmp_lg_u32 s{S_CNT}, 5")
            g.I("s_cbranch_scc1 L_skip_sig")
            g.I(f"s_cmp_lg_u32 s{S_WAVE}, 0")
            g.I("s_cbranch_scc1 L_skip_sig")
            g.I(f"v_mov_b32 v62, 1")
            g.I(f"v_mov_b32 v63, 0")
            g.I("s_mov_b64 exec, 1")
            g.I(f"buffer_atomic_add v62, v63, {sr(R_DBG,4)}, s{S_HOFF} offen")
            g.I("s_mov_b64 exec, -1")
            g.lab("L_skip_sig")
        issue_block(b, f"b{b}")
    g.I(f"s_sub_u32 s{S_CNT}, s{S_CNT}, 1")
    g.I(f"s_cmp_lg_u32 s{S_CNT}, 1")
    g.I("s_cbranch_scc1 L_nochk")
    g.I(f"v_lshlrev_b32 v62, 2, v{V_LANE}")
    g.I(f"v_and_b32 v62, 0x7f, v62")
    g.I(f"buffer_load_dword v63, v62, {sr(R_DBG,4)}, 0 offen sc0 sc1")
    g.lab("L_nochk")
    g.I(f"s_cmp_lg_u32 s{S_CNT}, 0")
    g.I("s_cbranch_scc1 L_loop")
    g.wait_all()
    stamp(g, cfg, 2)
    if cfg.notail:
        g.I("s_branch L_end")
    t = V_T
    mw = t
    g.I(f"v_mov_b32 v{mw}, v{V_M}")
    cross_row_allreduce(g, "max_f32", mw, t + 1)
    g.I(f"v_sub_f32 v{t+2}, v{V_M}, v{mw}")
    g.I(f"v_mul_f32 v{t+2}, s{S_LOG2E}, v{t+2}")
    g.I(f"v_exp_f32 v{t+2}, v{t+2}")
    g.nop(1)
    g.I(f"v_mul_f32 v{V_L}, v{V_L}, v{t+2}")
    for j in range(8):
        g.I(f"v_mul_f32 v{V_ACC+j}, v{V_ACC+j}, v{t+2}")
    cross_row_allreduce(g, "add_f32", V_L, t + 1)
    reduce_scatter_rows(g, [V_ACC + j for j in range(8)])
    g.I(f"s_lshl_b32 s{S_T0}, s{S_WAVE}, 9")
    g.I(f"v_add_u32 v{t+3}, s{S_T0}, v{V_QOFF}")
    g.I(f"ds_write_b64 v{t+3}, {vr(V_ACC,2)} offset:{L_OP}")
    g.I(f"v_mov_b32 v{t+1}, v{V_L}")
    g.I(f"s_lshl_b32 s{S_T0}, s{S_WAVE}, 3")
    g.I(f"v_mov_b32 v{t+3}, s{S_T0}")
    g.I(f"ds_write_b64 v{t+3}, {vr(t,2)} offset:{L_ML}")
    g.I(f"v_mov_b32 v{t+3}, 0")
    g.I(f"v_add_u32 v{t+4}, s{S_SPLIT}, v{V_LANE}")
    g.I(f"v_and_b32 v{t+4}, 7, v{t+4}")
    g.I(f"v_lshlrev_b32 v{t+4}, 6, v{t+4}")
    g.I(f"s_lshl_b32 s{S_T0}, s{S_WAVE}, 3")
    g.I(f"v_add_u32 v{t+4}, s{S_T0}, v{t+4}")
    g.I("s_waitcnt lgkmcnt(0)")
    g.I("s_barrier")
    ML = 24
    for k in range(4):
        g.I(f"ds_read_b128 {vr(ML+4*k,4)}, v{t+3} offset:{L_ML+16*k}")
    OPR = V_RING
    for w in range(8):
        g.I(f"ds_read_b64 {vr(OPR+2*w,2)}, v{t+4} offset:{L_OP+512*w}")
    g.I("s_waitcnt lgkmcnt(8)")
    M = t
    g.I(f"v_max3_f32 v{M}, v{ML}, v{ML+2}, v{ML+4}")
    g.I(f"v_max3_f32 v{M}, v{M}, v{ML+6}, v{ML+8}")
    g.I(f"v_max3_f32 v{M}, v{M}, v{ML+10}, v{ML+12}")
    g.I(f"v_max_f32 v{M}, v{M}, v{ML+14}")
    for w in range(8):
        g.I(f"v_sub_f32 v{ML+2*w}, v{ML+2*w}, v{M}")
    for w in range(8):
        g.I(f"v_mul_f32 v{ML+2*w}, s{S_LOG2E}, v{ML+2*w}")
    for w in range(8):
        g.I(f"v_exp_f32 v{ML+2*w}, v{ML+2*w}")
    oa, ob = t + 5, t + 6
    g.I("s_waitcnt lgkmcnt(0)")
    g.I(f"v_mul_f32 v{oa}, v{ML}, v{OPR}")
    g.I(f"v_mul_f32 v{ob}, v{ML}, v{OPR+1}")
    for w in range(1, 8):
        g.I(f"v_fmac_f32 v{oa}, v{ML+2*w}, v{OPR+2*w}")
        g.I(f"v_fmac_f32 v{ob}, v{ML+2*w}, v{OPR+2*w+1}")
    g.I(f"v_cvt_pk_bf16_f32 v{oa}, v{oa}, v{ob}")
    so = list(range(4, 12))
    Lr = t + 1
    g.I(f"v_mul_f32 v{Lr}, v{ML}, v{ML+1}")
    for k in range(8):
        g.I(f"v_readlane_b32 s{so[k]}, v{oa}, {k}")
    for w in range(1, 8):
        g.I(f"v_fmac_f32 v{Lr}, v{ML+2*w}, v{ML+2*w+1}")
    YA = V_ACC
    for k in range(8):
        for j in range(4):
            A, B = V_W + 8 * k + j, V_W + 8 * k + 4 + j
            c0 = "0" if k == 0 else f"v{YA+2*j}"
            c1 = "0" if k == 0 else f"v{YA+2*j+1}"
            g.I(f"v_dot2_f32_bf16 v{YA+2*j}, v{A}, s{so[k]}, {c0}")
            g.I(f"v_dot2_f32_bf16 v{YA+2*j+1}, v{B}, s{so[k]}, {c1}")
    g.I(f"v_lshlrev_b32 v{t+3}, 5, v{V_LANE}")
    g.I(f"s_lshl_b32 s{S_T0}, s{S_WAVE}, 11")
    g.I(f"v_add_u32 v{t+4}, s{S_T0}, v{t+3}")
    g.nop(1)
    g.I(f"ds_write_b128 v{t+4}, {vr(YA,4)} offset:{L_YP}")
    g.I(f"ds_write_b128 v{t+4}, {vr(YA+4,4)} offset:{L_YP+16}")
    g.I("s_waitcnt lgkmcnt(0)")
    g.I("s_barrier")
    g.I(f"s_cmp_lg_u32 s{S_WAVE}, 0")
    g.I("s_cbranch_scc1 L_after_pub")
    g.I(f"v_lshlrev_b32 v{t+3}, 4, v{V_LANE}")
    for w in range(8):
        g.I(f"ds_read_b128 {vr(V_RING+8*w,4)}, v{t+3} offset:{L_YP+2048*w}")
        g.I(f"ds_read_b128 {vr(V_RING+8*w+4,4)}, v{t+3} offset:{L_YP+2048*w+1024}")
    y_addr(t + 3, t + 4)
    g.I(f"s_lshl_b32 s{S_T0}, s{S_P}, 7")
    g.I(f"s_add_u32 s{S_T2}, s{S_T0}, {8*32768}")
    g.I(f"s_lshl_b32 s{S_T1}, s{S_P}, 3")
    g.I(f"s_add_u32 s{S_T1}, s{S_T1}, {WS_ML}")
    g.I(f"v_mov_b32 v{t+4}, 0")
    g.I(f"v_cmp_eq_u32 vcc, 0, v{V_LANE}")
    g.I("s_waitcnt lgkmcnt(0)")
    for step in (1, 2, 4):
        for w in range(0, 8, 2 * step):
            for j in range(8):
                g.I(f"v_add_f32 v{V_RING+8*w+j}, v{V_RING+8*w+j}, v{V_RING+8*(w+step)+j}")
    g.I(f"buffer_store_dwordx4 {vr(V_RING,4)}, v{t+3}, {sr(R_WS,4)}, s{S_T0} offen sc0 sc1")
    g.I(f"buffer_store_dwordx4 {vr(V_RING+4,4)}, v{t+3}, {sr(R_WS,4)}, s{S_T2} offen sc0 sc1")
    g.I(f"s_and_saveexec_b64 {sr(S_EX,2)}, vcc")
    g.I(f"buffer_store_dwordx2 {vr(t,2)}, v{t+4}, {sr(R_WS,4)}, s{S_T1} offen sc0 sc1")
    g.I(f"s_mov_b64 exec, {sr(S_EX,2)}")
    g.lab("L_after_pub")
    stamp(g, cfg, 3)

    def finisher(fid_sreg):
        t = V_T
        a0 = t
        g.I(f"v_lshlrev_b32 v62, 2, v{V_LANE}")
        g.I(f"v_and_b32 v62, 0x7f, v62")
        g.I(f"s_mov_b32 s{S_CNT}, 0x40000")
        g.lab("L_cpoll")
        g.I(f"v_cmp_gt_u32 vcc, 8, v63")
        g.I("s_cbranch_vccz L_cdone")
        g.I(f"s_sub_u32 s{S_CNT}, s{S_CNT}, 1")
        g.I(f"s_cmp_eq_u32 s{S_CNT}, 0")
        g.I("s_cbranch_scc1 L_cdone")
        g.I(f"buffer_load_dword v63, v62, {sr(R_DBG,4)}, 0 offen sc0 sc1")
        g.I("s_waitcnt vmcnt(0)")
        g.I("s_branch L_cpoll")
        g.lab("L_cdone")
        stamp(g, cfg, 4)
        g.I(f"v_lshrrev_b32 v{a0}, 2, v{V_TID}")
        g.I(f"v_lshlrev_b32 v{a0}, 7, v{a0}")
        g.I(f"v_and_b32 v{a0+1}, 3, v{V_TID}")
        g.I(f"v_lshl_add_u32 v{a0}, v{a0+1}, 4, v{a0}")
        g.I(f"s_lshr_b32 s{S_T0}, s{fid_sreg}, 1")
        g.I(f"s_lshl_b32 s{S_T0}, s{S_T0}, 15")
        g.I(f"s_and_b32 s{S_T1}, s{fid_sreg}, 1")
        g.I(f"s_lshl_b32 s{S_T1}, s{S_T1}, 6")
        g.I(f"s_add_u32 s{S_T0}, s{S_T0}, s{S_T1}")
        g.I(f"s_add_u32 s{S_T1}, s{S_T0}, 16384")
        g.I(f"s_add_u32 s{S_T2}, s{S_T0}, {WS_G}")
        g.I(f"s_add_u32 s{S_OFF}, s{S_T1}, {WS_G}")
        g.I(f"s_mov_b32 s{S_GJ}, {WS_ML}")
        Y1, Y2, G1, G2 = V_RING, V_RING + 4, V_RING + 8, V_RING + 12
        MLv = V_RING + 16
        g.I(f"v_and_b32 v{a0+1}, 15, v{V_LANE}")
        g.I(f"v_bfe_u32 v{a0+2}, v{V_LANE}, 4, 1")
        g.I(f"v_lshl_add_u32 v{a0+1}, v{a0+2}, 7, v{a0+1}")
        g.I(f"s_lshl_b32 s{S_RB}, s{S_WAVE}, 4")
        g.I(f"v_add_u32 v{a0+1}, s{S_RB}, v{a0+1}")
        g.I(f"v_lshlrev_b32 v{a0+1}, 3, v{a0+1}")
        g.I(f"v_and_b32 v{a0+5}, 15, v{V_TID}")
        g.I(f"v_lshlrev_b32 v{a0+5}, 1, v{a0+5}")
        g.I(f"s_lshl_b32 s{S_RB}, s{fid_sreg}, 5")
        g.I(f"buffer_load_ushort v{a0+6}, v{a0+5}, {sr(R_X,4)}, s{S_RB} offen")
        g.I(f"v_cmp_gt_u32 vcc, {96*4}, v{V_TID}")
        g.I(f"s_mov_b64 s[92:93], vcc")
        for j in range(4):
            g.I(f"v_mov_b32 v{G2+j}, 0")
        g.I(f"buffer_load_dwordx4 {vr(G1,4)}, v{a0}, {sr(R_WS,4)}, s{S_T2} offen sc0 sc1")
        g.I(f"s_and_b64 s[94:95], s[92:93], exec")
        g.I(f"s_cbranch_scc0 L_nog2")
        g.I(f"s_mov_b64 exec, s[92:93]")
        g.I(f"buffer_load_dwordx4 {vr(G2,4)}, v{a0}, {sr(R_WS,4)}, s{S_OFF} offen sc0 sc1")
        g.I(f"s_mov_b64 exec, -1")
        g.lab("L_nog2")
        g.I(f"s_mov_b32 s{S_CNT}, 0x40000")
        g.lab("L_dpoll")
        g.I(f"buffer_load_dwordx2 {vr(MLv,2)}, v{a0+1}, {sr(R_WS,4)}, s{S_GJ} offen sc0 sc1")
        g.I(f"buffer_load_dwordx4 {vr(Y1,4)}, v{a0}, {sr(R_WS,4)}, s{S_T0} offen sc0 sc1")
        g.I(f"buffer_load_dwordx4 {vr(Y2,4)}, v{a0}, {sr(R_WS,4)}, s{S_T1} offen sc0 sc1")
        g.I("s_waitcnt vmcnt(0)")
        mx = a0 + 8
        g.I(f"v_max3_u32 v{mx}, v{Y1}, v{Y1+1}, v{Y1+2}")
        g.I(f"v_max3_u32 v{mx+1}, v{Y1+3}, v{Y2}, v{Y2+1}")
        g.I(f"v_max3_u32 v{mx}, v{mx}, v{Y2+2}, v{Y2+3}")
        g.I(f"v_max3_u32 v{mx+1}, v{mx+1}, v{MLv}, v{MLv+1}")
        g.I(f"v_max_u32 v{mx}, v{mx}, v{mx+1}")
        g.I(f"v_cmp_eq_u32 vcc, -1, v{mx}")
        g.I("s_cbranch_vccz L_ddone")
        g.I(f"s_sub_u32 s{S_CNT}, s{S_CNT}, 1")
        g.I(f"s_cmp_lg_u32 s{S_CNT}, 0")
        g.I("s_cbranch_scc1 L_dpoll")
        g.lab("L_ddone")
        stamp(g, cfg, 9)
        M, W, Ls = a0 + 8, a0 + 9, a0 + 10
        g.I(f"v_mov_b32 v{M}, v{MLv}")
        g.nop(1)
        for dpp in ("quad_perm:[1,0,3,2]", "quad_perm:[2,3,0,1]", "row_half_mirror"):
            g.I(f"v_max_f32_dpp v{M}, v{M}, v{M} {dpp} row_mask:0xf bank_mask:0xf")
            g.nop(2)
        g.I(f"v_sub_f32 v{W}, v{MLv}, v{M}")
        g.I(f"v_mul_f32 v{W}, s{S_LOG2E}, v{W}")
        g.I(f"v_exp_f32 v{W}, v{W}")
        g.nop(1)
        g.I(f"v_mul_f32 v{Ls}, v{W}, v{MLv+1}")
        g.nop(2)
        for dpp in ("quad_perm:[1,0,3,2]", "quad_perm:[2,3,0,1]", "row_half_mirror"):
            g.I(f"v_add_f32_dpp v{Ls}, v{Ls}, v{Ls} {dpp} row_mask:0xf bank_mask:0xf")
            g.nop(2)
        c = a0 + 11
        g.I(f"v_rcp_f32 v{c}, v{Ls}")
        g.nop(1)
        g.I(f"v_fma_f32 v{M}, -v{Ls}, v{c}, 1.0")
        g.I(f"v_fma_f32 v{c}, v{M}, v{c}, v{c}")
        g.I(f"v_mul_f32 v{c}, v{c}, v{W}")
        g.I(f"v_and_b32 v{a0+1}, 0x3c, v{V_LANE}")
        g.I(f"v_add_u32 v{a0+2}, 64, v{a0+1}")
        c1, c2 = a0 + 8, a0 + 9
        g.I(f"ds_bpermute_b32 v{c1}, v{a0+1}, v{c}")
        g.I(f"ds_bpermute_b32 v{c2}, v{a0+2}, v{c}")
        for j in range(4):
            g.I(f"v_add_f32 v{G1+j}, v{G1+j}, v{G2+j}")
        g.I("s_waitcnt lgkmcnt(0)")
        for j in range(4):
            g.I(f"v_mul_f32 v{Y1+j}, v{c1}, v{Y1+j}")
        for j in range(4):
            g.I(f"v_fmac_f32 v{Y1+j}, v{c2}, v{Y2+j}")
        R8 = [Y1 + j for j in range(4)] + [G1 + j for j in range(4)]
        g.nop(2)
        for r in (4, 8):
            for x in R8:
                g.I(f"v_add_f32_dpp v{x}, v{x}, v{x} row_ror:{r} row_mask:0xf bank_mask:0xf")
        reduce_scatter_rows(g, R8)
        g.I(f"v_and_b32 v{a0}, 3, v{V_LANE}")
        g.I(f"v_lshlrev_b32 v{a0}, 4, v{a0}")
        g.I(f"v_and_b32 v{a0+1}, 1, v{V_G}")
        g.I(f"v_lshl_add_u32 v{a0}, v{a0+1}, 3, v{a0}")
        g.I(f"v_lshrrev_b32 v{a0+1}, 1, v{V_G}")
        g.I(f"v_lshl_add_u32 v{a0}, v{a0+1}, 6, v{a0}")
        g.I(f"s_lshl_b32 s{S_T0}, s{S_WAVE}, 7")
        g.I(f"v_add_u32 v{a0}, s{S_T0}, v{a0}")
        g.I(f"ds_write_b64 v{a0}, {vr(R8[0],2)} offset:{L_FIN}")
        g.I("s_waitcnt lgkmcnt(0)")
        g.I("s_barrier")
        g.I(f"s_cmp_lg_u32 s{S_WAVE}, 0")
        g.I("s_cbranch_scc1 L_end2")
        g.I(f"v_and_b32 v{a0}, 15, v{V_LANE}")
        g.I(f"v_lshlrev_b32 v{a0}, 2, v{a0}")
        for w in range(8):
            g.I(f"ds_read_b32 v{V_RING+16+w}, v{a0} offset:{L_FIN+128*w}")
            g.I(f"ds_read_b32 v{V_RING+24+w}, v{a0} offset:{L_FIN+128*w+64}")
        g.I("s_waitcnt lgkmcnt(0)")
        for step in (1, 2, 4):
            for w in range(0, 8, 2 * step):
                g.I(f"v_add_f32 v{V_RING+16+w}, v{V_RING+16+w}, v{V_RING+16+w+step}")
                g.I(f"v_add_f32 v{V_RING+24+w}, v{V_RING+24+w}, v{V_RING+24+w+step}")
        bf16_round2(g, V_RING + 16, V_RING + 24, a0 + 1)
        g.I(f"v_lshlrev_b32 v{a0+6}, 16, v{a0+6}")
        g.I(f"v_add_f32 v{a0+6}, v{a0+6}, v{V_RING+16}")
        bf16_round1(g, a0 + 6, a0 + 6, a0 + 1)
        g.I(f"v_add_f32 v{a0+6}, v{a0+6}, v{V_RING+24}")
        g.I(f"v_cvt_pk_bf16_f32 v{a0+6}, v{a0+6}, v{a0+6}")
        g.I(f"v_cmp_gt_u32 vcc, 16, v{V_LANE}")
        g.I(f"s_and_saveexec_b64 {sr(S_EX,2)}, vcc")
        g.I(f"s_lshl_b32 s{S_T2}, s{fid_sreg}, 5")
        g.I(f"buffer_store_short v{a0+6}, v{a0+5}, {sr(R_OUT,4)}, s{S_T2} offen")
        stamp(g, cfg, 5)
        g.lab("L_end2")

    g.I("s_cmp_ge_u32 s2, 32")
    g.I("s_cbranch_scc1 L_end")
    finisher(2)
    g.lab("L_end")
    g.I("s_endpgm")

    g.L.append('.section .rodata,"a"')
    g.L.append(".p2align 6")
    g.L.append(f".amdhsa_kernel {kmain}")
    g.L.append("  .amdhsa_next_free_vgpr 256")
    g.L.append("  .amdhsa_next_free_sgpr 102")
    g.L.append("  .amdhsa_accum_offset 256")
    g.L.append("  .amdhsa_group_segment_fixed_size 0")
    g.L.append("  .amdhsa_kernarg_size 96")
    g.L.append("  .amdhsa_user_sgpr_count 2")
    g.L.append("  .amdhsa_user_sgpr_kernarg_segment_ptr 1")
    g.L.append("  .amdhsa_system_sgpr_workgroup_id_x 1")
    g.L.append(".end_amdhsa_kernel")
    return g.text()


if __name__ == "__main__":
    ap = argparse.ArgumentParser()
    ap.add_argument("--nt", type=int, default=1)
    ap.add_argument("--stamp", type=int, default=0)
    ap.add_argument("--loopbar", type=int, default=1)
    ap.add_argument("--lnwave", type=int, default=0)
    ap.add_argument("--noclr", type=int, default=0)
    ap.add_argument("--noln", type=int, default=0)
    ap.add_argument("--touch", type=int, default=0)
    ap.add_argument("--wq1", type=int, default=0)
    ap.add_argument("--glueff", type=int, default=0)
    ap.add_argument("--wnt", type=int, default=9)
    ap.add_argument("--hmap", type=int, default=1)
    ap.add_argument("--nocompute", type=int, default=0)
    ap.add_argument("--notail", type=int, default=0)
    ap.add_argument("--nowo", type=int, default=0)
    ap.add_argument("--noglu", type=int, default=0)
    ap.add_argument("--nowq", type=int, default=0)
    ap.add_argument("--wosched", type=str, default="{0:[0],3:[1,2],4:[3,4],5:[5,6],6:[7]}")
    ap.add_argument("--glu_at", type=int, default=1)
    ap.add_argument("--issue", type=str, default="1,2,3,5")
    ap.add_argument("-o", default="parallel_sum__mha_block_cached__glu_gated_glu__decode.s")
    cfg = ap.parse_args()
    cfg.issue_at = [int(x) for x in cfg.issue.split(",")]
    cfg.wo_sched = eval(cfg.wosched)
    assert len(cfg.issue_at) == 4
    open(cfg.o, "w").write(gen(cfg))
    print("wrote", cfg.o)
```

```python
import sys, argparse
from gen import G, vr, sr, HEADER, KNAME

S_X, S_K, S_V, S_WQ, S_WO, S_BX, S_GT, S_UP = 4, 6, 8, 10, 12, 14, 16, 18
S_DN, S_OUT, S_DBG, S_WS = 20, 22, 24, 26
R_K, R_V, R_WQ, R_WO, R_GT, R_UP, R_DN, R_X, R_WS, R_OUT, R_DBG = 28, 32, 36, 40, 44, 48, 52, 56, 60, 64, 68
S_H, S_SPLIT, S_WAVE, S_OFF, S_CNT = 72, 73, 74, 75, 76
S_SCALE, S_LOG2E, S_MASK, S_P, S_GJ, S_T0, S_T1, S_T2, S_GVALID = 78, 79, 80, 81, 82, 83, 84, 85, 86
S_PLO, S_PHI = 87, 88
S_HOFF = 90
S_RB = 91
S_EX = 96
S_TS = 98

L_XN = 0
L_QP = 1024
L_GU = 5120
L_OP = 5632
L_ML = 9728
L_YP = 10240
L_FIN = 26624
LDS_BYTES = 27648

WS_Y = 0
WS_G = 512 * 1024
WS_ML = 1024 * 1024
WS_BYTES = 1024 * 1024 + 2048 + 4096


def srd(g, r, base_lo, base_hi, nbytes):
    g.I(f"s_mov_b32 s{r}, s{base_lo}")
    g.I(f"s_and_b32 s{r+1}, s{base_hi}, 0xffff")
    g.I(f"s_mov_b32 s{r+2}, {nbytes:#x}")
    g.I(f"s_mov_b32 s{r+3}, 0x00020000")


def srd_off(g, r, base_lo, base_hi, off_sreg, nbytes):
    g.I(f"s_add_u32 s{r}, s{base_lo}, s{off_sreg}")
    g.I(f"s_addc_u32 s{r+1}, s{base_hi}, 0")
    g.I(f"s_and_b32 s{r+1}, s{r+1}, 0xffff")
    g.I(f"s_mov_b32 s{r+2}, {nbytes:#x}")
    g.I(f"s_mov_b32 s{r+3}, 0x00020000")


def bf16_round1(g, dst, src, tmp):
    g.I(f"v_cvt_pk_bf16_f32 v{tmp}, v{src}, v{src}")
    g.I(f"v_lshlrev_b32 v{dst}, 16, v{tmp}")


def bf16_round2(g, a, b, tmp):
    g.I(f"v_cvt_pk_bf16_f32 v{tmp}, v{a}, v{b}")
    g.I(f"v_lshlrev_b32 v{a}, 16, v{tmp}")
    g.I(f"v_and_b32 v{b}, s{S_MASK}, v{tmp}")


def row_allreduce(g, op, regs):
    n = len(regs)
    for r in (8, 4, 2, 1):
        for x in regs:
            g.I(f"v_{op}_dpp v{x}, v{x}, v{x} row_ror:{r} row_mask:0xf bank_mask:0xf")
        if n < 3:
            g.nop(3 - n)


def cross_row_allreduce(g, op, x, t):
    g.I(f"v_mov_b32 v{t}, v{x}")
    g.nop(2)
    g.I(f"v_permlane16_swap_b32 v{x}, v{t}")
    g.nop(1)
    g.I(f"v_{op} v{x}, v{x}, v{t}")
    g.I(f"v_mov_b32 v{t}, v{x}")
    g.nop(2)
    g.I(f"v_permlane32_swap_b32 v{x}, v{t}")
    g.nop(1)
    g.I(f"v_{op} v{x}, v{x}, v{t}")


def wave_allreduce(g, op, x, t):
    row_allreduce(g, op, [x])
    cross_row_allreduce(g, op, x, t)


def reduce_scatter_rows(g, regs):
    n = len(regs)
    h = n // 2
    g.nop(2)
    for k in range(h):
        g.I(f"v_permlane32_swap_b32 v{regs[k]}, v{regs[k+h]}")
    g.nop(1)
    for k in range(h):
        g.I(f"v_add_f32 v{regs[k]}, v{regs[k]}, v{regs[k+h]}")
    qn = h // 2
    g.nop(2)
    for k in range(qn):
        g.I(f"v_permlane16_swap_b32 v{regs[k]}, v{regs[k+qn]}")
    g.nop(1)
    for k in range(qn):
        g.I(f"v_add_f32 v{regs[k]}, v{regs[k]}, v{regs[k+qn]}")


def stamp(g, cfg, idx, wave=0):
    if not cfg.stamp:
        return
    lab = f"L_st{idx}"
    g.I(f"s_cmp_lg_u32 s{S_WAVE}, {wave}")
    g.I(f"s_cbranch_scc1 {lab}")
    g.I(f"s_memrealtime s[{S_TS}:{S_TS+1}]")
    g.I("s_waitcnt lgkmcnt(0)")
    g.I(f"v_mov_b32 v5, s{S_TS}")
    g.I(f"s_lshl_b32 s{S_TS}, s2, 6")
    g.I(f"s_add_u32 s{S_TS}, s{S_TS}, {2*1024*1024 + idx*4}")
    g.I(f"v_mov_b32 v6, s{S_TS}")
    g.I(f"global_store_dword v6, v5, s[{S_WS}:{S_WS+1}]")
    g.lab(lab)


def gen(cfg):
    D = 4
    NT = " nt" if cfg.nt else ""
    WQNT = " nt" if cfg.wnt & 1 else ""
    WONT = " nt" if cfg.wnt & 2 else ""
    GNT = " nt" if cfg.wnt & 4 else ""
    DNT = " nt" if cfg.wnt & 8 else ""
    g = G()
    V_TID, V_LANE, V_KVOFF, V_G, V_Cc, V_WOA = 0, 1, 2, 3, 4, 7
    V_Q = 8
    V_ACC = 12
    V_M, V_L = 20, 21
    V_S = 22
    V_PP = 32
    V_T = 40
    V_GT, V_UP, V_DN = 46, 50, 54
    V_XROW = 60
    V_QOFF = 61
    TMP8 = [26, 27, 28, 29, 30, 31, 58, 59]
    V_W = 64
    V_RING = 128
    LNW = cfg.lnwave

    g.L.append(HEADER.rstrip("\n"))
    g.L.append(f"; @launch grid=(256,1,1) block=(512,1,1) lds={LDS_BYTES}")
    kmain = KNAME
    g.L.append('.amdgcn_target "amdgcn-amd-amdhsa--gfx950"')
    g.L.append(".text")
    g.L.append(f".globl {kmain}")
    g.L.append(".p2align 8")
    g.L.append(f".type {kmain},@function")
    g.lab(kmain)
    g.I("s_cmp_ge_u32 s2, 256")
    g.I("s_cbranch_scc1 L_end")
    g.I("s_load_dwordx16 s[4:19], s[0:1], 0")
    g.I("s_load_dwordx8 s[20:27], s[0:1], 64")
    g.I(f"v_and_b32 v{V_LANE}, 63, v{V_TID}")
    g.I(f"v_lshrrev_b32 v{V_T}, 6, v{V_TID}")
    g.I(f"v_lshrrev_b32 v{V_G}, 4, v{V_LANE}")
    g.I(f"v_readfirstlane_b32 s{S_WAVE}, v{V_T}")
    g.I(f"v_and_b32 v{V_Cc}, 15, v{V_LANE}")
    g.I(f"s_mov_b32 s{S_SCALE}, 0x3db504f3")
    g.I(f"s_mov_b32 s{S_LOG2E}, 0x3fb8aa3b")
    g.I(f"s_mov_b32 s{S_MASK}, 0xffff0000")
    g.I(f"s_mov_b32 s{S_PLO}, 0x05040100")
    g.I(f"s_mov_b32 s{S_PHI}, 0x07060302")
    g.I(f"s_and_b32 s{S_T0}, s2, 7")
    g.I(f"s_lshr_b32 s{S_T1}, s2, 3")
    g.I(f"s_and_b32 s{S_T2}, s{S_T1}, 3")
    if cfg.hmap == 0:
        g.I(f"s_lshl_b32 s{S_H}, s{S_T0}, 2")
        g.I(f"s_add_u32 s{S_H}, s{S_H}, s{S_T2}")
    else:
        g.I(f"s_lshl_b32 s{S_H}, s{S_T2}, 1")
        g.I(f"s_add_u32 s{S_H}, s{S_H}, s{S_T0}")
        g.I(f"s_and_b32 s{S_H}, s{S_H}, 7")
        g.I(f"s_lshl_b32 s{S_T2}, s{S_T2}, 3")
        g.I(f"s_add_u32 s{S_H}, s{S_H}, s{S_T2}")
    g.I(f"s_lshr_b32 s{S_SPLIT}, s{S_T1}, 2")
    g.I(f"s_lshl_b32 s{S_P}, s{S_H}, 3")
    g.I(f"s_add_u32 s{S_P}, s{S_P}, s{S_SPLIT}")
    g.I(f"s_lshl_b32 s{S_HOFF}, s{S_H}, 2")
    g.I(f"s_mul_i32 s{S_GJ}, s{S_T0}, 28")
    g.I(f"s_add_u32 s{S_GJ}, s{S_GJ}, s{S_T1}")
    g.I(f"s_cmp_lt_u32 s{S_T1}, 28")
    g.I(f"s_cselect_b32 s{S_GVALID}, 1, 0")
    g.I(f"s_cselect_b32 s{S_GJ}, s{S_GJ}, 0")
    V_A = 56
    g.I(f"v_lshlrev_b32 v{V_WOA}, 4, v{V_LANE}")
    g.I(f"v_lshlrev_b32 v{V_A+1}, 14, v{V_G}")
    g.I(f"v_lshl_add_u32 v{V_A+1}, v{V_Cc}, 4, v{V_A+1}")
    g.I(f"s_lshl_b32 s{S_T0}, s{S_WAVE}, 16")
    g.I(f"s_lshl_b32 s{S_T1}, s{S_H}, 8")
    g.I(f"s_add_u32 s{S_RB}, s{S_T0}, s{S_T1}")
    g.I(f"s_lshl_b32 s{S_T1}, s{S_WAVE}, 12")
    g.I(f"v_add_u32 v{V_KVOFF}, s{S_T1}, v{V_WOA}")
    g.I(f"s_lshl_b32 s{S_T2}, s{S_P}, 20")
    g.I("s_waitcnt lgkmcnt(0)")
    stamp(g, cfg, 0)
    if cfg.touch:
        TB = 92
        g.I(f"s_mov_b64 s[{TB}:{TB+1}], s[{S_WQ}:{S_WQ+1}]")
        g.I(f"s_mov_b32 s{TB+2}, 0x200000")
        def sel(w, ptr, off_code):
            g.I(f"s_cmp_eq_u32 s{S_WAVE}, {w}")
            g.I(f"s_cselect_b64 s[{TB}:{TB+1}], s[{ptr}:{ptr+1}], s[{TB}:{TB+1}]")
            g.I(f"s_cselect_b32 s{TB+2}, {off_code}, s{TB+2}")
        g.I(f"s_lshl_b32 s{TB+3}, s{S_H}, 17")
        sel(1, S_WO, f"s{TB+3}")
        sel(2, S_GT, "0")
        sel(3, S_UP, "0")
        g.I(f"s_lshl_b32 s{TB+3}, s{S_GJ}, 13")
        sel(4, S_DN, f"s{TB+3}")
        sel(5, S_WS, "0")
        sel(6, S_DBG, "0")
        sel(7, S_OUT, "0")
        g.I(f"v_mov_b32 v6, s{TB+2}")
        g.I(f"global_load_dword v5, v6, s[{TB}:{TB+1}]")
    srd(g, R_WQ, S_WQ, S_WQ + 1, 512 * 8192)
    srd(g, R_X, S_X, S_X + 1, 1024)
    srd_off(g, R_K, S_K, S_K + 1, S_T2, 0x100000)
    srd_off(g, R_V, S_V, S_V + 1, S_T2, 0x100000)
    g.I(f"s_cmp_lg_u32 s{S_WAVE}, {LNW}")
    g.I("s_cbranch_scc1 L_loads")
    if cfg.noln:
        g.I("s_branch L_loads")
    V_XR = V_T
    XF = V_PP
    g.I(f"buffer_load_dwordx4 {vr(V_XR,4)}, v{V_WOA}, {sr(R_X,4)}, 0 offen")
    g.I("s_waitcnt vmcnt(0)")
    stamp(g, cfg, 6, LNW)
    for j in range(4):
        g.I(f"v_lshlrev_b32 v{XF+2*j}, 16, v{V_XR+j}")
        g.I(f"v_and_b32 v{XF+2*j+1}, s{S_MASK}, v{V_XR+j}")
    t0, t1, t2, t3 = V_S, V_S + 1, V_S + 2, V_S + 3
    g.I(f"v_add_f32 v{t0}, v{XF}, v{XF+1}")
    g.I(f"v_add_f32 v{t1}, v{XF+2}, v{XF+3}")
    g.I(f"v_add_f32 v{t2}, v{XF+4}, v{XF+5}")
    g.I(f"v_add_f32 v{t3}, v{XF+6}, v{XF+7}")
    g.I(f"v_add_f32 v{t0}, v{t0}, v{t1}")
    g.I(f"v_add_f32 v{t2}, v{t2}, v{t3}")
    g.I(f"v_add_f32 v{t0}, v{t0}, v{t2}")
    g.nop(2)
    wave_allreduce(g, "add_f32", t0, t1)
    g.I(f"v_mul_f32 v{t0}, 0x3b000000, v{t0}")
    for j in range(8):
        g.I(f"v_sub_f32 v{12+j}, v{XF+j}, v{t0}")
    g.I(f"v_mul_f32 v{t1}, v12, v12")
    g.I(f"v_mul_f32 v{t2}, v13, v13")
    for j in range(2, 8, 2):
        g.I(f"v_fmac_f32 v{t1}, v{12+j}, v{12+j}")
        g.I(f"v_fmac_f32 v{t2}, v{13+j}, v{13+j}")
    g.I(f"v_add_f32 v{t1}, v{t1}, v{t2}")
    g.nop(2)
    wave_allreduce(g, "add_f32", t1, t2)
    g.I(f"v_mul_f32 v{t1}, 0x3b000000, v{t1}")
    bf16_round2(g, t0, t1, t2)
    g.I(f"v_add_f32 v{t1}, 0x3727c5ac, v{t1}")
    for j in range(8):
        g.I(f"v_sub_f32 v{XF+j}, v{XF+j}, v{t0}")
    bf16_round1(g, t1, t1, t2)
    g.I(f"v_sqrt_f32 v{t1}, v{t1}")
    for j in range(0, 8, 2):
        bf16_round2(g, XF + j, XF + j + 1, t2)
    bf16_round1(g, t1, t1, t2)
    g.I(f"v_rcp_f32 v{t3}, v{t1}")
    g.nop(1)
    for j in range(8):
        g.I(f"v_mul_f32 v{12+j}, v{XF+j}, v{t3}")
    for j in range(8):
        g.I(f"v_fma_f32 v{26+(j%4)}, -v{12+j}, v{t1}, v{XF+j}")
        g.I(f"v_fma_f32 v{XF+j}, v{26+(j%4)}, v{t3}, v{12+j}")
    XP = V_Q
    for j in range(4):
        g.I(f"v_cvt_pk_bf16_f32 v{XP+j}, v{XF+2*j}, v{XF+2*j+1}")
    g.I(f"ds_write_b128 v{V_WOA}, {vr(XP,4)} offset:{L_XN}")
    g.lab("L_loads")

    def issue_block(slot, tag):
        kb = V_RING + slot * 32
        for i in range(4):
            g.vm(f"buffer_load_dwordx4 {vr(kb+4*i,4)}, v{V_KVOFF}, {sr(R_K,4)}, s{S_OFF} offen offset:{i*1024}{NT}", tag)
        for i in range(4):
            g.vm(f"buffer_load_dwordx4 {vr(kb+16+4*i,4)}, v{V_KVOFF}, {sr(R_V,4)}, s{S_OFF} offen offset:{i*1024}{NT}", tag)
        g.I(f"s_add_u32 s{S_OFF}, s{S_OFF}, 32768")

    nissued = 0

    def maybe_issue(point):
        nonlocal nissued
        while nissued < D and cfg.issue_at[nissued] == point:
            issue_block(nissued, f"b{nissued}")
            nissued += 1

    g.I(f"s_mov_b32 s{S_OFF}, 0")
    maybe_issue(0)
    for k in range(8):
        g.I(f"s_add_u32 s{S_T0}, s{S_SPLIT}, {k}")
        g.I(f"s_and_b32 s{S_T0}, s{S_T0}, 7")
        g.I(f"s_lshl_b32 s{S_T0}, s{S_T0}, 19")
        g.I(f"s_add_u32 s{S_T0}, s{S_T0}, s{S_RB}")
        g.I(f"s_add_u32 s{S_T1}, s{S_T0}, 8192")
        if not cfg.nowq and not (cfg.wq1 and k > 0):
            g.vm(f"buffer_load_dwordx4 {vr(V_W+8*k,4)}, v{V_A+1}, {sr(R_WQ,4)}, s{S_T0} offen{WQNT}", f"wq{k//2}")
            g.vm(f"buffer_load_dwordx4 {vr(V_W+8*k+4,4)}, v{V_A+1}, {sr(R_WQ,4)}, s{S_T1} offen{WQNT}", f"wq{k//2}")
        if k == 0:
            maybe_issue(1)
    maybe_issue(2)
    srd(g, R_GT, S_GT, S_GT + 1, 512 * 3584)
    srd(g, R_UP, S_UP, S_UP + 1, 512 * 3584)
    srd(g, R_DN, S_DN, S_DN + 1, 1792 * 1024)
    srd(g, R_WS, S_WS, S_WS + 1, WS_BYTES)
    srd(g, R_OUT, S_OUT, S_OUT + 1, 1024)
    srd(g, R_DBG, S_DBG, S_DBG + 1, 256)
    g.I(f"s_lshl_b32 s{S_T0}, s{S_H}, 17")
    srd_off(g, R_WO, S_WO, S_WO + 1, S_T0, 0x20000)
    XNP = V_ACC
    g.I(f"s_lshl_b32 s{S_T0}, s{S_WAVE}, 4")
    g.I(f"v_lshlrev_b32 v{V_A}, 2, v{V_G}")
    g.I(f"v_add_u32 v{V_A}, s{S_T0}, v{V_A}")
    for k in range(8):
        g.I(f"s_add_u32 s{S_T0}, s{S_SPLIT}, {k}")
        g.I(f"s_and_b32 s{S_T0}, s{S_T0}, 7")
        g.I(f"s_lshl_b32 s{S_T0}, s{S_T0}, 7")
        g.I(f"v_add_u32 v{XNP+k}, s{S_T0}, v{V_A}")
    g.I(f"v_lshlrev_b32 v{V_A+2}, 1, v{V_TID}")
    g.I("s_waitcnt lgkmcnt(0)")
    g.I("s_barrier")
    stamp(g, cfg, 8)
    for k in range(8):
        g.I(f"ds_read_b32 v{XNP+k}, v{XNP+k} offset:{L_XN}")
    g.I(f"ds_read_u16 v{V_XROW}, v{V_A+2} offset:{L_XN}")
    maybe_issue(3)
    ta, tb, tc, td = 26, 27, 28, 29
    g.I(f"v_and_b32 v{ta}, 1, v{V_G}")
    g.I(f"v_lshlrev_b32 v{ta}, 3, v{ta}")
    g.I(f"v_lshrrev_b32 v{tb}, 1, v{V_G}")
    g.I(f"v_lshl_add_u32 v{ta}, v{tb}, 4, v{ta}")
    g.I(f"v_lshl_add_u32 v{V_QOFF}, v{V_Cc}, 5, v{ta}")
    g.I("s_waitcnt lgkmcnt(0)")
    g.I(f"v_lshlrev_b32 v{V_XROW}, 16, v{V_XROW}")
    QA = V_PP
    for k in range(8):
        if k % 2 == 0:
            g.wait_tag(f"wq{k//2}")
        for j in range(4):
            A, B = V_W + 8 * k + j, V_W + 8 * k + 4 + j
            lo, hi = (ta, tb) if j % 2 == 0 else (tc, td)
            g.I(f"v_perm_b32 v{lo}, v{B}, v{A}, s{S_PLO}")
            g.I(f"v_perm_b32 v{hi}, v{B}, v{A}, s{S_PHI}")
            s2a = "0" if k == 0 else f"v{QA+2*j}"
            s2b = "0" if k == 0 else f"v{QA+2*j+1}"
            g.I(f"v_dot2_f32_bf16 v{QA+2*j}, v{lo}, v{XNP+k}, {s2a}")
            g.I(f"v_dot2_f32_bf16 v{QA+2*j+1}, v{hi}, v{XNP+k}, {s2b}")
        if k == 3:
            maybe_issue(4)
    g.nop(1)
    reduce_scatter_rows(g, [QA + j for j in range(8)])
    g.I(f"s_lshl_b32 s{S_T0}, s{S_WAVE}, 9")
    g.I(f"v_add_u32 v{ta}, s{S_T0}, v{V_QOFF}")
    g.I(f"ds_write_b64 v{ta}, {vr(QA,2)} offset:{L_QP}")
    g.I(f"v_lshlrev_b32 v{tb}, 5, v{V_Cc}")
    maybe_issue(5)
    g.I("s_waitcnt lgkmcnt(0)")
    g.I("s_barrier")
    stamp(g, cfg, 7)
    for w in range(8):
        g.I(f"ds_read_b128 {vr(V_W+8*w,4)}, v{tb} offset:{L_QP+512*w}")
        g.I(f"ds_read_b128 {vr(V_W+8*w+4,4)}, v{tb} offset:{L_QP+512*w+16}")
    g.I(f"v_mov_b32 v{V_M}, 0xff800000")
    g.I(f"v_mov_b32 v{V_L}, 0")
    for j in range(8):
        g.I(f"v_mov_b32 v{V_ACC+j}, 0")
    g.I(f"s_lshl_b32 s{S_T0}, s{S_WAVE}, 11")
    g.I(f"v_add_u32 v{V_WOA}, s{S_T0}, v{V_WOA}")
    for step in (1, 2, 4):
        g.I(f"s_waitcnt lgkmcnt({ {1: 0, 2: 0, 4: 0}[step] })") if step == 1 else None
        for w in range(0, 8, 2 * step):
            for j in range(8):
                g.I(f"v_add_f32 v{V_W+8*w+j}, v{V_W+8*w+j}, v{V_W+8*(w+step)+j}")
    for j in range(4):
        g.I(f"v_cvt_pk_bf16_f32 v{V_Q+j}, v{V_W+2*j}, v{V_W+2*j+1}")
    maybe_issue(6)
    assert nissued == D
    stamp(g, cfg, 1)

    def compute_block(slot):
        if cfg.nocompute:
            return
        kb = V_RING + slot * 32
        vb = kb + 16
        S = V_S
        for j in range(4):
            for i in range(4):
                src2 = "0" if j == 0 else f"v{S+i}"
                g.I(f"v_dot2_f32_bf16 v{S+i}, v{kb+4*i+j}, v{V_Q+j}, {src2}")
        t = V_T
        row_allreduce(g, "add_f32", [S + i for i in range(4)])
        g.I(f"v_cvt_pk_bf16_f32 v{t}, v{S}, v{S+1}")
        g.I(f"v_cvt_pk_bf16_f32 v{t+1}, v{S+2}, v{S+3}")
        g.I(f"v_lshlrev_b32 v{S}, 16, v{t}")
        g.I(f"v_and_b32 v{S+1}, s{S_MASK}, v{t}")
        g.I(f"v_lshlrev_b32 v{S+2}, 16, v{t+1}")
        g.I(f"v_and_b32 v{S+3}, s{S_MASK}, v{t+1}")
        for i in range(4):
            g.I(f"v_mul_f32 v{S+i}, s{S_SCALE}, v{S+i}")
        g.I(f"v_cvt_pk_bf16_f32 v{t}, v{S}, v{S+1}")
        g.I(f"v_cvt_pk_bf16_f32 v{t+1}, v{S+2}, v{S+3}")
        g.I(f"v_lshlrev_b32 v{S}, 16, v{t}")
        g.I(f"v_and_b32 v{S+1}, s{S_MASK}, v{t}")
        g.I(f"v_lshlrev_b32 v{S+2}, 16, v{t+1}")
        g.I(f"v_and_b32 v{S+3}, s{S_MASK}, v{t+1}")
        mn, al, mb = t + 2, t + 4, t + 3
        g.I(f"v_max3_f32 v{mn}, v{V_M}, v{S}, v{S+1}")
        g.I(f"v_max3_f32 v{mn}, v{mn}, v{S+2}, v{S+3}")
        g.I(f"v_sub_f32 v{al}, v{V_M}, v{mn}")
        g.I(f"v_mul_f32 v{mb}, s{S_LOG2E}, v{mn}")
        g.I(f"v_mul_f32 v{al}, s{S_LOG2E}, v{al}")
        for i in range(4):
            g.I(f"v_fma_f32 v{V_PP+i}, v{S+i}, s{S_LOG2E}, -v{mb}")
        g.I(f"v_exp_f32 v{al}, v{al}")
        for i in range(4):
            g.I(f"v_exp_f32 v{V_PP+i}, v{V_PP+i}")
        g.I(f"v_mov_b32 v{V_M}, v{mn}")
        for pr in range(2):
            for j in range(4):
                A, B = vb + 8 * pr + j, vb + 8 * pr + 4 + j
                g.I(f"v_perm_b32 v{kb+8*pr+2*j}, v{B}, v{A}, s{S_PLO}")
                g.I(f"v_perm_b32 v{kb+8*pr+2*j+1}, v{B}, v{A}, s{S_PHI}")
        g.I(f"v_mul_f32 v{V_L}, v{V_L}, v{al}")
        for j in range(4):
            g.I(f"v_pk_mul_f32 {vr(V_ACC+2*j,2)}, {vr(V_ACC+2*j,2)}, {vr(al,2)} op_sel_hi:[1,0]")
        g.I(f"v_cvt_pk_bf16_f32 v{V_PP+4}, v{V_PP}, v{V_PP+1}")
        g.I(f"v_cvt_pk_bf16_f32 v{V_PP+5}, v{V_PP+2}, v{V_PP+3}")
        g.I(f"v_add_f32 v{t}, v{V_PP}, v{V_PP+1}")
        g.I(f"v_add_f32 v{t+1}, v{V_PP+2}, v{V_PP+3}")
        g.I(f"v_add_f32 v{t}, v{t}, v{t+1}")
        g.I(f"v_add_f32 v{V_L}, v{V_L}, v{t}")
        for pr in range(2):
            for jj in range(8):
                g.I(f"v_dot2_f32_bf16 v{V_ACC+jj}, v{kb+8*pr+jj}, v{V_PP+4+pr}, v{V_ACC+jj}")

    def glu_part1():
        if cfg.noglu:
            return
        g.wait_tag("gu")
        for half, src in ((0, V_GT), (1, V_UP)):
            R = TMP8
            for j in range(4):
                g.I(f"v_lshlrev_b32 v{R[2*j]}, 16, v{src+j}")
                g.I(f"v_and_b32 v{R[2*j+1]}, s{S_MASK}, v{src+j}")
            for j in range(8):
                g.I(f"v_mul_f32 v{R[j]}, v{R[j]}, v{V_XROW}")
            reduce_scatter_rows(g, R)
            g.nop(2)
            row_allreduce(g, "add_f32", [R[0], R[1]])
            g.I(f"v_lshlrev_b32 v{R[2]}, 6, v{V_G}")
            g.I(f"s_lshl_b32 s{S_T0}, s{S_WAVE}, 2")
            g.I(f"v_add_u32 v{R[2]}, s{S_T0}, v{R[2]}")
            g.I(f"v_cmp_eq_u32 vcc, 0, v{V_Cc}")
            g.I(f"s_and_saveexec_b64 {sr(S_EX,2)}, vcc")
            g.I(f"ds_write_b32 v{R[2]}, v{R[0]} offset:{L_GU+256*half}")
            g.I(f"ds_write_b32 v{R[2]}, v{R[1]} offset:{L_GU+256*half+32}")
            g.I(f"s_mov_b64 exec, {sr(S_EX,2)}")
        g.I("s_waitcnt lgkmcnt(0)")

    def glu_part2():
        if cfg.noglu:
            return
        ta, tb = 62, 63
        R = TMP8
        g.I(f"v_lshrrev_b32 v{ta}, 3, v{V_LANE}")
        g.I(f"v_lshlrev_b32 v{ta}, 5, v{ta}")
        g.I(f"ds_read_b128 {vr(V_GT,4)}, v{ta} offset:{L_GU}")
        g.I(f"ds_read_b128 {vr(V_GT+4,4)}, v{ta} offset:{L_GU+16}")
        g.I(f"ds_read_b128 {vr(26,4)}, v{ta} offset:{L_GU+256}")
        g.I(f"ds_read_b64 {vr(30,2)}, v{ta} offset:{L_GU+272}")
        g.I(f"ds_read_b64 {vr(58,2)}, v{ta} offset:{L_GU+280}")
        g.I("s_waitcnt lgkmcnt(0)")
        for j in range(1, 8):
            g.I(f"v_add_f32 v{V_GT}, v{V_GT}, v{V_GT+j}")
            g.I(f"v_add_f32 v{R[0]}, v{R[0]}, v{R[j]}")
        ga, ua = V_GT, R[0]
        bf16_round2(g, ga, ua, tb)
        e = V_GT + 1
        g.I(f"v_mul_f32 v{e}, s{S_LOG2E}, v{ga}")
        g.I(f"v_sub_f32 v{e}, 0, v{e}")
        g.I(f"v_exp_f32 v{e}, v{e}")
        g.nop(1)
        g.I(f"v_add_f32 v{e}, 1.0, v{e}")
        g.I(f"v_rcp_f32 v{e+1}, v{e}")
        g.nop(1)
        g.I(f"v_fma_f32 v{e+2}, -v{e}, v{e+1}, 1.0")
        g.I(f"v_fma_f32 v{e+1}, v{e+2}, v{e+1}, v{e+1}")
        bf16_round1(g, e + 1, e + 1, tb)
        g.I(f"v_mul_f32 v{e+1}, v{e+1}, v{ua}")
        bf16_round1(g, e + 1, e + 1, tb)
        hh = e + 1
        g.wait_tag("dn")
        for j in range(4):
            g.I(f"v_lshlrev_b32 v{R[2*j]}, 16, v{V_DN+j}")
            g.I(f"v_and_b32 v{R[2*j+1]}, s{S_MASK}, v{V_DN+j}")
        for j in range(8):
            g.I(f"v_mul_f32 v{R[j]}, v{R[j]}, v{hh}")
        g.nop(2)
        for j in range(8):
            g.I(f"v_add_f32_dpp v{R[j]}, v{R[j]}, v{R[j]} row_ror:8 row_mask:0xf bank_mask:0xf")
        reduce_scatter_rows(g, R)
        g_addr(ta, tb)
        g.I(f"s_cmp_eq_u32 s{S_GVALID}, 0")
        g.I("s_cbranch_scc1 L_skip_glu")
        g.I(f"s_and_saveexec_b64 {sr(S_EX,2)}, vcc")
        g.I(f"buffer_store_dwordx2 {vr(R[0],2)}, v{tb}, {sr(R_WS,4)}, s{S_T0} offen sc0 sc1")
        g.I(f"s_mov_b64 exec, {sr(S_EX,2)}")
        g.lab("L_skip_glu")

    def glu_loads():
        if cfg.noglu:
            return
        ta = 62
        g.I(f"s_movk_i32 s{S_T1}, 3584")
        if cfg.glueff:
            g.I(f"v_lshrrev_b32 v{ta}, 3, v{V_TID}")
            g.I(f"v_mul_lo_u32 v{ta}, v{ta}, s{S_T1}")
            g.I(f"v_and_b32 v63, 7, v{V_LANE}")
            g.I(f"v_lshl_add_u32 v{ta}, v63, 4, v{ta}")
            g.I(f"s_and_b32 s{S_T0}, s{S_GJ}, 7")
            g.I(f"s_mul_i32 s{S_T0}, s{S_T0}, {64*3584}")
            g.I(f"s_lshr_b32 s{S_T1}, s{S_GJ}, 3")
            g.I(f"s_lshl_b32 s{S_T1}, s{S_T1}, 7")
            g.I(f"s_add_u32 s{S_T1}, s{S_T1}, s{S_T0}")
        else:
            g.I(f"v_mul_lo_u32 v{ta}, v{V_TID}, s{S_T1}")
            g.I(f"s_lshl_b32 s{S_T1}, s{S_GJ}, 4")
        g.vm(f"buffer_load_dwordx4 {vr(V_GT,4)}, v{ta}, {sr(R_GT,4)}, s{S_T1} offen{GNT}", "gu")
        g.vm(f"buffer_load_dwordx4 {vr(V_UP,4)}, v{ta}, {sr(R_UP,4)}, s{S_T1} offen{GNT}", "gu")
        g.I(f"v_lshrrev_b32 v63, 3, v{V_LANE}")
        g.I(f"v_lshlrev_b32 v63, 10, v63")
        g.I(f"v_and_b32 v59, 7, v{V_LANE}")
        g.I(f"v_lshl_add_u32 v63, v59, 4, v63")
        g.I(f"s_lshl_b32 s{S_T1}, s{S_GJ}, 13")
        g.I(f"s_lshl_b32 s{S_T0}, s{S_WAVE}, 7")
        g.I(f"s_add_u32 s{S_T1}, s{S_T1}, s{S_T0}")
        g.vm(f"buffer_load_dwordx4 {vr(V_DN,4)}, v63, {sr(R_DN,4)}, s{S_T1} offen{DNT}", "dn")

    def wo_perm():
        for k in range(8):
            for j in range(4):
                A, B = V_W + 8 * k + j, V_W + 8 * k + 4 + j
                tt = V_T + (j % 2)
                g.I(f"v_perm_b32 v{tt}, v{B}, v{A}, s{S_PLO}")
                g.I(f"v_perm_b32 v{B}, v{B}, v{A}, s{S_PHI}")
                g.I(f"v_mov_b32 v{A}, v{tt}")

    def wo_loads(k):
        if cfg.nowo:
            return
        g.I(f"s_add_u32 s{S_T2}, s{S_SPLIT}, {k}")
        g.I(f"s_and_b32 s{S_T2}, s{S_T2}, 7")
        g.I(f"s_lshl_b32 s{S_T2}, s{S_T2}, 14")
        g.vm(f"buffer_load_dwordx4 {vr(V_W+8*k,4)}, v{V_WOA}, {sr(R_WO,4)}, s{S_T2} offen{WONT}", "wo")
        g.vm(f"buffer_load_dwordx4 {vr(V_W+8*k+4,4)}, v{V_WOA}, {sr(R_WO,4)}, s{S_T2} offen offset:1024{WONT}", "wo")

    def y_addr(dst, tmp):
        g.I(f"v_lshrrev_b32 v{dst}, 3, v{V_LANE}")
        g.I(f"v_lshlrev_b32 v{dst}, 15, v{dst}")
        g.I(f"v_and_b32 v{tmp}, 7, v{V_LANE}")
        g.I(f"v_lshl_add_u32 v{dst}, v{tmp}, 4, v{dst}")

    def g_addr(ta, tb):
        g.I(f"v_and_b32 v{ta}, 7, v{V_LANE}")
        g.I(f"v_lshrrev_b32 v{tb}, 2, v{ta}")
        g.I(f"v_lshlrev_b32 v{tb}, 15, v{tb}")
        g.I(f"v_and_b32 v{ta}, 3, v{ta}")
        g.I(f"v_lshl_add_u32 v{tb}, v{ta}, 5, v{tb}")
        g.I(f"v_and_b32 v{ta}, 1, v{V_G}")
        g.I(f"v_lshl_add_u32 v{tb}, v{ta}, 3, v{tb}")
        g.I(f"v_lshrrev_b32 v{ta}, 1, v{V_G}")
        g.I(f"v_lshl_add_u32 v{tb}, v{ta}, 4, v{tb}")
        g.I(f"s_lshl_b32 s{S_T0}, s{S_WAVE}, 16")
        g.I(f"s_lshl_b32 s{S_T1}, s{S_GJ}, 7")
        g.I(f"s_add_u32 s{S_T0}, s{S_T0}, s{S_T1}")
        g.I(f"s_add_u32 s{S_T0}, s{S_T0}, {WS_G}")
        g.I(f"v_and_b32 v{ta}, 8, v{V_LANE}")
        g.I(f"v_cmp_eq_u32 vcc, 0, v{ta}")

    def clears():
        if cfg.noclr:
            return
        SN = 28
        for j in range(4):
            g.I(f"v_mov_b32 v{SN+j}, -1")
        g_addr(62, 63)
        g.I(f"s_cmp_eq_u32 s{S_GVALID}, 0")
        g.I("s_cbranch_scc1 L_skip_gclr")
        g.I(f"s_and_saveexec_b64 {sr(S_EX,2)}, vcc")
        g.I(f"buffer_store_dwordx2 {vr(SN,2)}, v63, {sr(R_WS,4)}, s{S_T0} offen sc0 sc1")
        g.I(f"s_mov_b64 exec, {sr(S_EX,2)}")
        g.lab("L_skip_gclr")
        g.I(f"s_cmp_lg_u32 s{S_WAVE}, 0")
        g.I("s_cbranch_scc1 L_skip_yclr")
        y_addr(62, 63)
        g.I(f"s_lshl_b32 s{S_T0}, s{S_P}, 7")
        g.I(f"s_add_u32 s{S_T1}, s{S_T0}, {8*32768}")
        g.I(f"buffer_store_dwordx4 {vr(SN,4)}, v62, {sr(R_WS,4)}, s{S_T0} offen sc0 sc1")
        g.I(f"buffer_store_dwordx4 {vr(SN,4)}, v62, {sr(R_WS,4)}, s{S_T1} offen sc0 sc1")
        g.I(f"s_lshl_b32 s{S_T1}, s{S_P}, 3")
        g.I(f"s_add_u32 s{S_T1}, s{S_T1}, {WS_ML}")
        g.I(f"v_mov_b32 v63, 0")
        g.I("s_mov_b64 exec, 1")
        g.I(f"buffer_store_dwordx2 {vr(SN,2)}, v63, {sr(R_WS,4)}, s{S_T1} offen sc0 sc1")
        g.I("s_mov_b64 exec, -1")
        g.lab("L_skip_yclr")

    for j in range(4):
        g.wait_tag(f"b{j}")
        compute_block(j)
        if cfg.loopbar:
            g.I("s_barrier")
        if j == 0:
            clears()
        issue_block(j, f"b{j}")
        for k in cfg.wo_sched.get(j, []):
            wo_loads(k)
        if j == cfg.glu_at:
            glu_loads()
    for j in range(4):
        g.wait_tag(f"b{j}")
        compute_block(j)
        if j == 2:
            glu_part1()
        if cfg.loopbar:
            g.I("s_barrier")
        if j == 0 and not cfg.noclr:
            g.I(f"s_cmp_lg_u32 s{S_WAVE}, 0")
            g.I("s_cbranch_scc1 L_skip_sig")
            g.I(f"v_mov_b32 v62, 1")
            g.I(f"v_mov_b32 v63, 0")
            g.I("s_mov_b64 exec, 1")
            g.I(f"buffer_atomic_add v62, v63, {sr(R_DBG,4)}, s{S_HOFF} offen")
            g.I("s_mov_b64 exec, -1")
            g.lab("L_skip_sig")
        issue_block(j, f"b{j}")
        for k in cfg.wo_sched.get(4 + j, []):
            wo_loads(k)
        if j == 3:
            glu_part2()
    for j in range(4):
        g.wait_tag(f"b{j}")
        compute_block(j)
        if cfg.loopbar:
            g.I("s_barrier")
        issue_block(j, f"b{j}")
    g.wait_tag("wo")
    wo_perm()
    g.I(f"s_mov_b32 s{S_CNT}, 5")
    g.lab("L_loop")
    if cfg.stamp:
        g.I(f"s_cmp_lg_u32 s{S_WAVE}, 0")
        g.I(f"s_cbranch_scc1 L_stl")
        g.I(f"s_memrealtime s[{S_TS}:{S_TS+1}]")
        g.I("s_waitcnt lgkmcnt(0)")
        g.I(f"v_mov_b32 v5, s{S_TS}")
        g.I(f"s_lshl_b32 s{S_TS}, s2, 6")
        g.I(f"s_lshl_b32 s{S_TS+1}, s{S_CNT}, 2")
        g.I(f"s_sub_u32 s{S_TS}, s{S_TS}, s{S_TS+1}")
        g.I(f"s_add_u32 s{S_TS}, s{S_TS}, {2*1024*1024 + 15*4}")
        g.I(f"v_mov_b32 v6, s{S_TS}")
        g.I(f"global_store_dword v6, v5, s[{S_WS}:{S_WS+1}]")
        g.lab("L_stl")
    for b in range(D):
        g.I(f"s_waitcnt vmcnt({8*(D-1)})")
        compute_block(b)
        if cfg.loopbar and (b % cfg.loopbar) == 0:
            g.I("s_barrier")
        issue_block(b, f"b{b}")
    g.I(f"s_sub_u32 s{S_CNT}, s{S_CNT}, 1")
    g.I(f"s_cmp_lg_u32 s{S_CNT}, 1")
    g.I("s_cbranch_scc1 L_nochk")
    g.I(f"v_lshlrev_b32 v62, 2, v{V_LANE}")
    g.I(f"v_and_b32 v62, 0x7f, v62")
    g.I(f"buffer_load_dword v63, v62, {sr(R_DBG,4)}, 0 offen sc0 sc1")
    g.lab("L_nochk")
    g.I(f"s_cmp_lg_u32 s{S_CNT}, 0")
    g.I("s_cbranch_scc1 L_loop")
    g.wait_all()
    stamp(g, cfg, 2)
    if cfg.notail:
        g.I("s_branch L_end")
    t = V_T
    mw = t
    g.I(f"v_mov_b32 v{mw}, v{V_M}")
    cross_row_allreduce(g, "max_f32", mw, t + 1)
    g.I(f"v_sub_f32 v{t+2}, v{V_M}, v{mw}")
    g.I(f"v_mul_f32 v{t+2}, s{S_LOG2E}, v{t+2}")
    g.I(f"v_exp_f32 v{t+2}, v{t+2}")
    g.nop(1)
    g.I(f"v_mul_f32 v{V_L}, v{V_L}, v{t+2}")
    for j in range(8):
        g.I(f"v_mul_f32 v{V_ACC+j}, v{V_ACC+j}, v{t+2}")
    cross_row_allreduce(g, "add_f32", V_L, t + 1)
    reduce_scatter_rows(g, [V_ACC + j for j in range(8)])
    g.I(f"s_lshl_b32 s{S_T0}, s{S_WAVE}, 9")
    g.I(f"v_add_u32 v{t+3}, s{S_T0}, v{V_QOFF}")
    g.I(f"ds_write_b64 v{t+3}, {vr(V_ACC,2)} offset:{L_OP}")
    g.I(f"v_mov_b32 v{t+1}, v{V_L}")
    g.I(f"s_lshl_b32 s{S_T0}, s{S_WAVE}, 3")
    g.I(f"v_mov_b32 v{t+3}, s{S_T0}")
    g.I(f"ds_write_b64 v{t+3}, {vr(t,2)} offset:{L_ML}")
    g.I(f"v_mov_b32 v{t+3}, 0")
    g.I(f"v_add_u32 v{t+4}, s{S_SPLIT}, v{V_LANE}")
    g.I(f"v_and_b32 v{t+4}, 7, v{t+4}")
    g.I(f"v_lshlrev_b32 v{t+4}, 6, v{t+4}")
    g.I(f"s_lshl_b32 s{S_T0}, s{S_WAVE}, 3")
    g.I(f"v_add_u32 v{t+4}, s{S_T0}, v{t+4}")
    g.I("s_waitcnt lgkmcnt(0)")
    g.I("s_barrier")
    ML = 24
    for k in range(4):
        g.I(f"ds_read_b128 {vr(ML+4*k,4)}, v{t+3} offset:{L_ML+16*k}")
    OPR = V_RING
    for w in range(8):
        g.I(f"ds_read_b64 {vr(OPR+2*w,2)}, v{t+4} offset:{L_OP+512*w}")
    g.I("s_waitcnt lgkmcnt(8)")
    M = t
    g.I(f"v_max3_f32 v{M}, v{ML}, v{ML+2}, v{ML+4}")
    g.I(f"v_max3_f32 v{M}, v{M}, v{ML+6}, v{ML+8}")
    g.I(f"v_max3_f32 v{M}, v{M}, v{ML+10}, v{ML+12}")
    g.I(f"v_max_f32 v{M}, v{M}, v{ML+14}")
    for w in range(8):
        g.I(f"v_sub_f32 v{ML+2*w}, v{ML+2*w}, v{M}")
    for w in range(8):
        g.I(f"v_mul_f32 v{ML+2*w}, s{S_LOG2E}, v{ML+2*w}")
    for w in range(8):
        g.I(f"v_exp_f32 v{ML+2*w}, v{ML+2*w}")
    oa, ob = t + 5, t + 6
    g.I("s_waitcnt lgkmcnt(0)")
    g.I(f"v_mul_f32 v{oa}, v{ML}, v{OPR}")
    g.I(f"v_mul_f32 v{ob}, v{ML}, v{OPR+1}")
    for w in range(1, 8):
        g.I(f"v_fmac_f32 v{oa}, v{ML+2*w}, v{OPR+2*w}")
        g.I(f"v_fmac_f32 v{ob}, v{ML+2*w}, v{OPR+2*w+1}")
    g.I(f"v_cvt_pk_bf16_f32 v{oa}, v{oa}, v{ob}")
    so = list(range(4, 12))
    Lr = t + 1
    g.I(f"v_mul_f32 v{Lr}, v{ML}, v{ML+1}")
    for k in range(8):
        g.I(f"v_readlane_b32 s{so[k]}, v{oa}, {k}")
    for w in range(1, 8):
        g.I(f"v_fmac_f32 v{Lr}, v{ML+2*w}, v{ML+2*w+1}")
    YA = V_ACC
    for k in range(8):
        for j in range(4):
            A, B = V_W + 8 * k + j, V_W + 8 * k + 4 + j
            c0 = "0" if k == 0 else f"v{YA+2*j}"
            c1 = "0" if k == 0 else f"v{YA+2*j+1}"
            g.I(f"v_dot2_f32_bf16 v{YA+2*j}, v{A}, s{so[k]}, {c0}")
            g.I(f"v_dot2_f32_bf16 v{YA+2*j+1}, v{B}, s{so[k]}, {c1}")
    g.I(f"v_lshlrev_b32 v{t+3}, 5, v{V_LANE}")
    g.I(f"s_lshl_b32 s{S_T0}, s{S_WAVE}, 11")
    g.I(f"v_add_u32 v{t+4}, s{S_T0}, v{t+3}")
    g.nop(1)
    g.I(f"ds_write_b128 v{t+4}, {vr(YA,4)} offset:{L_YP}")
    g.I(f"ds_write_b128 v{t+4}, {vr(YA+4,4)} offset:{L_YP+16}")
    g.I("s_waitcnt lgkmcnt(0)")
    g.I("s_barrier")
    g.I(f"s_cmp_lg_u32 s{S_WAVE}, 0")
    g.I("s_cbranch_scc1 L_after_pub")
    g.I(f"v_lshlrev_b32 v{t+3}, 4, v{V_LANE}")
    for w in range(8):
        g.I(f"ds_read_b128 {vr(V_RING+8*w,4)}, v{t+3} offset:{L_YP+2048*w}")
        g.I(f"ds_read_b128 {vr(V_RING+8*w+4,4)}, v{t+3} offset:{L_YP+2048*w+1024}")
    y_addr(t + 3, t + 4)
    g.I(f"s_lshl_b32 s{S_T0}, s{S_P}, 7")
    g.I(f"s_add_u32 s{S_T2}, s{S_T0}, {8*32768}")
    g.I(f"s_lshl_b32 s{S_T1}, s{S_P}, 3")
    g.I(f"s_add_u32 s{S_T1}, s{S_T1}, {WS_ML}")
    g.I(f"v_mov_b32 v{t+4}, 0")
    g.I(f"v_cmp_eq_u32 vcc, 0, v{V_LANE}")
    g.I("s_waitcnt lgkmcnt(0)")
    for step in (1, 2, 4):
        for w in range(0, 8, 2 * step):
            for j in range(8):
                g.I(f"v_add_f32 v{V_RING+8*w+j}, v{V_RING+8*w+j}, v{V_RING+8*(w+step)+j}")
    g.I(f"buffer_store_dwordx4 {vr(V_RING,4)}, v{t+3}, {sr(R_WS,4)}, s{S_T0} offen sc0 sc1")
    g.I(f"buffer_store_dwordx4 {vr(V_RING+4,4)}, v{t+3}, {sr(R_WS,4)}, s{S_T2} offen sc0 sc1")
    g.I(f"s_and_saveexec_b64 {sr(S_EX,2)}, vcc")
    g.I(f"buffer_store_dwordx2 {vr(t,2)}, v{t+4}, {sr(R_WS,4)}, s{S_T1} offen sc0 sc1")
    g.I(f"s_mov_b64 exec, {sr(S_EX,2)}")
    g.lab("L_after_pub")
    stamp(g, cfg, 3)

    def finisher(fid_sreg):
        t = V_T
        a0 = t
        g.I(f"v_lshlrev_b32 v62, 2, v{V_LANE}")
        g.I(f"v_and_b32 v62, 0x7f, v62")
        g.I(f"s_mov_b32 s{S_CNT}, 0x40000")
        g.lab("L_cpoll")
        g.I(f"v_cmp_gt_u32 vcc, 8, v63")
        g.I("s_cbranch_vccz L_cdone")
        g.I(f"s_sub_u32 s{S_CNT}, s{S_CNT}, 1")
        g.I(f"s_cmp_eq_u32 s{S_CNT}, 0")
        g.I("s_cbranch_scc1 L_cdone")
        g.I(f"buffer_load_dword v63, v62, {sr(R_DBG,4)}, 0 offen sc0 sc1")
        g.I("s_waitcnt vmcnt(0)")
        g.I("s_branch L_cpoll")
        g.lab("L_cdone")
        stamp(g, cfg, 4)
        g.I(f"v_lshrrev_b32 v{a0}, 2, v{V_TID}")
        g.I(f"v_lshlrev_b32 v{a0}, 7, v{a0}")
        g.I(f"v_and_b32 v{a0+1}, 3, v{V_TID}")
        g.I(f"v_lshl_add_u32 v{a0}, v{a0+1}, 4, v{a0}")
        g.I(f"s_lshr_b32 s{S_T0}, s{fid_sreg}, 1")
        g.I(f"s_lshl_b32 s{S_T0}, s{S_T0}, 15")
        g.I(f"s_and_b32 s{S_T1}, s{fid_sreg}, 1")
        g.I(f"s_lshl_b32 s{S_T1}, s{S_T1}, 6")
        g.I(f"s_add_u32 s{S_T0}, s{S_T0}, s{S_T1}")
        g.I(f"s_add_u32 s{S_T1}, s{S_T0}, 16384")
        g.I(f"s_add_u32 s{S_T2}, s{S_T0}, {WS_G}")
        g.I(f"s_add_u32 s{S_OFF}, s{S_T1}, {WS_G}")
        g.I(f"s_mov_b32 s{S_GJ}, {WS_ML}")
        Y1, Y2, G1, G2 = V_RING, V_RING + 4, V_RING + 8, V_RING + 12
        MLv = V_RING + 16
        g.I(f"v_and_b32 v{a0+1}, 15, v{V_LANE}")
        g.I(f"v_bfe_u32 v{a0+2}, v{V_LANE}, 4, 1")
        g.I(f"v_lshl_add_u32 v{a0+1}, v{a0+2}, 7, v{a0+1}")
        g.I(f"s_lshl_b32 s{S_RB}, s{S_WAVE}, 4")
        g.I(f"v_add_u32 v{a0+1}, s{S_RB}, v{a0+1}")
        g.I(f"v_lshlrev_b32 v{a0+1}, 3, v{a0+1}")
        g.I(f"v_and_b32 v{a0+5}, 15, v{V_TID}")
        g.I(f"v_lshlrev_b32 v{a0+5}, 1, v{a0+5}")
        g.I(f"s_lshl_b32 s{S_RB}, s{fid_sreg}, 5")
        g.I(f"buffer_load_ushort v{a0+6}, v{a0+5}, {sr(R_X,4)}, s{S_RB} offen")
        g.I(f"v_cmp_gt_u32 vcc, {96*4}, v{V_TID}")
        g.I(f"s_mov_b64 s[92:93], vcc")
        for j in range(4):
            g.I(f"v_mov_b32 v{G2+j}, 0")
        g.I(f"s_mov_b32 s{S_CNT}, 0x40000")
        g.lab("L_dpoll")
        g.I(f"buffer_load_dwordx2 {vr(MLv,2)}, v{a0+1}, {sr(R_WS,4)}, s{S_GJ} offen sc0 sc1")
        g.I(f"buffer_load_dwordx4 {vr(Y1,4)}, v{a0}, {sr(R_WS,4)}, s{S_T0} offen sc0 sc1")
        g.I(f"buffer_load_dwordx4 {vr(Y2,4)}, v{a0}, {sr(R_WS,4)}, s{S_T1} offen sc0 sc1")
        g.I(f"buffer_load_dwordx4 {vr(G1,4)}, v{a0}, {sr(R_WS,4)}, s{S_T2} offen sc0 sc1")
        g.I(f"s_and_b64 s[94:95], s[92:93], exec")
        g.I(f"s_cbranch_scc0 L_nog2")
        g.I(f"s_mov_b64 exec, s[92:93]")
        g.I(f"buffer_load_dwordx4 {vr(G2,4)}, v{a0}, {sr(R_WS,4)}, s{S_OFF} offen sc0 sc1")
        g.I(f"s_mov_b64 exec, -1")
        g.lab("L_nog2")
        g.I("s_waitcnt vmcnt(0)")
        mx = a0 + 8
        g.I(f"v_max3_u32 v{mx}, v{Y1}, v{Y1+1}, v{Y1+2}")
        g.I(f"v_max3_u32 v{mx+1}, v{Y1+3}, v{Y2}, v{Y2+1}")
        g.I(f"v_max3_u32 v{mx}, v{mx}, v{Y2+2}, v{Y2+3}")
        g.I(f"v_max3_u32 v{mx+1}, v{mx+1}, v{G1}, v{G1+1}")
        g.I(f"v_max3_u32 v{mx}, v{mx}, v{G1+2}, v{G1+3}")
        g.I(f"v_max3_u32 v{mx+1}, v{mx+1}, v{G2}, v{G2+1}")
        g.I(f"v_max3_u32 v{mx}, v{mx}, v{G2+2}, v{G2+3}")
        g.I(f"v_max3_u32 v{mx+1}, v{mx+1}, v{MLv}, v{MLv+1}")
        g.I(f"v_max_u32 v{mx}, v{mx}, v{mx+1}")
        g.I(f"v_cmp_eq_u32 vcc, -1, v{mx}")
        g.I("s_cbranch_vccz L_ddone")
        g.I(f"s_sub_u32 s{S_CNT}, s{S_CNT}, 1")
        g.I(f"s_cmp_lg_u32 s{S_CNT}, 0")
        g.I("s_cbranch_scc1 L_dpoll")
        g.lab("L_ddone")
        stamp(g, cfg, 9)
        M, W, Ls = a0 + 8, a0 + 9, a0 + 10
        g.I(f"v_mov_b32 v{M}, v{MLv}")
        g.nop(1)
        for dpp in ("quad_perm:[1,0,3,2]", "quad_perm:[2,3,0,1]", "row_half_mirror"):
            g.I(f"v_max_f32_dpp v{M}, v{M}, v{M} {dpp} row_mask:0xf bank_mask:0xf")
            g.nop(2)
        g.I(f"v_sub_f32 v{W}, v{MLv}, v{M}")
        g.I(f"v_mul_f32 v{W}, s{S_LOG2E}, v{W}")
        g.I(f"v_exp_f32 v{W}, v{W}")
        g.nop(1)
        g.I(f"v_mul_f32 v{Ls}, v{W}, v{MLv+1}")
        g.nop(2)
        for dpp in ("quad_perm:[1,0,3,2]", "quad_perm:[2,3,0,1]", "row_half_mirror"):
            g.I(f"v_add_f32_dpp v{Ls}, v{Ls}, v{Ls} {dpp} row_mask:0xf bank_mask:0xf")
            g.nop(2)
        c = a0 + 11
        g.I(f"v_rcp_f32 v{c}, v{Ls}")
        g.nop(1)
        g.I(f"v_fma_f32 v{M}, -v{Ls}, v{c}, 1.0")
        g.I(f"v_fma_f32 v{c}, v{M}, v{c}, v{c}")
        g.I(f"v_mul_f32 v{c}, v{c}, v{W}")
        g.I(f"v_and_b32 v{a0+1}, 0x3c, v{V_LANE}")
        g.I(f"v_add_u32 v{a0+2}, 64, v{a0+1}")
        c1, c2 = a0 + 8, a0 + 9
        g.I(f"ds_bpermute_b32 v{c1}, v{a0+1}, v{c}")
        g.I(f"ds_bpermute_b32 v{c2}, v{a0+2}, v{c}")
        for j in range(4):
            g.I(f"v_add_f32 v{G1+j}, v{G1+j}, v{G2+j}")
        g.I("s_waitcnt lgkmcnt(0)")
        for j in range(4):
            g.I(f"v_mul_f32 v{Y1+j}, v{c1}, v{Y1+j}")
        for j in range(4):
            g.I(f"v_fmac_f32 v{Y1+j}, v{c2}, v{Y2+j}")
        R8 = [Y1 + j for j in range(4)] + [G1 + j for j in range(4)]
        g.nop(2)
        for r in (4, 8):
            for x in R8:
                g.I(f"v_add_f32_dpp v{x}, v{x}, v{x} row_ror:{r} row_mask:0xf bank_mask:0xf")
        reduce_scatter_rows(g, R8)
        g.I(f"v_and_b32 v{a0}, 3, v{V_LANE}")
        g.I(f"v_lshlrev_b32 v{a0}, 4, v{a0}")
        g.I(f"v_and_b32 v{a0+1}, 1, v{V_G}")
        g.I(f"v_lshl_add_u32 v{a0}, v{a0+1}, 3, v{a0}")
        g.I(f"v_lshrrev_b32 v{a0+1}, 1, v{V_G}")
        g.I(f"v_lshl_add_u32 v{a0}, v{a0+1}, 6, v{a0}")
        g.I(f"s_lshl_b32 s{S_T0}, s{S_WAVE}, 7")
        g.I(f"v_add_u32 v{a0}, s{S_T0}, v{a0}")
        g.I(f"ds_write_b64 v{a0}, {vr(R8[0],2)} offset:{L_FIN}")
        g.I("s_waitcnt lgkmcnt(0)")
        g.I("s_barrier")
        g.I(f"s_cmp_lg_u32 s{S_WAVE}, 0")
        g.I("s_cbranch_scc1 L_end2")
        g.I(f"v_and_b32 v{a0}, 15, v{V_LANE}")
        g.I(f"v_lshlrev_b32 v{a0}, 2, v{a0}")
        for w in range(8):
            g.I(f"ds_read_b32 v{V_RING+16+w}, v{a0} offset:{L_FIN+128*w}")
            g.I(f"ds_read_b32 v{V_RING+24+w}, v{a0} offset:{L_FIN+128*w+64}")
        g.I("s_waitcnt lgkmcnt(0)")
        for step in (1, 2, 4):
            for w in range(0, 8, 2 * step):
                g.I(f"v_add_f32 v{V_RING+16+w}, v{V_RING+16+w}, v{V_RING+16+w+step}")
                g.I(f"v_add_f32 v{V_RING+24+w}, v{V_RING+24+w}, v{V_RING+24+w+step}")
        bf16_round2(g, V_RING + 16, V_RING + 24, a0 + 1)
        g.I(f"v_lshlrev_b32 v{a0+6}, 16, v{a0+6}")
        g.I(f"v_add_f32 v{a0+6}, v{a0+6}, v{V_RING+16}")
        bf16_round1(g, a0 + 6, a0 + 6, a0 + 1)
        g.I(f"v_add_f32 v{a0+6}, v{a0+6}, v{V_RING+24}")
        g.I(f"v_cvt_pk_bf16_f32 v{a0+6}, v{a0+6}, v{a0+6}")
        g.I(f"v_cmp_gt_u32 vcc, 16, v{V_LANE}")
        g.I(f"s_and_saveexec_b64 {sr(S_EX,2)}, vcc")
        g.I(f"s_lshl_b32 s{S_T2}, s{fid_sreg}, 5")
        g.I(f"buffer_store_short v{a0+6}, v{a0+5}, {sr(R_OUT,4)}, s{S_T2} offen")
        stamp(g, cfg, 5)
        g.lab("L_end2")

    g.I("s_cmp_ge_u32 s2, 32")
    g.I("s_cbranch_scc1 L_end")
    finisher(2)
    g.lab("L_end")
    g.I("s_endpgm")

    g.L.append('.section .rodata,"a"')
    g.L.append(".p2align 6")
    g.L.append(f".amdhsa_kernel {kmain}")
    g.L.append("  .amdhsa_next_free_vgpr 256")
    g.L.append("  .amdhsa_next_free_sgpr 102")
    g.L.append("  .amdhsa_accum_offset 256")
    g.L.append("  .amdhsa_group_segment_fixed_size 0")
    g.L.append("  .amdhsa_kernarg_size 96")
    g.L.append("  .amdhsa_user_sgpr_count 2")
    g.L.append("  .amdhsa_user_sgpr_kernarg_segment_ptr 1")
    g.L.append("  .amdhsa_system_sgpr_workgroup_id_x 1")
    g.L.append(".end_amdhsa_kernel")
    return g.text()


if __name__ == "__main__":
    ap = argparse.ArgumentParser()
    ap.add_argument("--nt", type=int, default=1)
    ap.add_argument("--stamp", type=int, default=0)
    ap.add_argument("--loopbar", type=int, default=1)
    ap.add_argument("--lnwave", type=int, default=0)
    ap.add_argument("--noclr", type=int, default=0)
    ap.add_argument("--noln", type=int, default=0)
    ap.add_argument("--touch", type=int, default=1)
    ap.add_argument("--wq1", type=int, default=0)
    ap.add_argument("--glueff", type=int, default=0)
    ap.add_argument("--wnt", type=int, default=0)
    ap.add_argument("--hmap", type=int, default=1)
    ap.add_argument("--nocompute", type=int, default=0)
    ap.add_argument("--notail", type=int, default=0)
    ap.add_argument("--nowo", type=int, default=0)
    ap.add_argument("--noglu", type=int, default=0)
    ap.add_argument("--nowq", type=int, default=0)
    ap.add_argument("--wosched", type=str, default="{0:[0],3:[1,2],4:[3,4],5:[5,6],6:[7]}")
    ap.add_argument("--glu_at", type=int, default=1)
    ap.add_argument("--issue", type=str, default="2,2,3,6")
    ap.add_argument("-o", default="parallel_sum__mha_block_cached__glu_gated_glu__decode.s")
    cfg = ap.parse_args()
    cfg.issue_at = [int(x) for x in cfg.issue.split(",")]
    cfg.wo_sched = eval(cfg.wosched)
    assert len(cfg.issue_at) == 4
    open(cfg.o, "w").write(gen(cfg))
    print("wrote", cfg.o)
```

```python
import sys, argparse
from gen import G, vr, sr, HEADER, KNAME

S_X, S_K, S_V, S_WQ, S_WO, S_BX, S_GT, S_UP = 4, 6, 8, 10, 12, 14, 16, 18
S_DN, S_OUT, S_DBG, S_WS = 20, 22, 24, 26
R_K, R_V, R_WQ, R_WO, R_GT, R_UP, R_DN, R_X, R_WS, R_OUT, R_DBG = 28, 32, 36, 40, 44, 48, 52, 56, 60, 64, 68
S_H, S_SPLIT, S_WAVE, S_OFF, S_CNT = 72, 73, 74, 75, 76
S_SCALE, S_LOG2E, S_MASK, S_P, S_GJ, S_T0, S_T1, S_T2, S_GVALID = 78, 79, 80, 81, 82, 83, 84, 85, 86
S_PLO, S_PHI = 87, 88
S_HOFF = 90
S_RB = 91
S_EX = 96
S_TS = 98

L_XN = 0
L_QP = 1024
L_GU = 5120
L_OP = 5632
L_ML = 9728
L_YP = 10240
L_FIN = 26624
LDS_BYTES = 27648

WS_Y = 0
WS_G = 512 * 1024
WS_ML = 1024 * 1024
WS_BYTES = 1024 * 1024 + 2048 + 4096


def srd(g, r, base_lo, base_hi, nbytes):
    g.I(f"s_mov_b32 s{r}, s{base_lo}")
    g.I(f"s_and_b32 s{r+1}, s{base_hi}, 0xffff")
    g.I(f"s_mov_b32 s{r+2}, {nbytes:#x}")
    g.I(f"s_mov_b32 s{r+3}, 0x00020000")


def srd_off(g, r, base_lo, base_hi, off_sreg, nbytes):
    g.I(f"s_add_u32 s{r}, s{base_lo}, s{off_sreg}")
    g.I(f"s_addc_u32 s{r+1}, s{base_hi}, 0")
    g.I(f"s_and_b32 s{r+1}, s{r+1}, 0xffff")
    g.I(f"s_mov_b32 s{r+2}, {nbytes:#x}")
    g.I(f"s_mov_b32 s{r+3}, 0x00020000")


def bf16_round1(g, dst, src, tmp):
    g.I(f"v_cvt_pk_bf16_f32 v{tmp}, v{src}, v{src}")
    g.I(f"v_lshlrev_b32 v{dst}, 16, v{tmp}")


def bf16_round2(g, a, b, tmp):
    g.I(f"v_cvt_pk_bf16_f32 v{tmp}, v{a}, v{b}")
    g.I(f"v_lshlrev_b32 v{a}, 16, v{tmp}")
    g.I(f"v_and_b32 v{b}, s{S_MASK}, v{tmp}")


def row_allreduce(g, op, regs):
    n = len(regs)
    for r in (8, 4, 2, 1):
        for x in regs:
            g.I(f"v_{op}_dpp v{x}, v{x}, v{x} row_ror:{r} row_mask:0xf bank_mask:0xf")
        if n < 3:
            g.nop(3 - n)


def cross_row_allreduce(g, op, x, t):
    g.I(f"v_mov_b32 v{t}, v{x}")
    g.nop(2)
    g.I(f"v_permlane16_swap_b32 v{x}, v{t}")
    g.nop(1)
    g.I(f"v_{op} v{x}, v{x}, v{t}")
    g.I(f"v_mov_b32 v{t}, v{x}")
    g.nop(2)
    g.I(f"v_permlane32_swap_b32 v{x}, v{t}")
    g.nop(1)
    g.I(f"v_{op} v{x}, v{x}, v{t}")


def wave_allreduce(g, op, x, t):
    row_allreduce(g, op, [x])
    cross_row_allreduce(g, op, x, t)


def reduce_scatter_rows(g, regs):
    n = len(regs)
    h = n // 2
    g.nop(2)
    for k in range(h):
        g.I(f"v_permlane32_swap_b32 v{regs[k]}, v{regs[k+h]}")
    g.nop(1)
    for k in range(h):
        g.I(f"v_add_f32 v{regs[k]}, v{regs[k]}, v{regs[k+h]}")
    qn = h // 2
    g.nop(2)
    for k in range(qn):
        g.I(f"v_permlane16_swap_b32 v{regs[k]}, v{regs[k+qn]}")
    g.nop(1)
    for k in range(qn):
        g.I(f"v_add_f32 v{regs[k]}, v{regs[k]}, v{regs[k+qn]}")


def stamp(g, cfg, idx, wave=0):
    if not cfg.stamp:
        return
    lab = f"L_st{idx}"
    g.I(f"s_cmp_lg_u32 s{S_WAVE}, {wave}")
    g.I(f"s_cbranch_scc1 {lab}")
    g.I(f"s_memrealtime s[{S_TS}:{S_TS+1}]")
    g.I("s_waitcnt lgkmcnt(0)")
    g.I(f"v_mov_b32 v5, s{S_TS}")
    g.I(f"s_lshl_b32 s{S_TS}, s2, 6")
    g.I(f"s_add_u32 s{S_TS}, s{S_TS}, {2*1024*1024 + idx*4}")
    g.I(f"v_mov_b32 v6, s{S_TS}")
    g.I(f"global_store_dword v6, v5, s[{S_WS}:{S_WS+1}]")
    g.lab(lab)


def gen(cfg):
    D = 4
    NT = " nt" if cfg.nt else ""
    WQNT = " nt" if cfg.wnt & 1 else ""
    WONT = " nt" if cfg.wnt & 2 else ""
    GNT = " nt" if cfg.wnt & 4 else ""
    DNT = " nt" if cfg.wnt & 8 else ""
    g = G()
    V_TID, V_LANE, V_KVOFF, V_G, V_Cc, V_WOA = 0, 1, 2, 3, 4, 7
    V_Q = 8
    V_ACC = 12
    V_M, V_L = 20, 21
    V_S = 22
    V_PP = 32
    V_T = 40
    V_GT, V_UP, V_DN = 46, 50, 54
    V_XROW = 60
    V_QOFF = 61
    TMP8 = [26, 27, 28, 29, 30, 31, 58, 59]
    V_W = 64
    V_RING = 128
    LNW = cfg.lnwave

    g.L.append(HEADER.rstrip("\n"))
    g.L.append(f"; @launch grid=(256,1,1) block=(512,1,1) lds={LDS_BYTES}")
    kmain = KNAME
    g.L.append('.amdgcn_target "amdgcn-amd-amdhsa--gfx950"')
    g.L.append(".text")
    g.L.append(f".globl {kmain}")
    g.L.append(".p2align 8")
    g.L.append(f".type {kmain},@function")
    g.lab(kmain)
    g.I("s_cmp_ge_u32 s2, 256")
    g.I("s_cbranch_scc1 L_end")
    g.I("s_load_dwordx16 s[4:19], s[0:1], 0")
    g.I("s_load_dwordx8 s[20:27], s[0:1], 64")
    g.I(f"v_and_b32 v{V_LANE}, 63, v{V_TID}")
    g.I(f"v_lshrrev_b32 v{V_T}, 6, v{V_TID}")
    g.I(f"v_lshrrev_b32 v{V_G}, 4, v{V_LANE}")
    g.I(f"v_readfirstlane_b32 s{S_WAVE}, v{V_T}")
    g.I(f"v_and_b32 v{V_Cc}, 15, v{V_LANE}")
    g.I(f"s_mov_b32 s{S_SCALE}, 0x3db504f3")
    g.I(f"s_mov_b32 s{S_LOG2E}, 0x3fb8aa3b")
    g.I(f"s_mov_b32 s{S_MASK}, 0xffff0000")
    g.I(f"s_mov_b32 s{S_PLO}, 0x05040100")
    g.I(f"s_mov_b32 s{S_PHI}, 0x07060302")
    g.I(f"s_and_b32 s{S_T0}, s2, 7")
    g.I(f"s_lshr_b32 s{S_T1}, s2, 3")
    g.I(f"s_and_b32 s{S_T2}, s{S_T1}, 3")
    if cfg.hmap == 0:
        g.I(f"s_lshl_b32 s{S_H}, s{S_T0}, 2")
        g.I(f"s_add_u32 s{S_H}, s{S_H}, s{S_T2}")
    else:
        g.I(f"s_lshl_b32 s{S_H}, s{S_T2}, 1")
        g.I(f"s_add_u32 s{S_H}, s{S_H}, s{S_T0}")
        g.I(f"s_and_b32 s{S_H}, s{S_H}, 7")
        g.I(f"s_lshl_b32 s{S_T2}, s{S_T2}, 3")
        g.I(f"s_add_u32 s{S_H}, s{S_H}, s{S_T2}")
    g.I(f"s_lshr_b32 s{S_SPLIT}, s{S_T1}, 2")
    g.I(f"s_lshl_b32 s{S_P}, s{S_H}, 3")
    g.I(f"s_add_u32 s{S_P}, s{S_P}, s{S_SPLIT}")
    g.I(f"s_lshl_b32 s{S_HOFF}, s{S_H}, 2")
    g.I(f"s_mul_i32 s{S_GJ}, s{S_T0}, 28")
    g.I(f"s_add_u32 s{S_GJ}, s{S_GJ}, s{S_T1}")
    g.I(f"s_cmp_lt_u32 s{S_T1}, 28")
    g.I(f"s_cselect_b32 s{S_GVALID}, 1, 0")
    g.I(f"s_cselect_b32 s{S_GJ}, s{S_GJ}, 0")
    V_A = 56
    g.I(f"v_lshlrev_b32 v{V_WOA}, 4, v{V_LANE}")
    g.I(f"v_lshlrev_b32 v{V_A+1}, 14, v{V_G}")
    g.I(f"v_lshl_add_u32 v{V_A+1}, v{V_Cc}, 4, v{V_A+1}")
    g.I(f"s_lshl_b32 s{S_T0}, s{S_WAVE}, 16")
    g.I(f"s_lshl_b32 s{S_T1}, s{S_H}, 8")
    g.I(f"s_add_u32 s{S_RB}, s{S_T0}, s{S_T1}")
    g.I(f"s_lshl_b32 s{S_T1}, s{S_WAVE}, 12")
    g.I(f"v_add_u32 v{V_KVOFF}, s{S_T1}, v{V_WOA}")
    g.I(f"s_lshl_b32 s{S_T2}, s{S_P}, 20")
    g.I("s_waitcnt lgkmcnt(0)")
    stamp(g, cfg, 0)
    if cfg.touch:
        TB = 92
        g.I(f"s_mov_b64 s[{TB}:{TB+1}], s[{S_WQ}:{S_WQ+1}]")
        g.I(f"s_mov_b32 s{TB+2}, 0x200000")
        def sel(w, ptr, off_code):
            g.I(f"s_cmp_eq_u32 s{S_WAVE}, {w}")
            g.I(f"s_cselect_b64 s[{TB}:{TB+1}], s[{ptr}:{ptr+1}], s[{TB}:{TB+1}]")
            g.I(f"s_cselect_b32 s{TB+2}, {off_code}, s{TB+2}")
        g.I(f"s_lshl_b32 s{TB+3}, s{S_H}, 17")
        sel(1, S_WO, f"s{TB+3}")
        sel(2, S_GT, "0")
        sel(3, S_UP, "0")
        g.I(f"s_lshl_b32 s{TB+3}, s{S_GJ}, 13")
        sel(4, S_DN, f"s{TB+3}")
        sel(5, S_WS, "0")
        sel(6, S_DBG, "0")
        sel(7, S_OUT, "0")
        g.I(f"v_mov_b32 v6, s{TB+2}")
        g.I(f"global_load_dword v5, v6, s[{TB}:{TB+1}]")
    srd(g, R_WQ, S_WQ, S_WQ + 1, 512 * 8192)
    srd(g, R_X, S_X, S_X + 1, 1024)
    srd_off(g, R_K, S_K, S_K + 1, S_T2, 0x100000)
    srd_off(g, R_V, S_V, S_V + 1, S_T2, 0x100000)
    g.I(f"s_cmp_lg_u32 s{S_WAVE}, {LNW}")
    g.I("s_cbranch_scc1 L_loads")
    if cfg.noln:
        g.I("s_branch L_loads")
    V_XR = V_T
    XF = V_PP
    g.I(f"buffer_load_dwordx4 {vr(V_XR,4)}, v{V_WOA}, {sr(R_X,4)}, 0 offen")
    g.I("s_waitcnt vmcnt(0)")
    stamp(g, cfg, 6, LNW)
    for j in range(4):
        g.I(f"v_lshlrev_b32 v{XF+2*j}, 16, v{V_XR+j}")
        g.I(f"v_and_b32 v{XF+2*j+1}, s{S_MASK}, v{V_XR+j}")
    t0, t1, t2, t3 = V_S, V_S + 1, V_S + 2, V_S + 3
    g.I(f"v_add_f32 v{t0}, v{XF}, v{XF+1}")
    g.I(f"v_add_f32 v{t1}, v{XF+2}, v{XF+3}")
    g.I(f"v_add_f32 v{t2}, v{XF+4}, v{XF+5}")
    g.I(f"v_add_f32 v{t3}, v{XF+6}, v{XF+7}")
    g.I(f"v_add_f32 v{t0}, v{t0}, v{t1}")
    g.I(f"v_add_f32 v{t2}, v{t2}, v{t3}")
    g.I(f"v_add_f32 v{t0}, v{t0}, v{t2}")
    g.nop(2)
    wave_allreduce(g, "add_f32", t0, t1)
    g.I(f"v_mul_f32 v{t0}, 0x3b000000, v{t0}")
    for j in range(8):
        g.I(f"v_sub_f32 v{12+j}, v{XF+j}, v{t0}")
    g.I(f"v_mul_f32 v{t1}, v12, v12")
    g.I(f"v_mul_f32 v{t2}, v13, v13")
    for j in range(2, 8, 2):
        g.I(f"v_fmac_f32 v{t1}, v{12+j}, v{12+j}")
        g.I(f"v_fmac_f32 v{t2}, v{13+j}, v{13+j}")
    g.I(f"v_add_f32 v{t1}, v{t1}, v{t2}")
    g.nop(2)
    wave_allreduce(g, "add_f32", t1, t2)
    g.I(f"v_mul_f32 v{t1}, 0x3b000000, v{t1}")
    bf16_round2(g, t0, t1, t2)
    g.I(f"v_add_f32 v{t1}, 0x3727c5ac, v{t1}")
    for j in range(8):
        g.I(f"v_sub_f32 v{XF+j}, v{XF+j}, v{t0}")
    bf16_round1(g, t1, t1, t2)
    g.I(f"v_sqrt_f32 v{t1}, v{t1}")
    for j in range(0, 8, 2):
        bf16_round2(g, XF + j, XF + j + 1, t2)
    bf16_round1(g, t1, t1, t2)
    g.I(f"v_rcp_f32 v{t3}, v{t1}")
    g.nop(1)
    for j in range(8):
        g.I(f"v_mul_f32 v{12+j}, v{XF+j}, v{t3}")
    for j in range(8):
        g.I(f"v_fma_f32 v{26+(j%4)}, -v{12+j}, v{t1}, v{XF+j}")
        g.I(f"v_fma_f32 v{XF+j}, v{26+(j%4)}, v{t3}, v{12+j}")
    XP = V_Q
    for j in range(4):
        g.I(f"v_cvt_pk_bf16_f32 v{XP+j}, v{XF+2*j}, v{XF+2*j+1}")
    g.I(f"ds_write_b128 v{V_WOA}, {vr(XP,4)} offset:{L_XN}")
    g.lab("L_loads")

    def issue_block(slot, tag):
        kb = V_RING + slot * 32
        for i in range(4):
            g.vm(f"buffer_load_dwordx4 {vr(kb+4*i,4)}, v{V_KVOFF}, {sr(R_K,4)}, s{S_OFF} offen offset:{i*1024}{NT}", tag)
        for i in range(4):
            g.vm(f"buffer_load_dwordx4 {vr(kb+16+4*i,4)}, v{V_KVOFF}, {sr(R_V,4)}, s{S_OFF} offen offset:{i*1024}{NT}", tag)
        g.I(f"s_add_u32 s{S_OFF}, s{S_OFF}, 32768")

    nissued = 0

    def maybe_issue(point):
        nonlocal nissued
        while nissued < D and cfg.issue_at[nissued] == point:
            issue_block(nissued, f"b{nissued}")
            nissued += 1

    g.I(f"s_mov_b32 s{S_OFF}, 0")
    maybe_issue(0)
    for k in range(8):
        g.I(f"s_add_u32 s{S_T0}, s{S_SPLIT}, {k}")
        g.I(f"s_and_b32 s{S_T0}, s{S_T0}, 7")
        g.I(f"s_lshl_b32 s{S_T0}, s{S_T0}, 19")
        g.I(f"s_add_u32 s{S_T0}, s{S_T0}, s{S_RB}")
        g.I(f"s_add_u32 s{S_T1}, s{S_T0}, 8192")
        if not cfg.nowq and not (cfg.wq1 and k > 0):
            g.vm(f"buffer_load_dwordx4 {vr(V_W+8*k,4)}, v{V_A+1}, {sr(R_WQ,4)}, s{S_T0} offen{WQNT}", f"wq{k//2}")
            g.vm(f"buffer_load_dwordx4 {vr(V_W+8*k+4,4)}, v{V_A+1}, {sr(R_WQ,4)}, s{S_T1} offen{WQNT}", f"wq{k//2}")
        if k == 0:
            maybe_issue(1)
    maybe_issue(2)
    srd(g, R_GT, S_GT, S_GT + 1, 512 * 3584)
    srd(g, R_UP, S_UP, S_UP + 1, 512 * 3584)
    srd(g, R_DN, S_DN, S_DN + 1, 1792 * 1024)
    srd(g, R_WS, S_WS, S_WS + 1, WS_BYTES)
    srd(g, R_OUT, S_OUT, S_OUT + 1, 1024)
    srd(g, R_DBG, S_DBG, S_DBG + 1, 256)
    g.I(f"s_lshl_b32 s{S_T0}, s{S_H}, 17")
    srd_off(g, R_WO, S_WO, S_WO + 1, S_T0, 0x20000)
    XNP = V_ACC
    g.I(f"s_lshl_b32 s{S_T0}, s{S_WAVE}, 4")
    g.I(f"v_lshlrev_b32 v{V_A}, 2, v{V_G}")
    g.I(f"v_add_u32 v{V_A}, s{S_T0}, v{V_A}")
    for k in range(8):
        g.I(f"s_add_u32 s{S_T0}, s{S_SPLIT}, {k}")
        g.I(f"s_and_b32 s{S_T0}, s{S_T0}, 7")
        g.I(f"s_lshl_b32 s{S_T0}, s{S_T0}, 7")
        g.I(f"v_add_u32 v{XNP+k}, s{S_T0}, v{V_A}")
    g.I(f"v_lshlrev_b32 v{V_A+2}, 1, v{V_TID}")
    g.I("s_waitcnt lgkmcnt(0)")
    g.I("s_barrier")
    stamp(g, cfg, 8)
    for k in range(8):
        g.I(f"ds_read_b32 v{XNP+k}, v{XNP+k} offset:{L_XN}")
    g.I(f"ds_read_u16 v{V_XROW}, v{V_A+2} offset:{L_XN}")
    maybe_issue(3)
    ta, tb, tc, td = 26, 27, 28, 29
    g.I(f"v_and_b32 v{ta}, 1, v{V_G}")
    g.I(f"v_lshlrev_b32 v{ta}, 3, v{ta}")
    g.I(f"v_lshrrev_b32 v{tb}, 1, v{V_G}")
    g.I(f"v_lshl_add_u32 v{ta}, v{tb}, 4, v{ta}")
    g.I(f"v_lshl_add_u32 v{V_QOFF}, v{V_Cc}, 5, v{ta}")
    g.I("s_waitcnt lgkmcnt(0)")
    g.I(f"v_lshlrev_b32 v{V_XROW}, 16, v{V_XROW}")
    QA = V_PP
    for k in range(8):
        if k % 2 == 0:
            g.wait_tag(f"wq{k//2}")
        for j in range(4):
            A, B = V_W + 8 * k + j, V_W + 8 * k + 4 + j
            lo, hi = (ta, tb) if j % 2 == 0 else (tc, td)
            g.I(f"v_perm_b32 v{lo}, v{B}, v{A}, s{S_PLO}")
            g.I(f"v_perm_b32 v{hi}, v{B}, v{A}, s{S_PHI}")
            s2a = "0" if k == 0 else f"v{QA+2*j}"
            s2b = "0" if k == 0 else f"v{QA+2*j+1}"
            g.I(f"v_dot2_f32_bf16 v{QA+2*j}, v{lo}, v{XNP+k}, {s2a}")
            g.I(f"v_dot2_f32_bf16 v{QA+2*j+1}, v{hi}, v{XNP+k}, {s2b}")
        if k == 3:
            maybe_issue(4)
    g.nop(1)
    reduce_scatter_rows(g, [QA + j for j in range(8)])
    g.I(f"s_lshl_b32 s{S_T0}, s{S_WAVE}, 9")
    g.I(f"v_add_u32 v{ta}, s{S_T0}, v{V_QOFF}")
    g.I(f"ds_write_b64 v{ta}, {vr(QA,2)} offset:{L_QP}")
    g.I(f"v_lshlrev_b32 v{tb}, 5, v{V_Cc}")
    maybe_issue(5)
    g.I("s_waitcnt lgkmcnt(0)")
    g.I("s_barrier")
    stamp(g, cfg, 7)
    for w in range(8):
        g.I(f"ds_read_b128 {vr(V_W+8*w,4)}, v{tb} offset:{L_QP+512*w}")
        g.I(f"ds_read_b128 {vr(V_W+8*w+4,4)}, v{tb} offset:{L_QP+512*w+16}")
    g.I(f"v_mov_b32 v{V_M}, 0xff800000")
    g.I(f"v_mov_b32 v{V_L}, 0")
    for j in range(8):
        g.I(f"v_mov_b32 v{V_ACC+j}, 0")
    g.I(f"s_lshl_b32 s{S_T0}, s{S_WAVE}, 11")
    g.I(f"v_add_u32 v{V_WOA}, s{S_T0}, v{V_WOA}")
    for step in (1, 2, 4):
        g.I(f"s_waitcnt lgkmcnt({ {1: 0, 2: 0, 4: 0}[step] })") if step == 1 else None
        for w in range(0, 8, 2 * step):
            for j in range(8):
                g.I(f"v_add_f32 v{V_W+8*w+j}, v{V_W+8*w+j}, v{V_W+8*(w+step)+j}")
    for j in range(4):
        g.I(f"v_cvt_pk_bf16_f32 v{V_Q+j}, v{V_W+2*j}, v{V_W+2*j+1}")
    maybe_issue(6)
    assert nissued == D
    stamp(g, cfg, 1)

    def compute_block(slot):
        if cfg.nocompute:
            return
        kb = V_RING + slot * 32
        vb = kb + 16
        S = V_S
        for j in range(4):
            for i in range(4):
                src2 = "0" if j == 0 else f"v{S+i}"
                g.I(f"v_dot2_f32_bf16 v{S+i}, v{kb+4*i+j}, v{V_Q+j}, {src2}")
        t = V_T
        row_allreduce(g, "add_f32", [S + i for i in range(4)])
        g.I(f"v_cvt_pk_bf16_f32 v{t}, v{S}, v{S+1}")
        g.I(f"v_cvt_pk_bf16_f32 v{t+1}, v{S+2}, v{S+3}")
        g.I(f"v_lshlrev_b32 v{S}, 16, v{t}")
        g.I(f"v_and_b32 v{S+1}, s{S_MASK}, v{t}")
        g.I(f"v_lshlrev_b32 v{S+2}, 16, v{t+1}")
        g.I(f"v_and_b32 v{S+3}, s{S_MASK}, v{t+1}")
        for i in range(4):
            g.I(f"v_mul_f32 v{S+i}, s{S_SCALE}, v{S+i}")
        g.I(f"v_cvt_pk_bf16_f32 v{t}, v{S}, v{S+1}")
        g.I(f"v_cvt_pk_bf16_f32 v{t+1}, v{S+2}, v{S+3}")
        g.I(f"v_lshlrev_b32 v{S}, 16, v{t}")
        g.I(f"v_and_b32 v{S+1}, s{S_MASK}, v{t}")
        g.I(f"v_lshlrev_b32 v{S+2}, 16, v{t+1}")
        g.I(f"v_and_b32 v{S+3}, s{S_MASK}, v{t+1}")
        mn, al, mb = t + 2, t + 4, t + 3
        g.I(f"v_max3_f32 v{mn}, v{V_M}, v{S}, v{S+1}")
        g.I(f"v_max3_f32 v{mn}, v{mn}, v{S+2}, v{S+3}")
        g.I(f"v_sub_f32 v{al}, v{V_M}, v{mn}")
        g.I(f"v_mul_f32 v{mb}, s{S_LOG2E}, v{mn}")
        g.I(f"v_mul_f32 v{al}, s{S_LOG2E}, v{al}")
        for i in range(4):
            g.I(f"v_fma_f32 v{V_PP+i}, v{S+i}, s{S_LOG2E}, -v{mb}")
        g.I(f"v_exp_f32 v{al}, v{al}")
        for i in range(4):
            g.I(f"v_exp_f32 v{V_PP+i}, v{V_PP+i}")
        g.I(f"v_mov_b32 v{V_M}, v{mn}")
        for pr in range(2):
            for j in range(4):
                A, B = vb + 8 * pr + j, vb + 8 * pr + 4 + j
                g.I(f"v_perm_b32 v{kb+8*pr+2*j}, v{B}, v{A}, s{S_PLO}")
                g.I(f"v_perm_b32 v{kb+8*pr+2*j+1}, v{B}, v{A}, s{S_PHI}")
        g.I(f"v_mul_f32 v{V_L}, v{V_L}, v{al}")
        for j in range(4):
            g.I(f"v_pk_mul_f32 {vr(V_ACC+2*j,2)}, {vr(V_ACC+2*j,2)}, {vr(al,2)} op_sel_hi:[1,0]")
        g.I(f"v_cvt_pk_bf16_f32 v{V_PP+4}, v{V_PP}, v{V_PP+1}")
        g.I(f"v_cvt_pk_bf16_f32 v{V_PP+5}, v{V_PP+2}, v{V_PP+3}")
        g.I(f"v_add_f32 v{t}, v{V_PP}, v{V_PP+1}")
        g.I(f"v_add_f32 v{t+1}, v{V_PP+2}, v{V_PP+3}")
        g.I(f"v_add_f32 v{t}, v{t}, v{t+1}")
        g.I(f"v_add_f32 v{V_L}, v{V_L}, v{t}")
        for pr in range(2):
            for jj in range(8):
                g.I(f"v_dot2_f32_bf16 v{V_ACC+jj}, v{kb+8*pr+jj}, v{V_PP+4+pr}, v{V_ACC+jj}")

    def glu_part1():
        if cfg.noglu:
            return
        g.wait_tag("gu")
        for half, src in ((0, V_GT), (1, V_UP)):
            R = TMP8
            for j in range(4):
                g.I(f"v_lshlrev_b32 v{R[2*j]}, 16, v{src+j}")
                g.I(f"v_and_b32 v{R[2*j+1]}, s{S_MASK}, v{src+j}")
            for j in range(8):
                g.I(f"v_mul_f32 v{R[j]}, v{R[j]}, v{V_XROW}")
            reduce_scatter_rows(g, R)
            g.nop(2)
            row_allreduce(g, "add_f32", [R[0], R[1]])
            g.I(f"v_lshlrev_b32 v{R[2]}, 6, v{V_G}")
            g.I(f"s_lshl_b32 s{S_T0}, s{S_WAVE}, 2")
            g.I(f"v_add_u32 v{R[2]}, s{S_T0}, v{R[2]}")
            g.I(f"v_cmp_eq_u32 vcc, 0, v{V_Cc}")
            g.I(f"s_and_saveexec_b64 {sr(S_EX,2)}, vcc")
            g.I(f"ds_write_b32 v{R[2]}, v{R[0]} offset:{L_GU+256*half}")
            g.I(f"ds_write_b32 v{R[2]}, v{R[1]} offset:{L_GU+256*half+32}")
            g.I(f"s_mov_b64 exec, {sr(S_EX,2)}")
        g.I("s_waitcnt lgkmcnt(0)")

    def glu_part2():
        if cfg.noglu:
            return
        ta, tb = 62, 63
        R = TMP8
        g.I(f"v_lshrrev_b32 v{ta}, 3, v{V_LANE}")
        g.I(f"v_lshlrev_b32 v{ta}, 5, v{ta}")
        g.I(f"ds_read_b128 {vr(V_GT,4)}, v{ta} offset:{L_GU}")
        g.I(f"ds_read_b128 {vr(V_GT+4,4)}, v{ta} offset:{L_GU+16}")
        g.I(f"ds_read_b128 {vr(26,4)}, v{ta} offset:{L_GU+256}")
        g.I(f"ds_read_b64 {vr(30,2)}, v{ta} offset:{L_GU+272}")
        g.I(f"ds_read_b64 {vr(58,2)}, v{ta} offset:{L_GU+280}")
        g.I("s_waitcnt lgkmcnt(0)")
        for j in range(1, 8):
            g.I(f"v_add_f32 v{V_GT}, v{V_GT}, v{V_GT+j}")
            g.I(f"v_add_f32 v{R[0]}, v{R[0]}, v{R[j]}")
        ga, ua = V_GT, R[0]
        bf16_round2(g, ga, ua, tb)
        e = V_GT + 1
        g.I(f"v_mul_f32 v{e}, s{S_LOG2E}, v{ga}")
        g.I(f"v_sub_f32 v{e}, 0, v{e}")
        g.I(f"v_exp_f32 v{e}, v{e}")
        g.nop(1)
        g.I(f"v_add_f32 v{e}, 1.0, v{e}")
        g.I(f"v_rcp_f32 v{e+1}, v{e}")
        g.nop(1)
        g.I(f"v_fma_f32 v{e+2}, -v{e}, v{e+1}, 1.0")
        g.I(f"v_fma_f32 v{e+1}, v{e+2}, v{e+1}, v{e+1}")
        bf16_round1(g, e + 1, e + 1, tb)
        g.I(f"v_mul_f32 v{e+1}, v{e+1}, v{ua}")
        bf16_round1(g, e + 1, e + 1, tb)
        hh = e + 1
        g.wait_tag("dn")
        for j in range(4):
            g.I(f"v_lshlrev_b32 v{R[2*j]}, 16, v{V_DN+j}")
            g.I(f"v_and_b32 v{R[2*j+1]}, s{S_MASK}, v{V_DN+j}")
        for j in range(8):
            g.I(f"v_mul_f32 v{R[j]}, v{R[j]}, v{hh}")
        g.nop(2)
        for j in range(8):
            g.I(f"v_add_f32_dpp v{R[j]}, v{R[j]}, v{R[j]} row_ror:8 row_mask:0xf bank_mask:0xf")
        reduce_scatter_rows(g, R)
        g_addr(ta, tb)
        g.I(f"s_cmp_eq_u32 s{S_GVALID}, 0")
        g.I("s_cbranch_scc1 L_skip_glu")
        g.I(f"s_and_saveexec_b64 {sr(S_EX,2)}, vcc")
        g.I(f"buffer_store_dwordx2 {vr(R[0],2)}, v{tb}, {sr(R_WS,4)}, s{S_T0} offen sc0 sc1")
        g.I(f"s_mov_b64 exec, {sr(S_EX,2)}")
        g.lab("L_skip_glu")

    def glu_loads():
        if cfg.noglu:
            return
        ta = 62
        g.I(f"s_movk_i32 s{S_T1}, 3584")
        if cfg.glueff:
            g.I(f"v_lshrrev_b32 v{ta}, 3, v{V_TID}")
            g.I(f"v_mul_lo_u32 v{ta}, v{ta}, s{S_T1}")
            g.I(f"v_and_b32 v63, 7, v{V_LANE}")
            g.I(f"v_lshl_add_u32 v{ta}, v63, 4, v{ta}")
            g.I(f"s_and_b32 s{S_T0}, s{S_GJ}, 7")
            g.I(f"s_mul_i32 s{S_T0}, s{S_T0}, {64*3584}")
            g.I(f"s_lshr_b32 s{S_T1}, s{S_GJ}, 3")
            g.I(f"s_lshl_b32 s{S_T1}, s{S_T1}, 7")
            g.I(f"s_add_u32 s{S_T1}, s{S_T1}, s{S_T0}")
        else:
            g.I(f"v_mul_lo_u32 v{ta}, v{V_TID}, s{S_T1}")
            g.I(f"s_lshl_b32 s{S_T1}, s{S_GJ}, 4")
        g.vm(f"buffer_load_dwordx4 {vr(V_GT,4)}, v{ta}, {sr(R_GT,4)}, s{S_T1} offen{GNT}", "gu")
        g.vm(f"buffer_load_dwordx4 {vr(V_UP,4)}, v{ta}, {sr(R_UP,4)}, s{S_T1} offen{GNT}", "gu")
        g.I(f"v_lshrrev_b32 v63, 3, v{V_LANE}")
        g.I(f"v_lshlrev_b32 v63, 10, v63")
        g.I(f"v_and_b32 v59, 7, v{V_LANE}")
        g.I(f"v_lshl_add_u32 v63, v59, 4, v63")
        g.I(f"s_lshl_b32 s{S_T1}, s{S_GJ}, 13")
        g.I(f"s_lshl_b32 s{S_T0}, s{S_WAVE}, 7")
        g.I(f"s_add_u32 s{S_T1}, s{S_T1}, s{S_T0}")
        g.vm(f"buffer_load_dwordx4 {vr(V_DN,4)}, v63, {sr(R_DN,4)}, s{S_T1} offen{DNT}", "dn")

    def wo_perm():
        for k in range(8):
            for j in range(4):
                A, B = V_W + 8 * k + j, V_W + 8 * k + 4 + j
                tt = V_T + (j % 2)
                g.I(f"v_perm_b32 v{tt}, v{B}, v{A}, s{S_PLO}")
                g.I(f"v_perm_b32 v{B}, v{B}, v{A}, s{S_PHI}")
                g.I(f"v_mov_b32 v{A}, v{tt}")

    def wo_loads(k):
        if cfg.nowo:
            return
        g.I(f"s_add_u32 s{S_T2}, s{S_SPLIT}, {k}")
        g.I(f"s_and_b32 s{S_T2}, s{S_T2}, 7")
        g.I(f"s_lshl_b32 s{S_T2}, s{S_T2}, 14")
        g.vm(f"buffer_load_dwordx4 {vr(V_W+8*k,4)}, v{V_WOA}, {sr(R_WO,4)}, s{S_T2} offen{WONT}", "wo")
        g.vm(f"buffer_load_dwordx4 {vr(V_W+8*k+4,4)}, v{V_WOA}, {sr(R_WO,4)}, s{S_T2} offen offset:1024{WONT}", "wo")

    def y_addr(dst, tmp):
        g.I(f"v_lshrrev_b32 v{dst}, 3, v{V_LANE}")
        g.I(f"v_lshlrev_b32 v{dst}, 15, v{dst}")
        g.I(f"v_and_b32 v{tmp}, 7, v{V_LANE}")
        g.I(f"v_lshl_add_u32 v{dst}, v{tmp}, 4, v{dst}")

    def g_addr(ta, tb):
        g.I(f"v_and_b32 v{ta}, 7, v{V_LANE}")
        g.I(f"v_lshrrev_b32 v{tb}, 2, v{ta}")
        g.I(f"v_lshlrev_b32 v{tb}, 15, v{tb}")
        g.I(f"v_and_b32 v{ta}, 3, v{ta}")
        g.I(f"v_lshl_add_u32 v{tb}, v{ta}, 5, v{tb}")
        g.I(f"v_and_b32 v{ta}, 1, v{V_G}")
        g.I(f"v_lshl_add_u32 v{tb}, v{ta}, 3, v{tb}")
        g.I(f"v_lshrrev_b32 v{ta}, 1, v{V_G}")
        g.I(f"v_lshl_add_u32 v{tb}, v{ta}, 4, v{tb}")
        g.I(f"s_lshl_b32 s{S_T0}, s{S_WAVE}, 16")
        g.I(f"s_lshl_b32 s{S_T1}, s{S_GJ}, 7")
        g.I(f"s_add_u32 s{S_T0}, s{S_T0}, s{S_T1}")
        g.I(f"s_add_u32 s{S_T0}, s{S_T0}, {WS_G}")
        g.I(f"v_and_b32 v{ta}, 8, v{V_LANE}")
        g.I(f"v_cmp_eq_u32 vcc, 0, v{ta}")

    def clears():
        if cfg.noclr:
            return
        SN = 28
        for j in range(4):
            g.I(f"v_mov_b32 v{SN+j}, -1")
        g_addr(62, 63)
        g.I(f"s_cmp_eq_u32 s{S_GVALID}, 0")
        g.I("s_cbranch_scc1 L_skip_gclr")
        g.I(f"s_and_saveexec_b64 {sr(S_EX,2)}, vcc")
        g.I(f"buffer_store_dwordx2 {vr(SN,2)}, v63, {sr(R_WS,4)}, s{S_T0} offen sc0 sc1")
        g.I(f"s_mov_b64 exec, {sr(S_EX,2)}")
        g.lab("L_skip_gclr")
        g.I(f"s_cmp_lg_u32 s{S_WAVE}, 0")
        g.I("s_cbranch_scc1 L_skip_yclr")
        y_addr(62, 63)
        g.I(f"s_lshl_b32 s{S_T0}, s{S_P}, 7")
        g.I(f"s_add_u32 s{S_T1}, s{S_T0}, {8*32768}")
        g.I(f"buffer_store_dwordx4 {vr(SN,4)}, v62, {sr(R_WS,4)}, s{S_T0} offen sc0 sc1")
        g.I(f"buffer_store_dwordx4 {vr(SN,4)}, v62, {sr(R_WS,4)}, s{S_T1} offen sc0 sc1")
        g.I(f"s_lshl_b32 s{S_T1}, s{S_P}, 3")
        g.I(f"s_add_u32 s{S_T1}, s{S_T1}, {WS_ML}")
        g.I(f"v_mov_b32 v63, 0")
        g.I("s_mov_b64 exec, 1")
        g.I(f"buffer_store_dwordx2 {vr(SN,2)}, v63, {sr(R_WS,4)}, s{S_T1} offen sc0 sc1")
        g.I("s_mov_b64 exec, -1")
        g.lab("L_skip_yclr")

    for j in range(4):
        g.wait_tag(f"b{j}")
        compute_block(j)
        if cfg.loopbar:
            g.I("s_barrier")
        if j == 0:
            clears()
        issue_block(j, f"b{j}")
        for k in cfg.wo_sched.get(j, []):
            wo_loads(k)
        if j == cfg.glu_at:
            glu_loads()
    for j in range(4):
        g.wait_tag(f"b{j}")
        compute_block(j)
        if j == 2:
            glu_part1()
        if cfg.loopbar:
            g.I("s_barrier")
        if j == 0 and not cfg.noclr:
            g.I(f"s_cmp_lg_u32 s{S_WAVE}, 0")
            g.I("s_cbranch_scc1 L_skip_sig")
            g.I(f"v_mov_b32 v62, 1")
            g.I(f"v_mov_b32 v63, 0")
            g.I("s_mov_b64 exec, 1")
            g.I(f"buffer_atomic_add v62, v63, {sr(R_DBG,4)}, s{S_HOFF} offen")
            g.I("s_mov_b64 exec, -1")
            g.lab("L_skip_sig")
        issue_block(j, f"b{j}")
        for k in cfg.wo_sched.get(4 + j, []):
            wo_loads(k)
        if j == 3:
            glu_part2()
    for j in range(4):
        g.wait_tag(f"b{j}")
        compute_block(j)
        if cfg.loopbar:
            g.I("s_barrier")
        issue_block(j, f"b{j}")
    g.wait_tag("wo")
    wo_perm()
    g.I(f"s_mov_b32 s{S_CNT}, 5")
    g.lab("L_loop")
    if cfg.stamp:
        g.I(f"s_cmp_lg_u32 s{S_WAVE}, 0")
        g.I(f"s_cbranch_scc1 L_stl")
        g.I(f"s_memrealtime s[{S_TS}:{S_TS+1}]")
        g.I("s_waitcnt lgkmcnt(0)")
        g.I(f"v_mov_b32 v5, s{S_TS}")
        g.I(f"s_lshl_b32 s{S_TS}, s2, 6")
        g.I(f"s_lshl_b32 s{S_TS+1}, s{S_CNT}, 2")
        g.I(f"s_sub_u32 s{S_TS}, s{S_TS}, s{S_TS+1}")
        g.I(f"s_add_u32 s{S_TS}, s{S_TS}, {2*1024*1024 + 15*4}")
        g.I(f"v_mov_b32 v6, s{S_TS}")
        g.I(f"global_store_dword v6, v5, s[{S_WS}:{S_WS+1}]")
        g.lab("L_stl")
    for b in range(D):
        g.I(f"s_waitcnt vmcnt({8*(D-1)})")
        compute_block(b)
        if cfg.loopbar and (b % cfg.loopbar) == 0:
            g.I("s_barrier")
        issue_block(b, f"b{b}")
    g.I(f"s_sub_u32 s{S_CNT}, s{S_CNT}, 1")
    g.I(f"s_cmp_lg_u32 s{S_CNT}, 1")
    g.I("s_cbranch_scc1 L_nochk")
    g.I(f"v_lshlrev_b32 v62, 2, v{V_LANE}")
    g.I(f"v_and_b32 v62, 0x7f, v62")
    g.I(f"buffer_load_dword v63, v62, {sr(R_DBG,4)}, 0 offen sc0 sc1")
    g.lab("L_nochk")
    g.I(f"s_cmp_lg_u32 s{S_CNT}, 0")
    g.I("s_cbranch_scc1 L_loop")
    g.wait_all()
    stamp(g, cfg, 2)
    if cfg.notail:
        g.I("s_branch L_end")
    t = V_T
    mw = t
    g.I(f"v_mov_b32 v{mw}, v{V_M}")
    cross_row_allreduce(g, "max_f32", mw, t + 1)
    g.I(f"v_sub_f32 v{t+2}, v{V_M}, v{mw}")
    g.I(f"v_mul_f32 v{t+2}, s{S_LOG2E}, v{t+2}")
    g.I(f"v_exp_f32 v{t+2}, v{t+2}")
    g.nop(1)
    g.I(f"v_mul_f32 v{V_L}, v{V_L}, v{t+2}")
    for j in range(8):
        g.I(f"v_mul_f32 v{V_ACC+j}, v{V_ACC+j}, v{t+2}")
    cross_row_allreduce(g, "add_f32", V_L, t + 1)
    reduce_scatter_rows(g, [V_ACC + j for j in range(8)])
    g.I(f"s_lshl_b32 s{S_T0}, s{S_WAVE}, 9")
    g.I(f"v_add_u32 v{t+3}, s{S_T0}, v{V_QOFF}")
    g.I(f"ds_write_b64 v{t+3}, {vr(V_ACC,2)} offset:{L_OP}")
    g.I(f"v_mov_b32 v{t+1}, v{V_L}")
    g.I(f"s_lshl_b32 s{S_T0}, s{S_WAVE}, 3")
    g.I(f"v_mov_b32 v{t+3}, s{S_T0}")
    g.I(f"ds_write_b64 v{t+3}, {vr(t,2)} offset:{L_ML}")
    g.I(f"v_mov_b32 v{t+3}, 0")
    g.I(f"v_add_u32 v{t+4}, s{S_SPLIT}, v{V_LANE}")
    g.I(f"v_and_b32 v{t+4}, 7, v{t+4}")
    g.I(f"v_lshlrev_b32 v{t+4}, 6, v{t+4}")
    g.I(f"s_lshl_b32 s{S_T0}, s{S_WAVE}, 3")
    g.I(f"v_add_u32 v{t+4}, s{S_T0}, v{t+4}")
    g.I("s_waitcnt lgkmcnt(0)")
    g.I("s_barrier")
    ML = 24
    for k in range(4):
        g.I(f"ds_read_b128 {vr(ML+4*k,4)}, v{t+3} offset:{L_ML+16*k}")
    OPR = V_RING
    for w in range(8):
        g.I(f"ds_read_b64 {vr(OPR+2*w,2)}, v{t+4} offset:{L_OP+512*w}")
    g.I("s_waitcnt lgkmcnt(8)")
    M = t
    g.I(f"v_max3_f32 v{M}, v{ML}, v{ML+2}, v{ML+4}")
    g.I(f"v_max3_f32 v{M}, v{M}, v{ML+6}, v{ML+8}")
    g.I(f"v_max3_f32 v{M}, v{M}, v{ML+10}, v{ML+12}")
    g.I(f"v_max_f32 v{M}, v{M}, v{ML+14}")
    for w in range(8):
        g.I(f"v_sub_f32 v{ML+2*w}, v{ML+2*w}, v{M}")
    for w in range(8):
        g.I(f"v_mul_f32 v{ML+2*w}, s{S_LOG2E}, v{ML+2*w}")
    for w in range(8):
        g.I(f"v_exp_f32 v{ML+2*w}, v{ML+2*w}")
    oa, ob = t + 5, t + 6
    g.I("s_waitcnt lgkmcnt(0)")
    g.I(f"v_mul_f32 v{oa}, v{ML}, v{OPR}")
    g.I(f"v_mul_f32 v{ob}, v{ML}, v{OPR+1}")
    for w in range(1, 8):
        g.I(f"v_fmac_f32 v{oa}, v{ML+2*w}, v{OPR+2*w}")
        g.I(f"v_fmac_f32 v{ob}, v{ML+2*w}, v{OPR+2*w+1}")
    g.I(f"v_cvt_pk_bf16_f32 v{oa}, v{oa}, v{ob}")
    so = list(range(4, 12))
    Lr = t + 1
    g.I(f"v_mul_f32 v{Lr}, v{ML}, v{ML+1}")
    for k in range(8):
        g.I(f"v_readlane_b32 s{so[k]}, v{oa}, {k}")
    for w in range(1, 8):
        g.I(f"v_fmac_f32 v{Lr}, v{ML+2*w}, v{ML+2*w+1}")
    YA = V_ACC
    for k in range(8):
        for j in range(4):
            A, B = V_W + 8 * k + j, V_W + 8 * k + 4 + j
            c0 = "0" if k == 0 else f"v{YA+2*j}"
            c1 = "0" if k == 0 else f"v{YA+2*j+1}"
            g.I(f"v_dot2_f32_bf16 v{YA+2*j}, v{A}, s{so[k]}, {c0}")
            g.I(f"v_dot2_f32_bf16 v{YA+2*j+1}, v{B}, s{so[k]}, {c1}")
    g.I(f"v_lshlrev_b32 v{t+3}, 5, v{V_LANE}")
    g.I(f"s_lshl_b32 s{S_T0}, s{S_WAVE}, 11")
    g.I(f"v_add_u32 v{t+4}, s{S_T0}, v{t+3}")
    g.nop(1)
    g.I(f"ds_write_b128 v{t+4}, {vr(YA,4)} offset:{L_YP}")
    g.I(f"ds_write_b128 v{t+4}, {vr(YA+4,4)} offset:{L_YP+16}")
    g.I("s_waitcnt lgkmcnt(0)")
    g.I("s_barrier")
    if cfg.parc:
        g.I(f"v_lshlrev_b32 v{t+3}, 11, v{V_G}")
        g.I(f"v_lshl_add_u32 v{t+3}, v{V_Cc}, 4, v{t+3}")
        g.I(f"s_lshl_b32 s{S_T0}, s{S_WAVE}, 8")
        g.I(f"v_add_u32 v{t+3}, s{S_T0}, v{t+3}")
        g.I(f"ds_read_b128 {vr(V_RING,4)}, v{t+3} offset:{L_YP}")
        g.I(f"ds_read_b128 {vr(V_RING+4,4)}, v{t+3} offset:{L_YP+8192}")
        g.I(f"v_lshrrev_b32 v{t+4}, 3, v{V_Cc}")
        g.I(f"v_lshlrev_b32 v{t+4}, 15, v{t+4}")
        g.I(f"v_and_b32 v{t+5}, 7, v{V_Cc}")
        g.I(f"v_lshl_add_u32 v{t+4}, v{t+5}, 4, v{t+4}")
        g.I(f"v_lshl_add_u32 v{t+4}, v{V_G}, 2, v{t+4}")
        g.I(f"s_lshl_b32 s{S_T0}, s{S_WAVE}, 16")
        g.I(f"s_lshl_b32 s{S_T1}, s{S_P}, 7")
        g.I(f"s_add_u32 s{S_T0}, s{S_T0}, s{S_T1}")
        g.I(f"s_lshl_b32 s{S_T1}, s{S_P}, 3")
        g.I(f"s_add_u32 s{S_T1}, s{S_T1}, {WS_ML}")
        g.I(f"v_mov_b32 v{t+5}, 0")
        g.I("s_waitcnt lgkmcnt(0)")
        for j in range(4):
            g.I(f"v_add_f32 v{V_RING+j}, v{V_RING+j}, v{V_RING+4+j}")
        reduce_scatter_rows(g, [V_RING + j for j in range(4)])
        g.I(f"buffer_store_dword v{V_RING}, v{t+4}, {sr(R_WS,4)}, s{S_T0} offen sc0 sc1")
        g.I(f"s_cmp_lg_u32 s{S_WAVE}, 0")
        g.I("s_cbranch_scc1 L_after_pub")
        g.I("s_mov_b64 exec, 1")
        g.I(f"buffer_store_dwordx2 {vr(t,2)}, v{t+5}, {sr(R_WS,4)}, s{S_T1} offen sc0 sc1")
        g.I("s_mov_b64 exec, -1")
    else:
        g.I(f"s_cmp_lg_u32 s{S_WAVE}, 0")
        g.I("s_cbranch_scc1 L_after_pub")
        g.I(f"v_lshlrev_b32 v{t+3}, 4, v{V_LANE}")
        for w in range(8):
            g.I(f"ds_read_b128 {vr(V_RING+8*w,4)}, v{t+3} offset:{L_YP+2048*w}")
            g.I(f"ds_read_b128 {vr(V_RING+8*w+4,4)}, v{t+3} offset:{L_YP+2048*w+1024}")
        y_addr(t + 3, t + 4)
        g.I(f"s_lshl_b32 s{S_T0}, s{S_P}, 7")
        g.I(f"s_add_u32 s{S_T2}, s{S_T0}, {8*32768}")
        g.I(f"s_lshl_b32 s{S_T1}, s{S_P}, 3")
        g.I(f"s_add_u32 s{S_T1}, s{S_T1}, {WS_ML}")
        g.I(f"v_mov_b32 v{t+4}, 0")
        g.I(f"v_cmp_eq_u32 vcc, 0, v{V_LANE}")
        g.I("s_waitcnt lgkmcnt(0)")
        for step in (1, 2, 4):
            for w in range(0, 8, 2 * step):
                for j in range(8):
                    g.I(f"v_add_f32 v{V_RING+8*w+j}, v{V_RING+8*w+j}, v{V_RING+8*(w+step)+j}")
        g.I(f"buffer_store_dwordx4 {vr(V_RING,4)}, v{t+3}, {sr(R_WS,4)}, s{S_T0} offen sc0 sc1")
        g.I(f"buffer_store_dwordx4 {vr(V_RING+4,4)}, v{t+3}, {sr(R_WS,4)}, s{S_T2} offen sc0 sc1")
        g.I(f"s_and_saveexec_b64 {sr(S_EX,2)}, vcc")
        g.I(f"buffer_store_dwordx2 {vr(t,2)}, v{t+4}, {sr(R_WS,4)}, s{S_T1} offen sc0 sc1")
        g.I(f"s_mov_b64 exec, {sr(S_EX,2)}")
    g.lab("L_after_pub")
    stamp(g, cfg, 3)

    def finisher(fid_sreg):
        t = V_T
        a0 = t
        g.I(f"v_lshlrev_b32 v62, 2, v{V_LANE}")
        g.I(f"v_and_b32 v62, 0x7f, v62")
        g.I(f"s_mov_b32 s{S_CNT}, 0x40000")
        g.lab("L_cpoll")
        g.I(f"v_cmp_gt_u32 vcc, 8, v63")
        g.I("s_cbranch_vccz L_cdone")
        g.I(f"s_sub_u32 s{S_CNT}, s{S_CNT}, 1")
        g.I(f"s_cmp_eq_u32 s{S_CNT}, 0")
        g.I("s_cbranch_scc1 L_cdone")
        g.I(f"buffer_load_dword v63, v62, {sr(R_DBG,4)}, 0 offen sc0 sc1")
        g.I("s_waitcnt vmcnt(0)")
        g.I("s_branch L_cpoll")
        g.lab("L_cdone")
        stamp(g, cfg, 4)
        g.I(f"v_lshrrev_b32 v{a0}, 2, v{V_TID}")
        g.I(f"v_lshlrev_b32 v{a0}, 7, v{a0}")
        g.I(f"v_and_b32 v{a0+1}, 3, v{V_TID}")
        g.I(f"v_lshl_add_u32 v{a0}, v{a0+1}, 4, v{a0}")
        g.I(f"s_lshr_b32 s{S_T0}, s{fid_sreg}, 1")
        g.I(f"s_lshl_b32 s{S_T0}, s{S_T0}, 15")
        g.I(f"s_and_b32 s{S_T1}, s{fid_sreg}, 1")
        g.I(f"s_lshl_b32 s{S_T1}, s{S_T1}, 6")
        g.I(f"s_add_u32 s{S_T0}, s{S_T0}, s{S_T1}")
        g.I(f"s_add_u32 s{S_T1}, s{S_T0}, 16384")
        g.I(f"s_add_u32 s{S_T2}, s{S_T0}, {WS_G}")
        g.I(f"s_add_u32 s{S_OFF}, s{S_T1}, {WS_G}")
        g.I(f"s_mov_b32 s{S_GJ}, {WS_ML}")
        Y1, Y2, G1, G2 = V_RING, V_RING + 4, V_RING + 8, V_RING + 12
        MLv = V_RING + 16
        g.I(f"v_and_b32 v{a0+1}, 15, v{V_LANE}")
        g.I(f"v_bfe_u32 v{a0+2}, v{V_LANE}, 4, 1")
        g.I(f"v_lshl_add_u32 v{a0+1}, v{a0+2}, 7, v{a0+1}")
        g.I(f"s_lshl_b32 s{S_RB}, s{S_WAVE}, 4")
        g.I(f"v_add_u32 v{a0+1}, s{S_RB}, v{a0+1}")
        g.I(f"v_lshlrev_b32 v{a0+1}, 3, v{a0+1}")
        g.I(f"v_and_b32 v{a0+5}, 15, v{V_TID}")
        g.I(f"v_lshlrev_b32 v{a0+5}, 1, v{a0+5}")
        g.I(f"s_lshl_b32 s{S_RB}, s{fid_sreg}, 5")
        g.I(f"buffer_load_ushort v{a0+6}, v{a0+5}, {sr(R_X,4)}, s{S_RB} offen")
        g.I(f"v_cmp_gt_u32 vcc, {96*4}, v{V_TID}")
        g.I(f"s_mov_b64 s[92:93], vcc")
        for j in range(4):
            g.I(f"v_mov_b32 v{G2+j}, 0")
        g.I(f"s_mov_b32 s{S_CNT}, 0x40000")
        g.lab("L_dpoll")
        g.I(f"buffer_load_dwordx2 {vr(MLv,2)}, v{a0+1}, {sr(R_WS,4)}, s{S_GJ} offen sc0 sc1")
        g.I(f"buffer_load_dwordx4 {vr(Y1,4)}, v{a0}, {sr(R_WS,4)}, s{S_T0} offen sc0 sc1")
        g.I(f"buffer_load_dwordx4 {vr(Y2,4)}, v{a0}, {sr(R_WS,4)}, s{S_T1} offen sc0 sc1")
        g.I(f"buffer_load_dwordx4 {vr(G1,4)}, v{a0}, {sr(R_WS,4)}, s{S_T2} offen sc0 sc1")
        g.I(f"s_and_b64 s[94:95], s[92:93], exec")
        g.I(f"s_cbranch_scc0 L_nog2")
        g.I(f"s_mov_b64 exec, s[92:93]")
        g.I(f"buffer_load_dwordx4 {vr(G2,4)}, v{a0}, {sr(R_WS,4)}, s{S_OFF} offen sc0 sc1")
        g.I(f"s_mov_b64 exec, -1")
        g.lab("L_nog2")
        g.I("s_waitcnt vmcnt(0)")
        mx = a0 + 8
        g.I(f"v_max3_u32 v{mx}, v{Y1}, v{Y1+1}, v{Y1+2}")
        g.I(f"v_max3_u32 v{mx+1}, v{Y1+3}, v{Y2}, v{Y2+1}")
        g.I(f"v_max3_u32 v{mx}, v{mx}, v{Y2+2}, v{Y2+3}")
        g.I(f"v_max3_u32 v{mx+1}, v{mx+1}, v{G1}, v{G1+1}")
        g.I(f"v_max3_u32 v{mx}, v{mx}, v{G1+2}, v{G1+3}")
        g.I(f"v_max3_u32 v{mx+1}, v{mx+1}, v{G2}, v{G2+1}")
        g.I(f"v_max3_u32 v{mx}, v{mx}, v{G2+2}, v{G2+3}")
        g.I(f"v_max3_u32 v{mx+1}, v{mx+1}, v{MLv}, v{MLv+1}")
        g.I(f"v_max_u32 v{mx}, v{mx}, v{mx+1}")
        g.I(f"v_cmp_eq_u32 vcc, -1, v{mx}")
        g.I("s_cbranch_vccz L_ddone")
        g.I(f"s_sub_u32 s{S_CNT}, s{S_CNT}, 1")
        g.I(f"s_cmp_lg_u32 s{S_CNT}, 0")
        g.I("s_cbranch_scc1 L_dpoll")
        g.lab("L_ddone")
        stamp(g, cfg, 9)
        M, W, Ls = a0 + 8, a0 + 9, a0 + 10
        g.I(f"v_mov_b32 v{M}, v{MLv}")
        g.nop(1)
        for dpp in ("quad_perm:[1,0,3,2]", "quad_perm:[2,3,0,1]", "row_half_mirror"):
            g.I(f"v_max_f32_dpp v{M}, v{M}, v{M} {dpp} row_mask:0xf bank_mask:0xf")
            g.nop(2)
        g.I(f"v_sub_f32 v{W}, v{MLv}, v{M}")
        g.I(f"v_mul_f32 v{W}, s{S_LOG2E}, v{W}")
        g.I(f"v_exp_f32 v{W}, v{W}")
        g.nop(1)
        g.I(f"v_mul_f32 v{Ls}, v{W}, v{MLv+1}")
        g.nop(2)
        for dpp in ("quad_perm:[1,0,3,2]", "quad_perm:[2,3,0,1]", "row_half_mirror"):
            g.I(f"v_add_f32_dpp v{Ls}, v{Ls}, v{Ls} {dpp} row_mask:0xf bank_mask:0xf")
            g.nop(2)
        c = a0 + 11
        g.I(f"v_rcp_f32 v{c}, v{Ls}")
        g.nop(1)
        g.I(f"v_fma_f32 v{M}, -v{Ls}, v{c}, 1.0")
        g.I(f"v_fma_f32 v{c}, v{M}, v{c}, v{c}")
        g.I(f"v_mul_f32 v{c}, v{c}, v{W}")
        g.I(f"v_and_b32 v{a0+1}, 0x3c, v{V_LANE}")
        g.I(f"v_add_u32 v{a0+2}, 64, v{a0+1}")
        c1, c2 = a0 + 8, a0 + 9
        g.I(f"ds_bpermute_b32 v{c1}, v{a0+1}, v{c}")
        g.I(f"ds_bpermute_b32 v{c2}, v{a0+2}, v{c}")
        for j in range(4):
            g.I(f"v_add_f32 v{G1+j}, v{G1+j}, v{G2+j}")
        g.I("s_waitcnt lgkmcnt(0)")
        for j in range(4):
            g.I(f"v_mul_f32 v{Y1+j}, v{c1}, v{Y1+j}")
        for j in range(4):
            g.I(f"v_fmac_f32 v{Y1+j}, v{c2}, v{Y2+j}")
        R8 = [Y1 + j for j in range(4)] + [G1 + j for j in range(4)]
        g.nop(2)
        for r in (4, 8):
            for x in R8:
                g.I(f"v_add_f32_dpp v{x}, v{x}, v{x} row_ror:{r} row_mask:0xf bank_mask:0xf")
        reduce_scatter_rows(g, R8)
        g.I(f"v_and_b32 v{a0}, 3, v{V_LANE}")
        g.I(f"v_lshlrev_b32 v{a0}, 4, v{a0}")
        g.I(f"v_and_b32 v{a0+1}, 1, v{V_G}")
        g.I(f"v_lshl_add_u32 v{a0}, v{a0+1}, 3, v{a0}")
        g.I(f"v_lshrrev_b32 v{a0+1}, 1, v{V_G}")
        g.I(f"v_lshl_add_u32 v{a0}, v{a0+1}, 6, v{a0}")
        g.I(f"s_lshl_b32 s{S_T0}, s{S_WAVE}, 7")
        g.I(f"v_add_u32 v{a0}, s{S_T0}, v{a0}")
        g.I(f"ds_write_b64 v{a0}, {vr(R8[0],2)} offset:{L_FIN}")
        g.I("s_waitcnt lgkmcnt(0)")
        g.I("s_barrier")
        g.I(f"s_cmp_lg_u32 s{S_WAVE}, 0")
        g.I("s_cbranch_scc1 L_end2")
        g.I(f"v_and_b32 v{a0}, 15, v{V_LANE}")
        g.I(f"v_lshlrev_b32 v{a0}, 2, v{a0}")
        for w in range(8):
            g.I(f"ds_read_b32 v{V_RING+16+w}, v{a0} offset:{L_FIN+128*w}")
            g.I(f"ds_read_b32 v{V_RING+24+w}, v{a0} offset:{L_FIN+128*w+64}")
        g.I("s_waitcnt lgkmcnt(0)")
        for step in (1, 2, 4):
            for w in range(0, 8, 2 * step):
                g.I(f"v_add_f32 v{V_RING+16+w}, v{V_RING+16+w}, v{V_RING+16+w+step}")
                g.I(f"v_add_f32 v{V_RING+24+w}, v{V_RING+24+w}, v{V_RING+24+w+step}")
        bf16_round2(g, V_RING + 16, V_RING + 24, a0 + 1)
        g.I(f"v_lshlrev_b32 v{a0+6}, 16, v{a0+6}")
        g.I(f"v_add_f32 v{a0+6}, v{a0+6}, v{V_RING+16}")
        bf16_round1(g, a0 + 6, a0 + 6, a0 + 1)
        g.I(f"v_add_f32 v{a0+6}, v{a0+6}, v{V_RING+24}")
        g.I(f"v_cvt_pk_bf16_f32 v{a0+6}, v{a0+6}, v{a0+6}")
        g.I(f"v_cmp_gt_u32 vcc, 16, v{V_LANE}")
        g.I(f"s_and_saveexec_b64 {sr(S_EX,2)}, vcc")
        g.I(f"s_lshl_b32 s{S_T2}, s{fid_sreg}, 5")
        g.I(f"buffer_store_short v{a0+6}, v{a0+5}, {sr(R_OUT,4)}, s{S_T2} offen")
        stamp(g, cfg, 5)
        g.lab("L_end2")

    g.I("s_cmp_ge_u32 s2, 32")
    g.I("s_cbranch_scc1 L_end")
    finisher(2)
    g.lab("L_end")
    g.I("s_endpgm")

    g.L.append('.section .rodata,"a"')
    g.L.append(".p2align 6")
    g.L.append(f".amdhsa_kernel {kmain}")
    g.L.append("  .amdhsa_next_free_vgpr 256")
    g.L.append("  .amdhsa_next_free_sgpr 102")
    g.L.append("  .amdhsa_accum_offset 256")
    g.L.append("  .amdhsa_group_segment_fixed_size 0")
    g.L.append("  .amdhsa_kernarg_size 96")
    g.L.append("  .amdhsa_user_sgpr_count 2")
    g.L.append("  .amdhsa_user_sgpr_kernarg_segment_ptr 1")
    g.L.append("  .amdhsa_system_sgpr_workgroup_id_x 1")
    g.L.append(".end_amdhsa_kernel")
    return g.text()


if __name__ == "__main__":
    ap = argparse.ArgumentParser()
    ap.add_argument("--nt", type=int, default=1)
    ap.add_argument("--stamp", type=int, default=0)
    ap.add_argument("--loopbar", type=int, default=1)
    ap.add_argument("--lnwave", type=int, default=0)
    ap.add_argument("--parc", type=int, default=1)
    ap.add_argument("--noclr", type=int, default=0)
    ap.add_argument("--noln", type=int, default=0)
    ap.add_argument("--touch", type=int, default=0)
    ap.add_argument("--wq1", type=int, default=0)
    ap.add_argument("--glueff", type=int, default=0)
    ap.add_argument("--wnt", type=int, default=9)
    ap.add_argument("--hmap", type=int, default=1)
    ap.add_argument("--nocompute", type=int, default=0)
    ap.add_argument("--notail", type=int, default=0)
    ap.add_argument("--nowo", type=int, default=0)
    ap.add_argument("--noglu", type=int, default=0)
    ap.add_argument("--nowq", type=int, default=0)
    ap.add_argument("--wosched", type=str, default="{0:[0],3:[1,2],4:[3,4],5:[5,6],6:[7]}")
    ap.add_argument("--glu_at", type=int, default=1)
    ap.add_argument("--issue", type=str, default="1,2,3,5")
    ap.add_argument("-o", default="parallel_sum__mha_block_cached__glu_gated_glu__decode.s")
    cfg = ap.parse_args()
    cfg.issue_at = [int(x) for x in cfg.issue.split(",")]
    cfg.wo_sched = eval(cfg.wosched)
    assert len(cfg.issue_at) == 4
    open(cfg.o, "w").write(gen(cfg))
    print("wrote", cfg.o)
```

```python
import sys, argparse
from gen import G, vr, sr, HEADER, KNAME

S_X, S_K, S_V, S_WQ, S_WO, S_BX, S_GT, S_UP = 4, 6, 8, 10, 12, 14, 16, 18
S_DN, S_OUT, S_DBG, S_WS = 20, 22, 24, 26
R_K, R_V, R_WQ, R_WO, R_GT, R_UP, R_DN, R_X, R_WS, R_OUT, R_DBG = 28, 32, 36, 40, 44, 48, 52, 56, 60, 64, 68
S_H, S_SPLIT, S_WAVE, S_OFF, S_CNT = 72, 73, 74, 75, 76
S_SCALE, S_LOG2E, S_MASK, S_P, S_GJ, S_T0, S_T1, S_T2, S_GVALID = 78, 79, 80, 81, 82, 83, 84, 85, 86
S_PLO, S_PHI = 87, 88
S_HOFF = 90
S_RB = 91
S_EX = 96
S_TS = 98

L_XN = 0
L_QP = 1024
L_GU = 5120
L_OP = 5632
L_ML = 9728
L_YP = 10240
L_FIN = 26624
LDS_BYTES = 27648

WS_Y = 0
WS_G = 512 * 1024
WS_ML = 1024 * 1024
WS_BYTES = 1024 * 1024 + 2048 + 4096


def srd(g, r, base_lo, base_hi, nbytes):
    g.I(f"s_mov_b32 s{r}, s{base_lo}")
    g.I(f"s_and_b32 s{r+1}, s{base_hi}, 0xffff")
    g.I(f"s_mov_b32 s{r+2}, {nbytes:#x}")
    g.I(f"s_mov_b32 s{r+3}, 0x00020000")


def srd_off(g, r, base_lo, base_hi, off_sreg, nbytes):
    g.I(f"s_add_u32 s{r}, s{base_lo}, s{off_sreg}")
    g.I(f"s_addc_u32 s{r+1}, s{base_hi}, 0")
    g.I(f"s_and_b32 s{r+1}, s{r+1}, 0xffff")
    g.I(f"s_mov_b32 s{r+2}, {nbytes:#x}")
    g.I(f"s_mov_b32 s{r+3}, 0x00020000")


def bf16_round1(g, dst, src, tmp):
    g.I(f"v_cvt_pk_bf16_f32 v{tmp}, v{src}, v{src}")
    g.I(f"v_lshlrev_b32 v{dst}, 16, v{tmp}")


def bf16_round2(g, a, b, tmp):
    g.I(f"v_cvt_pk_bf16_f32 v{tmp}, v{a}, v{b}")
    g.I(f"v_lshlrev_b32 v{a}, 16, v{tmp}")
    g.I(f"v_and_b32 v{b}, s{S_MASK}, v{tmp}")


def row_allreduce(g, op, regs):
    n = len(regs)
    for r in (8, 4, 2, 1):
        for x in regs:
            g.I(f"v_{op}_dpp v{x}, v{x}, v{x} row_ror:{r} row_mask:0xf bank_mask:0xf")
        if n < 3:
            g.nop(3 - n)


def cross_row_allreduce(g, op, x, t):
    g.I(f"v_mov_b32 v{t}, v{x}")
    g.nop(2)
    g.I(f"v_permlane16_swap_b32 v{x}, v{t}")
    g.nop(1)
    g.I(f"v_{op} v{x}, v{x}, v{t}")
    g.I(f"v_mov_b32 v{t}, v{x}")
    g.nop(2)
    g.I(f"v_permlane32_swap_b32 v{x}, v{t}")
    g.nop(1)
    g.I(f"v_{op} v{x}, v{x}, v{t}")


def wave_allreduce(g, op, x, t):
    row_allreduce(g, op, [x])
    cross_row_allreduce(g, op, x, t)


def reduce_scatter_rows(g, regs):
    n = len(regs)
    h = n // 2
    g.nop(2)
    for k in range(h):
        g.I(f"v_permlane32_swap_b32 v{regs[k]}, v{regs[k+h]}")
    g.nop(1)
    for k in range(h):
        g.I(f"v_add_f32 v{regs[k]}, v{regs[k]}, v{regs[k+h]}")
    qn = h // 2
    g.nop(2)
    for k in range(qn):
        g.I(f"v_permlane16_swap_b32 v{regs[k]}, v{regs[k+qn]}")
    g.nop(1)
    for k in range(qn):
        g.I(f"v_add_f32 v{regs[k]}, v{regs[k]}, v{regs[k+qn]}")


def stamp(g, cfg, idx, wave=0):
    if not cfg.stamp:
        return
    lab = f"L_st{idx}"
    g.I(f"s_cmp_lg_u32 s{S_WAVE}, {wave}")
    g.I(f"s_cbranch_scc1 {lab}")
    g.I(f"s_memrealtime s[{S_TS}:{S_TS+1}]")
    g.I("s_waitcnt lgkmcnt(0)")
    g.I(f"v_mov_b32 v5, s{S_TS}")
    g.I(f"s_lshl_b32 s{S_TS}, s2, 6")
    g.I(f"s_add_u32 s{S_TS}, s{S_TS}, {2*1024*1024 + idx*4}")
    g.I(f"v_mov_b32 v6, s{S_TS}")
    g.I(f"global_store_dword v6, v5, s[{S_WS}:{S_WS+1}]")
    g.lab(lab)


def gen(cfg):
    D = 4
    NT = " nt" if cfg.nt else ""
    WQNT = " nt" if cfg.wnt & 1 else ""
    WONT = " nt" if cfg.wnt & 2 else ""
    GNT = " nt" if cfg.wnt & 4 else ""
    DNT = " nt" if cfg.wnt & 8 else ""
    g = G()
    V_TID, V_LANE, V_KVOFF, V_G, V_Cc, V_WOA = 0, 1, 2, 3, 4, 7
    V_Q = 8
    V_ACC = 12
    V_M, V_L = 20, 21
    V_S = 22
    V_PP = 32
    V_T = 40
    V_GT, V_UP, V_DN = 46, 50, 54
    V_XROW = 60
    V_QOFF = 61
    TMP8 = [26, 27, 28, 29, 30, 31, 58, 59]
    V_W = 64
    V_RING = 128
    LNW = cfg.lnwave

    g.L.append(HEADER.rstrip("\n"))
    g.L.append(f"; @launch grid=(256,1,1) block=(512,1,1) lds={LDS_BYTES}")
    kmain = KNAME
    g.L.append('.amdgcn_target "amdgcn-amd-amdhsa--gfx950"')
    g.L.append(".text")
    g.L.append(f".globl {kmain}")
    g.L.append(".p2align 8")
    g.L.append(f".type {kmain},@function")
    g.lab(kmain)
    g.I("s_cmp_ge_u32 s2, 256")
    g.I("s_cbranch_scc1 L_end")
    g.I("s_load_dwordx16 s[4:19], s[0:1], 0")
    g.I("s_load_dwordx8 s[20:27], s[0:1], 64")
    g.I(f"v_and_b32 v{V_LANE}, 63, v{V_TID}")
    g.I(f"v_lshrrev_b32 v{V_T}, 6, v{V_TID}")
    g.I(f"v_lshrrev_b32 v{V_G}, 4, v{V_LANE}")
    g.I(f"v_readfirstlane_b32 s{S_WAVE}, v{V_T}")
    g.I(f"v_and_b32 v{V_Cc}, 15, v{V_LANE}")
    g.I(f"s_mov_b32 s{S_SCALE}, 0x3db504f3")
    g.I(f"s_mov_b32 s{S_LOG2E}, 0x3fb8aa3b")
    g.I(f"s_mov_b32 s{S_MASK}, 0xffff0000")
    g.I(f"s_mov_b32 s{S_PLO}, 0x05040100")
    g.I(f"s_mov_b32 s{S_PHI}, 0x07060302")
    g.I(f"s_and_b32 s{S_T0}, s2, 7")
    g.I(f"s_lshr_b32 s{S_T1}, s2, 3")
    g.I(f"s_and_b32 s{S_T2}, s{S_T1}, 3")
    if cfg.hmap == 0:
        g.I(f"s_lshl_b32 s{S_H}, s{S_T0}, 2")
        g.I(f"s_add_u32 s{S_H}, s{S_H}, s{S_T2}")
    else:
        g.I(f"s_lshl_b32 s{S_H}, s{S_T2}, 1")
        g.I(f"s_add_u32 s{S_H}, s{S_H}, s{S_T0}")
        g.I(f"s_and_b32 s{S_H}, s{S_H}, 7")
        g.I(f"s_lshl_b32 s{S_T2}, s{S_T2}, 3")
        g.I(f"s_add_u32 s{S_H}, s{S_H}, s{S_T2}")
    g.I(f"s_lshr_b32 s{S_SPLIT}, s{S_T1}, 2")
    g.I(f"s_lshl_b32 s{S_P}, s{S_H}, 3")
    g.I(f"s_add_u32 s{S_P}, s{S_P}, s{S_SPLIT}")
    g.I(f"s_lshl_b32 s{S_HOFF}, s{S_H}, 2")
    g.I(f"s_mul_i32 s{S_GJ}, s{S_T0}, 28")
    g.I(f"s_add_u32 s{S_GJ}, s{S_GJ}, s{S_T1}")
    g.I(f"s_cmp_lt_u32 s{S_T1}, 28")
    g.I(f"s_cselect_b32 s{S_GVALID}, 1, 0")
    g.I(f"s_cselect_b32 s{S_GJ}, s{S_GJ}, 0")
    V_A = 56
    g.I(f"v_lshlrev_b32 v{V_WOA}, 4, v{V_LANE}")
    g.I(f"v_lshlrev_b32 v{V_A+1}, 14, v{V_G}")
    g.I(f"v_lshl_add_u32 v{V_A+1}, v{V_Cc}, 4, v{V_A+1}")
    g.I(f"s_lshl_b32 s{S_T0}, s{S_WAVE}, 16")
    g.I(f"s_lshl_b32 s{S_T1}, s{S_H}, 8")
    g.I(f"s_add_u32 s{S_RB}, s{S_T0}, s{S_T1}")
    g.I(f"s_lshl_b32 s{S_T1}, s{S_WAVE}, 12")
    g.I(f"v_add_u32 v{V_KVOFF}, s{S_T1}, v{V_WOA}")
    g.I(f"s_lshl_b32 s{S_T2}, s{S_P}, 20")
    g.I("s_waitcnt lgkmcnt(0)")
    stamp(g, cfg, 0)
    if cfg.touch:
        TB = 92
        g.I(f"s_mov_b64 s[{TB}:{TB+1}], s[{S_WQ}:{S_WQ+1}]")
        g.I(f"s_mov_b32 s{TB+2}, 0x200000")
        def sel(w, ptr, off_code):
            g.I(f"s_cmp_eq_u32 s{S_WAVE}, {w}")
            g.I(f"s_cselect_b64 s[{TB}:{TB+1}], s[{ptr}:{ptr+1}], s[{TB}:{TB+1}]")
            g.I(f"s_cselect_b32 s{TB+2}, {off_code}, s{TB+2}")
        g.I(f"s_lshl_b32 s{TB+3}, s{S_H}, 17")
        sel(1, S_WO, f"s{TB+3}")
        sel(2, S_GT, "0")
        sel(3, S_UP, "0")
        g.I(f"s_lshl_b32 s{TB+3}, s{S_GJ}, 13")
        sel(4, S_DN, f"s{TB+3}")
        sel(5, S_WS, "0")
        sel(6, S_DBG, "0")
        sel(7, S_OUT, "0")
        g.I(f"v_mov_b32 v6, s{TB+2}")
        g.I(f"global_load_dword v5, v6, s[{TB}:{TB+1}]")
    srd(g, R_WQ, S_WQ, S_WQ + 1, 512 * 8192)
    srd(g, R_X, S_X, S_X + 1, 1024)
    srd_off(g, R_K, S_K, S_K + 1, S_T2, 0x100000)
    srd_off(g, R_V, S_V, S_V + 1, S_T2, 0x100000)
    g.I(f"s_cmp_lg_u32 s{S_WAVE}, {LNW}")
    g.I("s_cbranch_scc1 L_loads")
    if cfg.noln:
        g.I("s_branch L_loads")
    V_XR = V_T
    XF = V_PP
    g.I(f"buffer_load_dwordx4 {vr(V_XR,4)}, v{V_WOA}, {sr(R_X,4)}, 0 offen")
    g.I("s_waitcnt vmcnt(0)")
    stamp(g, cfg, 6, LNW)
    for j in range(4):
        g.I(f"v_lshlrev_b32 v{XF+2*j}, 16, v{V_XR+j}")
        g.I(f"v_and_b32 v{XF+2*j+1}, s{S_MASK}, v{V_XR+j}")
    t0, t1, t2, t3 = V_S, V_S + 1, V_S + 2, V_S + 3
    g.I(f"v_add_f32 v{t0}, v{XF}, v{XF+1}")
    g.I(f"v_add_f32 v{t1}, v{XF+2}, v{XF+3}")
    g.I(f"v_add_f32 v{t2}, v{XF+4}, v{XF+5}")
    g.I(f"v_add_f32 v{t3}, v{XF+6}, v{XF+7}")
    g.I(f"v_add_f32 v{t0}, v{t0}, v{t1}")
    g.I(f"v_add_f32 v{t2}, v{t2}, v{t3}")
    g.I(f"v_add_f32 v{t0}, v{t0}, v{t2}")
    g.nop(2)
    wave_allreduce(g, "add_f32", t0, t1)
    g.I(f"v_mul_f32 v{t0}, 0x3b000000, v{t0}")
    for j in range(8):
        g.I(f"v_sub_f32 v{12+j}, v{XF+j}, v{t0}")
    g.I(f"v_mul_f32 v{t1}, v12, v12")
    g.I(f"v_mul_f32 v{t2}, v13, v13")
    for j in range(2, 8, 2):
        g.I(f"v_fmac_f32 v{t1}, v{12+j}, v{12+j}")
        g.I(f"v_fmac_f32 v{t2}, v{13+j}, v{13+j}")
    g.I(f"v_add_f32 v{t1}, v{t1}, v{t2}")
    g.nop(2)
    wave_allreduce(g, "add_f32", t1, t2)
    g.I(f"v_mul_f32 v{t1}, 0x3b000000, v{t1}")
    bf16_round2(g, t0, t1, t2)
    g.I(f"v_add_f32 v{t1}, 0x3727c5ac, v{t1}")
    for j in range(8):
        g.I(f"v_sub_f32 v{XF+j}, v{XF+j}, v{t0}")
    bf16_round1(g, t1, t1, t2)
    g.I(f"v_sqrt_f32 v{t1}, v{t1}")
    for j in range(0, 8, 2):
        bf16_round2(g, XF + j, XF + j + 1, t2)
    bf16_round1(g, t1, t1, t2)
    g.I(f"v_rcp_f32 v{t3}, v{t1}")
    g.nop(1)
    for j in range(8):
        g.I(f"v_mul_f32 v{12+j}, v{XF+j}, v{t3}")
    for j in range(8):
        g.I(f"v_fma_f32 v{26+(j%4)}, -v{12+j}, v{t1}, v{XF+j}")
        g.I(f"v_fma_f32 v{XF+j}, v{26+(j%4)}, v{t3}, v{12+j}")
    XP = V_Q
    for j in range(4):
        g.I(f"v_cvt_pk_bf16_f32 v{XP+j}, v{XF+2*j}, v{XF+2*j+1}")
    g.I(f"ds_write_b128 v{V_WOA}, {vr(XP,4)} offset:{L_XN}")
    g.lab("L_loads")

    def issue_block(slot, tag):
        kb = V_RING + slot * 32
        for i in range(4):
            g.vm(f"buffer_load_dwordx4 {vr(kb+4*i,4)}, v{V_KVOFF}, {sr(R_K,4)}, s{S_OFF} offen offset:{i*1024}{NT}", tag)
        for i in range(4):
            g.vm(f"buffer_load_dwordx4 {vr(kb+16+4*i,4)}, v{V_KVOFF}, {sr(R_V,4)}, s{S_OFF} offen offset:{i*1024}{NT}", tag)
        g.I(f"s_add_u32 s{S_OFF}, s{S_OFF}, 32768")

    nissued = 0

    def maybe_issue(point):
        nonlocal nissued
        while nissued < D and cfg.issue_at[nissued] == point:
            issue_block(nissued, f"b{nissued}")
            nissued += 1

    g.I(f"s_mov_b32 s{S_OFF}, 0")
    maybe_issue(0)
    for k in range(8):
        g.I(f"s_add_u32 s{S_T0}, s{S_SPLIT}, {k}")
        g.I(f"s_and_b32 s{S_T0}, s{S_T0}, 7")
        g.I(f"s_lshl_b32 s{S_T0}, s{S_T0}, 19")
        g.I(f"s_add_u32 s{S_T0}, s{S_T0}, s{S_RB}")
        g.I(f"s_add_u32 s{S_T1}, s{S_T0}, 8192")
        if not cfg.nowq and not (cfg.wq1 and k > 0):
            g.vm(f"buffer_load_dwordx4 {vr(V_W+8*k,4)}, v{V_A+1}, {sr(R_WQ,4)}, s{S_T0} offen{WQNT}", f"wq{k//2}")
            g.vm(f"buffer_load_dwordx4 {vr(V_W+8*k+4,4)}, v{V_A+1}, {sr(R_WQ,4)}, s{S_T1} offen{WQNT}", f"wq{k//2}")
        if k == 0:
            maybe_issue(1)
    maybe_issue(2)
    srd(g, R_GT, S_GT, S_GT + 1, 512 * 3584)
    srd(g, R_UP, S_UP, S_UP + 1, 512 * 3584)
    srd(g, R_DN, S_DN, S_DN + 1, 1792 * 1024)
    srd(g, R_WS, S_WS, S_WS + 1, WS_BYTES)
    srd(g, R_OUT, S_OUT, S_OUT + 1, 1024)
    srd(g, R_DBG, S_DBG, S_DBG + 1, 256)
    g.I(f"s_lshl_b32 s{S_T0}, s{S_H}, 17")
    srd_off(g, R_WO, S_WO, S_WO + 1, S_T0, 0x20000)
    XNP = V_ACC
    g.I(f"s_lshl_b32 s{S_T0}, s{S_WAVE}, 4")
    g.I(f"v_lshlrev_b32 v{V_A}, 2, v{V_G}")
    g.I(f"v_add_u32 v{V_A}, s{S_T0}, v{V_A}")
    for k in range(8):
        g.I(f"s_add_u32 s{S_T0}, s{S_SPLIT}, {k}")
        g.I(f"s_and_b32 s{S_T0}, s{S_T0}, 7")
        g.I(f"s_lshl_b32 s{S_T0}, s{S_T0}, 7")
        g.I(f"v_add_u32 v{XNP+k}, s{S_T0}, v{V_A}")
    g.I(f"v_lshlrev_b32 v{V_A+2}, 1, v{V_TID}")
    g.I("s_waitcnt lgkmcnt(0)")
    g.I("s_barrier")
    stamp(g, cfg, 8)
    for k in range(8):
        g.I(f"ds_read_b32 v{XNP+k}, v{XNP+k} offset:{L_XN}")
    g.I(f"ds_read_u16 v{V_XROW}, v{V_A+2} offset:{L_XN}")
    maybe_issue(3)
    ta, tb, tc, td = 26, 27, 28, 29
    g.I(f"v_and_b32 v{ta}, 1, v{V_G}")
    g.I(f"v_lshlrev_b32 v{ta}, 3, v{ta}")
    g.I(f"v_lshrrev_b32 v{tb}, 1, v{V_G}")
    g.I(f"v_lshl_add_u32 v{ta}, v{tb}, 4, v{ta}")
    g.I(f"v_lshl_add_u32 v{V_QOFF}, v{V_Cc}, 5, v{ta}")
    g.I("s_waitcnt lgkmcnt(0)")
    g.I(f"v_lshlrev_b32 v{V_XROW}, 16, v{V_XROW}")
    QA = V_PP
    for k in range(8):
        if k % 2 == 0:
            g.wait_tag(f"wq{k//2}")
        for j in range(4):
            A, B = V_W + 8 * k + j, V_W + 8 * k + 4 + j
            lo, hi = (ta, tb) if j % 2 == 0 else (tc, td)
            g.I(f"v_perm_b32 v{lo}, v{B}, v{A}, s{S_PLO}")
            g.I(f"v_perm_b32 v{hi}, v{B}, v{A}, s{S_PHI}")
            s2a = "0" if k == 0 else f"v{QA+2*j}"
            s2b = "0" if k == 0 else f"v{QA+2*j+1}"
            g.I(f"v_dot2_f32_bf16 v{QA+2*j}, v{lo}, v{XNP+k}, {s2a}")
            g.I(f"v_dot2_f32_bf16 v{QA+2*j+1}, v{hi}, v{XNP+k}, {s2b}")
        if k == 3:
            maybe_issue(4)
    g.nop(1)
    reduce_scatter_rows(g, [QA + j for j in range(8)])
    g.I(f"s_lshl_b32 s{S_T0}, s{S_WAVE}, 9")
    g.I(f"v_add_u32 v{ta}, s{S_T0}, v{V_QOFF}")
    g.I(f"ds_write_b64 v{ta}, {vr(QA,2)} offset:{L_QP}")
    g.I(f"v_lshlrev_b32 v{tb}, 5, v{V_Cc}")
    maybe_issue(5)
    g.I("s_waitcnt lgkmcnt(0)")
    g.I("s_barrier")
    stamp(g, cfg, 7)
    for w in range(8):
        g.I(f"ds_read_b128 {vr(V_W+8*w,4)}, v{tb} offset:{L_QP+512*w}")
        g.I(f"ds_read_b128 {vr(V_W+8*w+4,4)}, v{tb} offset:{L_QP+512*w+16}")
    g.I(f"v_mov_b32 v{V_M}, 0xff800000")
    g.I(f"v_mov_b32 v{V_L}, 0")
    for j in range(8):
        g.I(f"v_mov_b32 v{V_ACC+j}, 0")
    g.I(f"s_lshl_b32 s{S_T0}, s{S_WAVE}, 11")
    g.I(f"v_add_u32 v{V_WOA}, s{S_T0}, v{V_WOA}")
    for step in (1, 2, 4):
        g.I(f"s_waitcnt lgkmcnt({ {1: 0, 2: 0, 4: 0}[step] })") if step == 1 else None
        for w in range(0, 8, 2 * step):
            for j in range(8):
                g.I(f"v_add_f32 v{V_W+8*w+j}, v{V_W+8*w+j}, v{V_W+8*(w+step)+j}")
    for j in range(4):
        g.I(f"v_cvt_pk_bf16_f32 v{V_Q+j}, v{V_W+2*j}, v{V_W+2*j+1}")
    maybe_issue(6)
    assert nissued == D
    stamp(g, cfg, 1)

    def compute_block(slot):
        if cfg.nocompute:
            return
        kb = V_RING + slot * 32
        vb = kb + 16
        S = V_S
        for j in range(4):
            for i in range(4):
                src2 = "0" if j == 0 else f"v{S+i}"
                g.I(f"v_dot2_f32_bf16 v{S+i}, v{kb+4*i+j}, v{V_Q+j}, {src2}")
        t = V_T
        row_allreduce(g, "add_f32", [S + i for i in range(4)])
        g.I(f"v_cvt_pk_bf16_f32 v{t}, v{S}, v{S+1}")
        g.I(f"v_cvt_pk_bf16_f32 v{t+1}, v{S+2}, v{S+3}")
        g.I(f"v_lshlrev_b32 v{S}, 16, v{t}")
        g.I(f"v_and_b32 v{S+1}, s{S_MASK}, v{t}")
        g.I(f"v_lshlrev_b32 v{S+2}, 16, v{t+1}")
        g.I(f"v_and_b32 v{S+3}, s{S_MASK}, v{t+1}")
        for i in range(4):
            g.I(f"v_mul_f32 v{S+i}, s{S_SCALE}, v{S+i}")
        g.I(f"v_cvt_pk_bf16_f32 v{t}, v{S}, v{S+1}")
        g.I(f"v_cvt_pk_bf16_f32 v{t+1}, v{S+2}, v{S+3}")
        g.I(f"v_lshlrev_b32 v{S}, 16, v{t}")
        g.I(f"v_and_b32 v{S+1}, s{S_MASK}, v{t}")
        g.I(f"v_lshlrev_b32 v{S+2}, 16, v{t+1}")
        g.I(f"v_and_b32 v{S+3}, s{S_MASK}, v{t+1}")
        mn, al, mb = t + 2, t + 4, t + 3
        g.I(f"v_max3_f32 v{mn}, v{V_M}, v{S}, v{S+1}")
        g.I(f"v_max3_f32 v{mn}, v{mn}, v{S+2}, v{S+3}")
        g.I(f"v_sub_f32 v{al}, v{V_M}, v{mn}")
        g.I(f"v_mul_f32 v{mb}, s{S_LOG2E}, v{mn}")
        g.I(f"v_mul_f32 v{al}, s{S_LOG2E}, v{al}")
        for i in range(4):
            g.I(f"v_fma_f32 v{V_PP+i}, v{S+i}, s{S_LOG2E}, -v{mb}")
        g.I(f"v_exp_f32 v{al}, v{al}")
        for i in range(4):
            g.I(f"v_exp_f32 v{V_PP+i}, v{V_PP+i}")
        g.I(f"v_mov_b32 v{V_M}, v{mn}")
        for pr in range(2):
            for j in range(4):
                A, B = vb + 8 * pr + j, vb + 8 * pr + 4 + j
                g.I(f"v_perm_b32 v{kb+8*pr+2*j}, v{B}, v{A}, s{S_PLO}")
                g.I(f"v_perm_b32 v{kb+8*pr+2*j+1}, v{B}, v{A}, s{S_PHI}")
        g.I(f"v_mul_f32 v{V_L}, v{V_L}, v{al}")
        for j in range(4):
            g.I(f"v_pk_mul_f32 {vr(V_ACC+2*j,2)}, {vr(V_ACC+2*j,2)}, {vr(al,2)} op_sel_hi:[1,0]")
        g.I(f"v_cvt_pk_bf16_f32 v{V_PP+4}, v{V_PP}, v{V_PP+1}")
        g.I(f"v_cvt_pk_bf16_f32 v{V_PP+5}, v{V_PP+2}, v{V_PP+3}")
        g.I(f"v_add_f32 v{t}, v{V_PP}, v{V_PP+1}")
        g.I(f"v_add_f32 v{t+1}, v{V_PP+2}, v{V_PP+3}")
        g.I(f"v_add_f32 v{t}, v{t}, v{t+1}")
        g.I(f"v_add_f32 v{V_L}, v{V_L}, v{t}")
        for pr in range(2):
            for jj in range(8):
                g.I(f"v_dot2_f32_bf16 v{V_ACC+jj}, v{kb+8*pr+jj}, v{V_PP+4+pr}, v{V_ACC+jj}")

    def glu_part1():
        if cfg.noglu:
            return
        g.wait_tag("gu")
        for half, src in ((0, V_GT), (1, V_UP)):
            R = TMP8
            for j in range(4):
                g.I(f"v_lshlrev_b32 v{R[2*j]}, 16, v{src+j}")
                g.I(f"v_and_b32 v{R[2*j+1]}, s{S_MASK}, v{src+j}")
            for j in range(8):
                g.I(f"v_mul_f32 v{R[j]}, v{R[j]}, v{V_XROW}")
            reduce_scatter_rows(g, R)
            g.nop(2)
            row_allreduce(g, "add_f32", [R[0], R[1]])
            g.I(f"v_lshlrev_b32 v{R[2]}, 6, v{V_G}")
            g.I(f"s_lshl_b32 s{S_T0}, s{S_WAVE}, 2")
            g.I(f"v_add_u32 v{R[2]}, s{S_T0}, v{R[2]}")
            g.I(f"v_cmp_eq_u32 vcc, 0, v{V_Cc}")
            g.I(f"s_and_saveexec_b64 {sr(S_EX,2)}, vcc")
            g.I(f"ds_write_b32 v{R[2]}, v{R[0]} offset:{L_GU+256*half}")
            g.I(f"ds_write_b32 v{R[2]}, v{R[1]} offset:{L_GU+256*half+32}")
            g.I(f"s_mov_b64 exec, {sr(S_EX,2)}")
        g.I("s_waitcnt lgkmcnt(0)")

    def glu_part2():
        if cfg.noglu:
            return
        ta, tb = 62, 63
        R = TMP8
        g.I(f"v_lshrrev_b32 v{ta}, 3, v{V_LANE}")
        g.I(f"v_lshlrev_b32 v{ta}, 5, v{ta}")
        g.I(f"ds_read_b128 {vr(V_GT,4)}, v{ta} offset:{L_GU}")
        g.I(f"ds_read_b128 {vr(V_GT+4,4)}, v{ta} offset:{L_GU+16}")
        g.I(f"ds_read_b128 {vr(26,4)}, v{ta} offset:{L_GU+256}")
        g.I(f"ds_read_b64 {vr(30,2)}, v{ta} offset:{L_GU+272}")
        g.I(f"ds_read_b64 {vr(58,2)}, v{ta} offset:{L_GU+280}")
        g.I("s_waitcnt lgkmcnt(0)")
        for j in range(1, 8):
            g.I(f"v_add_f32 v{V_GT}, v{V_GT}, v{V_GT+j}")
            g.I(f"v_add_f32 v{R[0]}, v{R[0]}, v{R[j]}")
        ga, ua = V_GT, R[0]
        bf16_round2(g, ga, ua, tb)
        e = V_GT + 1
        g.I(f"v_mul_f32 v{e}, s{S_LOG2E}, v{ga}")
        g.I(f"v_sub_f32 v{e}, 0, v{e}")
        g.I(f"v_exp_f32 v{e}, v{e}")
        g.nop(1)
        g.I(f"v_add_f32 v{e}, 1.0, v{e}")
        g.I(f"v_rcp_f32 v{e+1}, v{e}")
        g.nop(1)
        g.I(f"v_fma_f32 v{e+2}, -v{e}, v{e+1}, 1.0")
        g.I(f"v_fma_f32 v{e+1}, v{e+2}, v{e+1}, v{e+1}")
        bf16_round1(g, e + 1, e + 1, tb)
        g.I(f"v_mul_f32 v{e+1}, v{e+1}, v{ua}")
        bf16_round1(g, e + 1, e + 1, tb)
        hh = e + 1
        g.wait_tag("dn")
        for j in range(4):
            g.I(f"v_lshlrev_b32 v{R[2*j]}, 16, v{V_DN+j}")
            g.I(f"v_and_b32 v{R[2*j+1]}, s{S_MASK}, v{V_DN+j}")
        for j in range(8):
            g.I(f"v_mul_f32 v{R[j]}, v{R[j]}, v{hh}")
        g.nop(2)
        for j in range(8):
            g.I(f"v_add_f32_dpp v{R[j]}, v{R[j]}, v{R[j]} row_ror:8 row_mask:0xf bank_mask:0xf")
        reduce_scatter_rows(g, R)
        g_addr(ta, tb)
        g.I(f"s_cmp_eq_u32 s{S_GVALID}, 0")
        g.I("s_cbranch_scc1 L_skip_glu")
        g.I(f"s_and_saveexec_b64 {sr(S_EX,2)}, vcc")
        g.I(f"buffer_store_dwordx2 {vr(R[0],2)}, v{tb}, {sr(R_WS,4)}, s{S_T0} offen sc0 sc1")
        g.I(f"s_mov_b64 exec, {sr(S_EX,2)}")
        g.lab("L_skip_glu")

    def glu_loads():
        if cfg.noglu:
            return
        ta = 62
        g.I(f"s_movk_i32 s{S_T1}, 3584")
        if cfg.glueff:
            g.I(f"v_lshrrev_b32 v{ta}, 3, v{V_TID}")
            g.I(f"v_mul_lo_u32 v{ta}, v{ta}, s{S_T1}")
            g.I(f"v_and_b32 v63, 7, v{V_LANE}")
            g.I(f"v_lshl_add_u32 v{ta}, v63, 4, v{ta}")
            g.I(f"s_and_b32 s{S_T0}, s{S_GJ}, 7")
            g.I(f"s_mul_i32 s{S_T0}, s{S_T0}, {64*3584}")
            g.I(f"s_lshr_b32 s{S_T1}, s{S_GJ}, 3")
            g.I(f"s_lshl_b32 s{S_T1}, s{S_T1}, 7")
            g.I(f"s_add_u32 s{S_T1}, s{S_T1}, s{S_T0}")
        else:
            g.I(f"v_mul_lo_u32 v{ta}, v{V_TID}, s{S_T1}")
            g.I(f"s_lshl_b32 s{S_T1}, s{S_GJ}, 4")
        g.vm(f"buffer_load_dwordx4 {vr(V_GT,4)}, v{ta}, {sr(R_GT,4)}, s{S_T1} offen{GNT}", "gu")
        g.vm(f"buffer_load_dwordx4 {vr(V_UP,4)}, v{ta}, {sr(R_UP,4)}, s{S_T1} offen{GNT}", "gu")
        g.I(f"v_lshrrev_b32 v63, 3, v{V_LANE}")
        g.I(f"v_lshlrev_b32 v63, 10, v63")
        g.I(f"v_and_b32 v59, 7, v{V_LANE}")
        g.I(f"v_lshl_add_u32 v63, v59, 4, v63")
        g.I(f"s_lshl_b32 s{S_T1}, s{S_GJ}, 13")
        g.I(f"s_lshl_b32 s{S_T0}, s{S_WAVE}, 7")
        g.I(f"s_add_u32 s{S_T1}, s{S_T1}, s{S_T0}")
        g.vm(f"buffer_load_dwordx4 {vr(V_DN,4)}, v63, {sr(R_DN,4)}, s{S_T1} offen{DNT}", "dn")

    def wo_perm():
        for k in range(8):
            for j in range(4):
                A, B = V_W + 8 * k + j, V_W + 8 * k + 4 + j
                tt = V_T + (j % 2)
                g.I(f"v_perm_b32 v{tt}, v{B}, v{A}, s{S_PLO}")
                g.I(f"v_perm_b32 v{B}, v{B}, v{A}, s{S_PHI}")
                g.I(f"v_mov_b32 v{A}, v{tt}")

    def wo_loads(k):
        if cfg.nowo:
            return
        g.I(f"s_add_u32 s{S_T2}, s{S_SPLIT}, {k}")
        g.I(f"s_and_b32 s{S_T2}, s{S_T2}, 7")
        g.I(f"s_lshl_b32 s{S_T2}, s{S_T2}, 14")
        g.vm(f"buffer_load_dwordx4 {vr(V_W+8*k,4)}, v{V_WOA}, {sr(R_WO,4)}, s{S_T2} offen{WONT}", "wo")
        g.vm(f"buffer_load_dwordx4 {vr(V_W+8*k+4,4)}, v{V_WOA}, {sr(R_WO,4)}, s{S_T2} offen offset:1024{WONT}", "wo")

    def y_addr(dst, tmp):
        g.I(f"v_lshrrev_b32 v{dst}, 3, v{V_LANE}")
        g.I(f"v_lshlrev_b32 v{dst}, 15, v{dst}")
        g.I(f"v_and_b32 v{tmp}, 7, v{V_LANE}")
        g.I(f"v_lshl_add_u32 v{dst}, v{tmp}, 4, v{dst}")

    def g_addr(ta, tb):
        g.I(f"v_and_b32 v{ta}, 7, v{V_LANE}")
        g.I(f"v_lshrrev_b32 v{tb}, 2, v{ta}")
        g.I(f"v_lshlrev_b32 v{tb}, 15, v{tb}")
        g.I(f"v_and_b32 v{ta}, 3, v{ta}")
        g.I(f"v_lshl_add_u32 v{tb}, v{ta}, 5, v{tb}")
        g.I(f"v_and_b32 v{ta}, 1, v{V_G}")
        g.I(f"v_lshl_add_u32 v{tb}, v{ta}, 3, v{tb}")
        g.I(f"v_lshrrev_b32 v{ta}, 1, v{V_G}")
        g.I(f"v_lshl_add_u32 v{tb}, v{ta}, 4, v{tb}")
        g.I(f"s_lshl_b32 s{S_T0}, s{S_WAVE}, 16")
        g.I(f"s_lshl_b32 s{S_T1}, s{S_GJ}, 7")
        g.I(f"s_add_u32 s{S_T0}, s{S_T0}, s{S_T1}")
        g.I(f"s_add_u32 s{S_T0}, s{S_T0}, {WS_G}")
        g.I(f"v_and_b32 v{ta}, 8, v{V_LANE}")
        g.I(f"v_cmp_eq_u32 vcc, 0, v{ta}")

    def clears():
        if cfg.noclr:
            return
        SN = 28
        for j in range(4):
            g.I(f"v_mov_b32 v{SN+j}, -1")
        g_addr(62, 63)
        g.I(f"s_cmp_eq_u32 s{S_GVALID}, 0")
        g.I("s_cbranch_scc1 L_skip_gclr")
        g.I(f"s_and_saveexec_b64 {sr(S_EX,2)}, vcc")
        g.I(f"buffer_store_dwordx2 {vr(SN,2)}, v63, {sr(R_WS,4)}, s{S_T0} offen sc0 sc1")
        g.I(f"s_mov_b64 exec, {sr(S_EX,2)}")
        g.lab("L_skip_gclr")
        g.I(f"s_cmp_lg_u32 s{S_WAVE}, 0")
        g.I("s_cbranch_scc1 L_skip_yclr")
        y_addr(62, 63)
        g.I(f"s_lshl_b32 s{S_T0}, s{S_P}, 7")
        g.I(f"s_add_u32 s{S_T1}, s{S_T0}, {8*32768}")
        g.I(f"buffer_store_dwordx4 {vr(SN,4)}, v62, {sr(R_WS,4)}, s{S_T0} offen sc0 sc1")
        g.I(f"buffer_store_dwordx4 {vr(SN,4)}, v62, {sr(R_WS,4)}, s{S_T1} offen sc0 sc1")
        g.I(f"s_lshl_b32 s{S_T1}, s{S_P}, 3")
        g.I(f"s_add_u32 s{S_T1}, s{S_T1}, {WS_ML}")
        g.I(f"v_mov_b32 v63, 0")
        g.I("s_mov_b64 exec, 1")
        g.I(f"buffer_store_dwordx2 {vr(SN,2)}, v63, {sr(R_WS,4)}, s{S_T1} offen sc0 sc1")
        g.I("s_mov_b64 exec, -1")
        g.lab("L_skip_yclr")

    for j in range(4):
        g.wait_tag(f"b{j}")
        compute_block(j)
        if cfg.loopbar:
            g.I("s_barrier")
        if j == 0:
            clears()
        issue_block(j, f"b{j}")
        for k in cfg.wo_sched.get(j, []):
            wo_loads(k)
        if j == cfg.glu_at:
            glu_loads()
    for j in range(4):
        g.wait_tag(f"b{j}")
        compute_block(j)
        if j == 2:
            glu_part1()
        if cfg.loopbar:
            g.I("s_barrier")
        if j == 0 and not cfg.noclr:
            g.I(f"s_cmp_lg_u32 s{S_WAVE}, 0")
            g.I("s_cbranch_scc1 L_skip_sig")
            g.I(f"v_mov_b32 v62, 1")
            g.I(f"v_mov_b32 v63, 0")
            g.I("s_mov_b64 exec, 1")
            g.I(f"buffer_atomic_add v62, v63, {sr(R_DBG,4)}, s{S_HOFF} offen")
            g.I("s_mov_b64 exec, -1")
            g.lab("L_skip_sig")
        issue_block(j, f"b{j}")
        for k in cfg.wo_sched.get(4 + j, []):
            wo_loads(k)
        if j == 3:
            glu_part2()
    for j in range(4):
        g.wait_tag(f"b{j}")
        compute_block(j)
        if cfg.loopbar:
            g.I("s_barrier")
        issue_block(j, f"b{j}")
    g.wait_tag("wo")
    wo_perm()
    g.I(f"s_mov_b32 s{S_CNT}, 5")
    g.lab("L_loop")
    if cfg.stamp:
        g.I(f"s_cmp_lg_u32 s{S_WAVE}, 0")
        g.I(f"s_cbranch_scc1 L_stl")
        g.I(f"s_memrealtime s[{S_TS}:{S_TS+1}]")
        g.I("s_waitcnt lgkmcnt(0)")
        g.I(f"v_mov_b32 v5, s{S_TS}")
        g.I(f"s_lshl_b32 s{S_TS}, s2, 6")
        g.I(f"s_lshl_b32 s{S_TS+1}, s{S_CNT}, 2")
        g.I(f"s_sub_u32 s{S_TS}, s{S_TS}, s{S_TS+1}")
        g.I(f"s_add_u32 s{S_TS}, s{S_TS}, {2*1024*1024 + 15*4}")
        g.I(f"v_mov_b32 v6, s{S_TS}")
        g.I(f"global_store_dword v6, v5, s[{S_WS}:{S_WS+1}]")
        g.lab("L_stl")
    for b in range(D):
        g.I(f"s_waitcnt vmcnt({8*(D-1)})")
        compute_block(b)
        if cfg.loopbar and (b % cfg.loopbar) == 0:
            g.I("s_barrier")
        issue_block(b, f"b{b}")
    g.I(f"s_sub_u32 s{S_CNT}, s{S_CNT}, 1")
    g.I(f"s_cmp_lg_u32 s{S_CNT}, 1")
    g.I("s_cbranch_scc1 L_nochk")
    g.I(f"v_lshlrev_b32 v62, 2, v{V_LANE}")
    g.I(f"v_and_b32 v62, 0x7f, v62")
    g.I(f"buffer_load_dword v63, v62, {sr(R_DBG,4)}, 0 offen sc0 sc1")
    g.lab("L_nochk")
    g.I(f"s_cmp_lg_u32 s{S_CNT}, 0")
    g.I("s_cbranch_scc1 L_loop")
    g.wait_all()
    stamp(g, cfg, 2)
    if cfg.notail:
        g.I("s_branch L_end")
    t = V_T
    mw = t
    g.I(f"v_mov_b32 v{mw}, v{V_M}")
    cross_row_allreduce(g, "max_f32", mw, t + 1)
    g.I(f"v_sub_f32 v{t+2}, v{V_M}, v{mw}")
    g.I(f"v_mul_f32 v{t+2}, s{S_LOG2E}, v{t+2}")
    g.I(f"v_exp_f32 v{t+2}, v{t+2}")
    g.nop(1)
    g.I(f"v_mul_f32 v{V_L}, v{V_L}, v{t+2}")
    for j in range(8):
        g.I(f"v_mul_f32 v{V_ACC+j}, v{V_ACC+j}, v{t+2}")
    cross_row_allreduce(g, "add_f32", V_L, t + 1)
    reduce_scatter_rows(g, [V_ACC + j for j in range(8)])
    g.I(f"s_lshl_b32 s{S_T0}, s{S_WAVE}, 9")
    g.I(f"v_add_u32 v{t+3}, s{S_T0}, v{V_QOFF}")
    g.I(f"ds_write_b64 v{t+3}, {vr(V_ACC,2)} offset:{L_OP}")
    g.I(f"v_mov_b32 v{t+1}, v{V_L}")
    g.I(f"s_lshl_b32 s{S_T0}, s{S_WAVE}, 3")
    g.I(f"v_mov_b32 v{t+3}, s{S_T0}")
    g.I(f"ds_write_b64 v{t+3}, {vr(t,2)} offset:{L_ML}")
    g.I(f"v_mov_b32 v{t+3}, 0")
    g.I(f"v_add_u32 v{t+4}, s{S_SPLIT}, v{V_LANE}")
    g.I(f"v_and_b32 v{t+4}, 7, v{t+4}")
    g.I(f"v_lshlrev_b32 v{t+4}, 6, v{t+4}")
    g.I(f"s_lshl_b32 s{S_T0}, s{S_WAVE}, 3")
    g.I(f"v_add_u32 v{t+4}, s{S_T0}, v{t+4}")
    g.I("s_waitcnt lgkmcnt(0)")
    g.I("s_barrier")
    ML = 24
    for k in range(4):
        g.I(f"ds_read_b128 {vr(ML+4*k,4)}, v{t+3} offset:{L_ML+16*k}")
    OPR = V_RING
    for w in range(8):
        g.I(f"ds_read_b64 {vr(OPR+2*w,2)}, v{t+4} offset:{L_OP+512*w}")
    g.I("s_waitcnt lgkmcnt(8)")
    M = t
    g.I(f"v_max3_f32 v{M}, v{ML}, v{ML+2}, v{ML+4}")
    g.I(f"v_max3_f32 v{M}, v{M}, v{ML+6}, v{ML+8}")
    g.I(f"v_max3_f32 v{M}, v{M}, v{ML+10}, v{ML+12}")
    g.I(f"v_max_f32 v{M}, v{M}, v{ML+14}")
    for w in range(8):
        g.I(f"v_sub_f32 v{ML+2*w}, v{ML+2*w}, v{M}")
    for w in range(8):
        g.I(f"v_mul_f32 v{ML+2*w}, s{S_LOG2E}, v{ML+2*w}")
    for w in range(8):
        g.I(f"v_exp_f32 v{ML+2*w}, v{ML+2*w}")
    oa, ob = t + 5, t + 6
    g.I("s_waitcnt lgkmcnt(0)")
    g.I(f"v_mul_f32 v{oa}, v{ML}, v{OPR}")
    g.I(f"v_mul_f32 v{ob}, v{ML}, v{OPR+1}")
    for w in range(1, 8):
        g.I(f"v_fmac_f32 v{oa}, v{ML+2*w}, v{OPR+2*w}")
        g.I(f"v_fmac_f32 v{ob}, v{ML+2*w}, v{OPR+2*w+1}")
    g.I(f"v_cvt_pk_bf16_f32 v{oa}, v{oa}, v{ob}")
    so = list(range(4, 12))
    Lr = t + 1
    g.I(f"v_mul_f32 v{Lr}, v{ML}, v{ML+1}")
    for k in range(8):
        g.I(f"v_readlane_b32 s{so[k]}, v{oa}, {k}")
    for w in range(1, 8):
        g.I(f"v_fmac_f32 v{Lr}, v{ML+2*w}, v{ML+2*w+1}")
    YA = V_ACC
    for k in range(8):
        for j in range(4):
            A, B = V_W + 8 * k + j, V_W + 8 * k + 4 + j
            c0 = "0" if k == 0 else f"v{YA+2*j}"
            c1 = "0" if k == 0 else f"v{YA+2*j+1}"
            g.I(f"v_dot2_f32_bf16 v{YA+2*j}, v{A}, s{so[k]}, {c0}")
            g.I(f"v_dot2_f32_bf16 v{YA+2*j+1}, v{B}, s{so[k]}, {c1}")
    g.I(f"v_lshlrev_b32 v{t+3}, 5, v{V_LANE}")
    g.I(f"s_lshl_b32 s{S_T0}, s{S_WAVE}, 11")
    g.I(f"v_add_u32 v{t+4}, s{S_T0}, v{t+3}")
    g.nop(1)
    g.I(f"ds_write_b128 v{t+4}, {vr(YA,4)} offset:{L_YP}")
    g.I(f"ds_write_b128 v{t+4}, {vr(YA+4,4)} offset:{L_YP+16}")
    g.I("s_waitcnt lgkmcnt(0)")
    g.I("s_barrier")
    if cfg.parc:
        g.I(f"v_lshlrev_b32 v{t+3}, 11, v{V_G}")
        g.I(f"v_lshl_add_u32 v{t+3}, v{V_Cc}, 4, v{t+3}")
        g.I(f"s_lshl_b32 s{S_T0}, s{S_WAVE}, 8")
        g.I(f"v_add_u32 v{t+3}, s{S_T0}, v{t+3}")
        g.I(f"ds_read_b128 {vr(V_RING,4)}, v{t+3} offset:{L_YP}")
        g.I(f"ds_read_b128 {vr(V_RING+4,4)}, v{t+3} offset:{L_YP+8192}")
        g.I(f"v_lshrrev_b32 v{t+4}, 3, v{V_Cc}")
        g.I(f"v_lshlrev_b32 v{t+4}, 15, v{t+4}")
        g.I(f"v_and_b32 v{t+5}, 7, v{V_Cc}")
        g.I(f"v_lshl_add_u32 v{t+4}, v{t+5}, 4, v{t+4}")
        g.I(f"v_lshl_add_u32 v{t+4}, v{V_G}, 2, v{t+4}")
        g.I(f"s_lshl_b32 s{S_T0}, s{S_WAVE}, 16")
        g.I(f"s_lshl_b32 s{S_T1}, s{S_P}, 7")
        g.I(f"s_add_u32 s{S_T0}, s{S_T0}, s{S_T1}")
        g.I(f"s_lshl_b32 s{S_T1}, s{S_P}, 3")
        g.I(f"s_add_u32 s{S_T1}, s{S_T1}, {WS_ML}")
        g.I(f"v_mov_b32 v{t+5}, 0")
        g.I("s_waitcnt lgkmcnt(0)")
        for j in range(4):
            g.I(f"v_add_f32 v{V_RING+j}, v{V_RING+j}, v{V_RING+4+j}")
        reduce_scatter_rows(g, [V_RING + j for j in range(4)])
        g.I(f"buffer_store_dword v{V_RING}, v{t+4}, {sr(R_WS,4)}, s{S_T0} offen sc0 sc1")
        g.I(f"s_cmp_lg_u32 s{S_WAVE}, 0")
        g.I("s_cbranch_scc1 L_after_pub")
        g.I("s_mov_b64 exec, 1")
        g.I(f"buffer_store_dwordx2 {vr(t,2)}, v{t+5}, {sr(R_WS,4)}, s{S_T1} offen sc0 sc1")
        g.I("s_mov_b64 exec, -1")
    else:
        g.I(f"s_cmp_lg_u32 s{S_WAVE}, 0")
        g.I("s_cbranch_scc1 L_after_pub")
        g.I(f"v_lshlrev_b32 v{t+3}, 4, v{V_LANE}")
        for w in range(8):
            g.I(f"ds_read_b128 {vr(V_RING+8*w,4)}, v{t+3} offset:{L_YP+2048*w}")
            g.I(f"ds_read_b128 {vr(V_RING+8*w+4,4)}, v{t+3} offset:{L_YP+2048*w+1024}")
        y_addr(t + 3, t + 4)
        g.I(f"s_lshl_b32 s{S_T0}, s{S_P}, 7")
        g.I(f"s_add_u32 s{S_T2}, s{S_T0}, {8*32768}")
        g.I(f"s_lshl_b32 s{S_T1}, s{S_P}, 3")
        g.I(f"s_add_u32 s{S_T1}, s{S_T1}, {WS_ML}")
        g.I(f"v_mov_b32 v{t+4}, 0")
        g.I(f"v_cmp_eq_u32 vcc, 0, v{V_LANE}")
        g.I("s_waitcnt lgkmcnt(0)")
        for step in (1, 2, 4):
            for w in range(0, 8, 2 * step):
                for j in range(8):
                    g.I(f"v_add_f32 v{V_RING+8*w+j}, v{V_RING+8*w+j}, v{V_RING+8*(w+step)+j}")
        g.I(f"buffer_store_dwordx4 {vr(V_RING,4)}, v{t+3}, {sr(R_WS,4)}, s{S_T0} offen sc0 sc1")
        g.I(f"buffer_store_dwordx4 {vr(V_RING+4,4)}, v{t+3}, {sr(R_WS,4)}, s{S_T2} offen sc0 sc1")
        g.I(f"s_and_saveexec_b64 {sr(S_EX,2)}, vcc")
        g.I(f"buffer_store_dwordx2 {vr(t,2)}, v{t+4}, {sr(R_WS,4)}, s{S_T1} offen sc0 sc1")
        g.I(f"s_mov_b64 exec, {sr(S_EX,2)}")
    g.lab("L_after_pub")
    stamp(g, cfg, 3)

    def finisher(fid_sreg):
        t = V_T
        a0 = t
        g.I(f"v_lshlrev_b32 v62, 2, v{V_LANE}")
        g.I(f"v_and_b32 v62, 0x7f, v62")
        g.I(f"s_mov_b32 s{S_CNT}, 0x40000")
        g.lab("L_cpoll")
        g.I(f"v_cmp_gt_u32 vcc, 8, v63")
        g.I("s_cbranch_vccz L_cdone")
        g.I(f"s_sub_u32 s{S_CNT}, s{S_CNT}, 1")
        g.I(f"s_cmp_eq_u32 s{S_CNT}, 0")
        g.I("s_cbranch_scc1 L_cdone")
        g.I(f"buffer_load_dword v63, v62, {sr(R_DBG,4)}, 0 offen sc0 sc1")
        g.I("s_waitcnt vmcnt(0)")
        g.I("s_branch L_cpoll")
        g.lab("L_cdone")
        stamp(g, cfg, 4)
        g.I(f"v_lshrrev_b32 v{a0}, 2, v{V_TID}")
        g.I(f"v_lshlrev_b32 v{a0}, 7, v{a0}")
        g.I(f"v_and_b32 v{a0+1}, 3, v{V_TID}")
        g.I(f"v_lshl_add_u32 v{a0}, v{a0+1}, 4, v{a0}")
        g.I(f"s_lshr_b32 s{S_T0}, s{fid_sreg}, 1")
        g.I(f"s_lshl_b32 s{S_T0}, s{S_T0}, 15")
        g.I(f"s_and_b32 s{S_T1}, s{fid_sreg}, 1")
        g.I(f"s_lshl_b32 s{S_T1}, s{S_T1}, 6")
        g.I(f"s_add_u32 s{S_T0}, s{S_T0}, s{S_T1}")
        g.I(f"s_add_u32 s{S_T1}, s{S_T0}, 16384")
        g.I(f"s_add_u32 s{S_T2}, s{S_T0}, {WS_G}")
        g.I(f"s_add_u32 s{S_OFF}, s{S_T1}, {WS_G}")
        g.I(f"s_mov_b32 s{S_GJ}, {WS_ML}")
        Y1, Y2, G1, G2 = V_RING, V_RING + 4, V_RING + 8, V_RING + 12
        MLv = V_RING + 16
        g.I(f"v_and_b32 v{a0+1}, 15, v{V_LANE}")
        g.I(f"v_bfe_u32 v{a0+2}, v{V_LANE}, 4, 1")
        g.I(f"v_lshl_add_u32 v{a0+1}, v{a0+2}, 7, v{a0+1}")
        g.I(f"s_lshl_b32 s{S_RB}, s{S_WAVE}, 4")
        g.I(f"v_add_u32 v{a0+1}, s{S_RB}, v{a0+1}")
        g.I(f"v_lshlrev_b32 v{a0+1}, 3, v{a0+1}")
        g.I(f"v_and_b32 v{a0+5}, 15, v{V_TID}")
        g.I(f"v_lshlrev_b32 v{a0+5}, 1, v{a0+5}")
        g.I(f"s_lshl_b32 s{S_RB}, s{fid_sreg}, 5")
        g.I(f"buffer_load_ushort v{a0+6}, v{a0+5}, {sr(R_X,4)}, s{S_RB} offen")
        g.I(f"v_cmp_gt_u32 vcc, {96*4}, v{V_TID}")
        g.I(f"s_mov_b64 s[92:93], vcc")
        for j in range(4):
            g.I(f"v_mov_b32 v{G2+j}, 0")
        if cfg.stage1:
            g.I(f"s_mov_b32 s{S_CNT}, 0x40000")
            g.lab("L_mpoll")
            g.I(f"buffer_load_dwordx2 {vr(MLv,2)}, v{a0+1}, {sr(R_WS,4)}, s{S_GJ} offen sc0 sc1")
            g.I("s_waitcnt vmcnt(0)")
            g.I(f"v_max_u32 v{a0+8}, v{MLv}, v{MLv+1}")
            g.I(f"v_cmp_eq_u32 vcc, -1, v{a0+8}")
            g.I(f"s_bcnt1_i32_b64 s{S_RB}, vcc")
            g.I(f"s_cmp_lt_u32 s{S_RB}, {2*cfg.stage1}")
            g.I("s_cbranch_scc1 L_mdone")
            g.I(f"s_sub_u32 s{S_CNT}, s{S_CNT}, 1")
            g.I(f"s_cmp_lg_u32 s{S_CNT}, 0")
            g.I("s_cbranch_scc1 L_mpoll")
            g.lab("L_mdone")
        g.I(f"s_mov_b32 s{S_CNT}, 0x40000")
        g.lab("L_dpoll")
        g.I(f"buffer_load_dwordx2 {vr(MLv,2)}, v{a0+1}, {sr(R_WS,4)}, s{S_GJ} offen sc0 sc1")
        g.I(f"buffer_load_dwordx4 {vr(Y1,4)}, v{a0}, {sr(R_WS,4)}, s{S_T0} offen sc0 sc1")
        g.I(f"buffer_load_dwordx4 {vr(Y2,4)}, v{a0}, {sr(R_WS,4)}, s{S_T1} offen sc0 sc1")
        g.I(f"buffer_load_dwordx4 {vr(G1,4)}, v{a0}, {sr(R_WS,4)}, s{S_T2} offen sc0 sc1")
        g.I(f"s_and_b64 s[94:95], s[92:93], exec")
        g.I(f"s_cbranch_scc0 L_nog2")
        g.I(f"s_mov_b64 exec, s[92:93]")
        g.I(f"buffer_load_dwordx4 {vr(G2,4)}, v{a0}, {sr(R_WS,4)}, s{S_OFF} offen sc0 sc1")
        g.I(f"s_mov_b64 exec, -1")
        g.lab("L_nog2")
        g.I("s_waitcnt vmcnt(0)")
        mx = a0 + 8
        g.I(f"v_max3_u32 v{mx}, v{Y1}, v{Y1+1}, v{Y1+2}")
        g.I(f"v_max3_u32 v{mx+1}, v{Y1+3}, v{Y2}, v{Y2+1}")
        g.I(f"v_max3_u32 v{mx}, v{mx}, v{Y2+2}, v{Y2+3}")
        g.I(f"v_max3_u32 v{mx+1}, v{mx+1}, v{G1}, v{G1+1}")
        g.I(f"v_max3_u32 v{mx}, v{mx}, v{G1+2}, v{G1+3}")
        g.I(f"v_max3_u32 v{mx+1}, v{mx+1}, v{G2}, v{G2+1}")
        g.I(f"v_max3_u32 v{mx}, v{mx}, v{G2+2}, v{G2+3}")
        g.I(f"v_max3_u32 v{mx+1}, v{mx+1}, v{MLv}, v{MLv+1}")
        g.I(f"v_max_u32 v{mx}, v{mx}, v{mx+1}")
        g.I(f"v_cmp_eq_u32 vcc, -1, v{mx}")
        g.I("s_cbranch_vccz L_ddone")
        if cfg.psleep:
            g.I(f"s_sleep {cfg.psleep}")
        g.I(f"s_sub_u32 s{S_CNT}, s{S_CNT}, 1")
        g.I(f"s_cmp_lg_u32 s{S_CNT}, 0")
        g.I("s_cbranch_scc1 L_dpoll")
        g.lab("L_ddone")
        stamp(g, cfg, 9)
        M, W, Ls = a0 + 8, a0 + 9, a0 + 10
        g.I(f"v_mov_b32 v{M}, v{MLv}")
        g.nop(1)
        for dpp in ("quad_perm:[1,0,3,2]", "quad_perm:[2,3,0,1]", "row_half_mirror"):
            g.I(f"v_max_f32_dpp v{M}, v{M}, v{M} {dpp} row_mask:0xf bank_mask:0xf")
            g.nop(2)
        g.I(f"v_sub_f32 v{W}, v{MLv}, v{M}")
        g.I(f"v_mul_f32 v{W}, s{S_LOG2E}, v{W}")
        g.I(f"v_exp_f32 v{W}, v{W}")
        g.nop(1)
        g.I(f"v_mul_f32 v{Ls}, v{W}, v{MLv+1}")
        g.nop(2)
        for dpp in ("quad_perm:[1,0,3,2]", "quad_perm:[2,3,0,1]", "row_half_mirror"):
            g.I(f"v_add_f32_dpp v{Ls}, v{Ls}, v{Ls} {dpp} row_mask:0xf bank_mask:0xf")
            g.nop(2)
        c = a0 + 11
        g.I(f"v_rcp_f32 v{c}, v{Ls}")
        g.nop(1)
        g.I(f"v_fma_f32 v{M}, -v{Ls}, v{c}, 1.0")
        g.I(f"v_fma_f32 v{c}, v{M}, v{c}, v{c}")
        g.I(f"v_mul_f32 v{c}, v{c}, v{W}")
        g.I(f"v_and_b32 v{a0+1}, 0x3c, v{V_LANE}")
        g.I(f"v_add_u32 v{a0+2}, 64, v{a0+1}")
        c1, c2 = a0 + 8, a0 + 9
        g.I(f"ds_bpermute_b32 v{c1}, v{a0+1}, v{c}")
        g.I(f"ds_bpermute_b32 v{c2}, v{a0+2}, v{c}")
        for j in range(4):
            g.I(f"v_add_f32 v{G1+j}, v{G1+j}, v{G2+j}")
        g.I("s_waitcnt lgkmcnt(0)")
        for j in range(4):
            g.I(f"v_mul_f32 v{Y1+j}, v{c1}, v{Y1+j}")
        for j in range(4):
            g.I(f"v_fmac_f32 v{Y1+j}, v{c2}, v{Y2+j}")
        R8 = [Y1 + j for j in range(4)] + [G1 + j for j in range(4)]
        g.nop(2)
        for r in (4, 8):
            for x in R8:
                g.I(f"v_add_f32_dpp v{x}, v{x}, v{x} row_ror:{r} row_mask:0xf bank_mask:0xf")
        reduce_scatter_rows(g, R8)
        g.I(f"v_and_b32 v{a0}, 3, v{V_LANE}")
        g.I(f"v_lshlrev_b32 v{a0}, 4, v{a0}")
        g.I(f"v_and_b32 v{a0+1}, 1, v{V_G}")
        g.I(f"v_lshl_add_u32 v{a0}, v{a0+1}, 3, v{a0}")
        g.I(f"v_lshrrev_b32 v{a0+1}, 1, v{V_G}")
        g.I(f"v_lshl_add_u32 v{a0}, v{a0+1}, 6, v{a0}")
        g.I(f"s_lshl_b32 s{S_T0}, s{S_WAVE}, 7")
        g.I(f"v_add_u32 v{a0}, s{S_T0}, v{a0}")
        g.I(f"ds_write_b64 v{a0}, {vr(R8[0],2)} offset:{L_FIN}")
        g.I("s_waitcnt lgkmcnt(0)")
        g.I("s_barrier")
        g.I(f"s_cmp_lg_u32 s{S_WAVE}, 0")
        g.I("s_cbranch_scc1 L_end2")
        g.I(f"v_and_b32 v{a0}, 15, v{V_LANE}")
        g.I(f"v_lshlrev_b32 v{a0}, 2, v{a0}")
        for w in range(8):
            g.I(f"ds_read_b32 v{V_RING+16+w}, v{a0} offset:{L_FIN+128*w}")
            g.I(f"ds_read_b32 v{V_RING+24+w}, v{a0} offset:{L_FIN+128*w+64}")
        g.I("s_waitcnt lgkmcnt(0)")
        for step in (1, 2, 4):
            for w in range(0, 8, 2 * step):
                g.I(f"v_add_f32 v{V_RING+16+w}, v{V_RING+16+w}, v{V_RING+16+w+step}")
                g.I(f"v_add_f32 v{V_RING+24+w}, v{V_RING+24+w}, v{V_RING+24+w+step}")
        bf16_round2(g, V_RING + 16, V_RING + 24, a0 + 1)
        g.I(f"v_lshlrev_b32 v{a0+6}, 16, v{a0+6}")
        g.I(f"v_add_f32 v{a0+6}, v{a0+6}, v{V_RING+16}")
        bf16_round1(g, a0 + 6, a0 + 6, a0 + 1)
        g.I(f"v_add_f32 v{a0+6}, v{a0+6}, v{V_RING+24}")
        g.I(f"v_cvt_pk_bf16_f32 v{a0+6}, v{a0+6}, v{a0+6}")
        g.I(f"v_cmp_gt_u32 vcc, 16, v{V_LANE}")
        g.I(f"s_and_saveexec_b64 {sr(S_EX,2)}, vcc")
        g.I(f"s_lshl_b32 s{S_T2}, s{fid_sreg}, 5")
        g.I(f"buffer_store_short v{a0+6}, v{a0+5}, {sr(R_OUT,4)}, s{S_T2} offen")
        stamp(g, cfg, 5)
        g.lab("L_end2")

    g.I("s_cmp_ge_u32 s2, 32")
    g.I("s_cbranch_scc1 L_end")
    finisher(2)
    g.lab("L_end")
    g.I("s_endpgm")

    g.L.append('.section .rodata,"a"')
    g.L.append(".p2align 6")
    g.L.append(f".amdhsa_kernel {kmain}")
    g.L.append("  .amdhsa_next_free_vgpr 256")
    g.L.append("  .amdhsa_next_free_sgpr 102")
    g.L.append("  .amdhsa_accum_offset 256")
    g.L.append("  .amdhsa_group_segment_fixed_size 0")
    g.L.append("  .amdhsa_kernarg_size 96")
    g.L.append("  .amdhsa_user_sgpr_count 2")
    g.L.append("  .amdhsa_user_sgpr_kernarg_segment_ptr 1")
    g.L.append("  .amdhsa_system_sgpr_workgroup_id_x 1")
    g.L.append(".end_amdhsa_kernel")
    return g.text()


if __name__ == "__main__":
    ap = argparse.ArgumentParser()
    ap.add_argument("--nt", type=int, default=1)
    ap.add_argument("--stamp", type=int, default=0)
    ap.add_argument("--loopbar", type=int, default=1)
    ap.add_argument("--lnwave", type=int, default=0)
    ap.add_argument("--psleep", type=int, default=0)
    ap.add_argument("--stage1", type=int, default=3)
    ap.add_argument("--parc", type=int, default=1)
    ap.add_argument("--noclr", type=int, default=0)
    ap.add_argument("--noln", type=int, default=0)
    ap.add_argument("--touch", type=int, default=0)
    ap.add_argument("--wq1", type=int, default=0)
    ap.add_argument("--glueff", type=int, default=0)
    ap.add_argument("--wnt", type=int, default=9)
    ap.add_argument("--hmap", type=int, default=1)
    ap.add_argument("--nocompute", type=int, default=0)
    ap.add_argument("--notail", type=int, default=0)
    ap.add_argument("--nowo", type=int, default=0)
    ap.add_argument("--noglu", type=int, default=0)
    ap.add_argument("--nowq", type=int, default=0)
    ap.add_argument("--wosched", type=str, default="{0:[0],3:[1,2],4:[3,4],5:[5,6],6:[7]}")
    ap.add_argument("--glu_at", type=int, default=1)
    ap.add_argument("--issue", type=str, default="1,2,3,5")
    ap.add_argument("-o", default="parallel_sum__mha_block_cached__glu_gated_glu__decode.s")
    cfg = ap.parse_args()
    cfg.issue_at = [int(x) for x in cfg.issue.split(",")]
    cfg.wo_sched = eval(cfg.wosched)
    assert len(cfg.issue_at) == 4
    open(cfg.o, "w").write(gen(cfg))
    print("wrote", cfg.o)
```

```python
import sys, argparse
from gen import G, vr, sr, HEADER, KNAME

S_X, S_K, S_V, S_WQ, S_WO, S_BX, S_GT, S_UP = 4, 6, 8, 10, 12, 14, 16, 18
S_DN, S_OUT, S_DBG, S_WS = 20, 22, 24, 26
R_K, R_V, R_WQ, R_WO, R_GT, R_UP, R_DN, R_X, R_WS, R_OUT, R_DBG = 28, 32, 36, 40, 44, 48, 52, 56, 60, 64, 68
S_H, S_SPLIT, S_WAVE, S_OFF, S_CNT = 72, 73, 74, 75, 76
S_SCALE, S_LOG2E, S_MASK, S_P, S_GJ, S_T0, S_T1, S_T2, S_GVALID = 78, 79, 80, 81, 82, 83, 84, 85, 86
S_PLO, S_PHI = 87, 88
S_HOFF = 90
S_RB = 91
S_EX = 96
S_TS = 98

L_XN = 0
L_QP = 1024
L_GU = 5120
L_OP = 5632
L_ML = 9728
L_YP = 10240
L_FIN = 26624
LDS_BYTES = 27648

WS_Y = 0
WS_G = 512 * 1024
WS_ML = 1024 * 1024
WS_BYTES = 1024 * 1024 + 2048 + 4096


def srd(g, r, base_lo, base_hi, nbytes):
    g.I(f"s_mov_b32 s{r}, s{base_lo}")
    g.I(f"s_and_b32 s{r+1}, s{base_hi}, 0xffff")
    g.I(f"s_mov_b32 s{r+2}, {nbytes:#x}")
    g.I(f"s_mov_b32 s{r+3}, 0x00020000")


def srd_off(g, r, base_lo, base_hi, off_sreg, nbytes):
    g.I(f"s_add_u32 s{r}, s{base_lo}, s{off_sreg}")
    g.I(f"s_addc_u32 s{r+1}, s{base_hi}, 0")
    g.I(f"s_and_b32 s{r+1}, s{r+1}, 0xffff")
    g.I(f"s_mov_b32 s{r+2}, {nbytes:#x}")
    g.I(f"s_mov_b32 s{r+3}, 0x00020000")


def bf16_round1(g, dst, src, tmp):
    g.I(f"v_cvt_pk_bf16_f32 v{tmp}, v{src}, v{src}")
    g.I(f"v_lshlrev_b32 v{dst}, 16, v{tmp}")


def bf16_round2(g, a, b, tmp):
    g.I(f"v_cvt_pk_bf16_f32 v{tmp}, v{a}, v{b}")
    g.I(f"v_lshlrev_b32 v{a}, 16, v{tmp}")
    g.I(f"v_and_b32 v{b}, s{S_MASK}, v{tmp}")


def row_allreduce(g, op, regs):
    n = len(regs)
    for r in (8, 4, 2, 1):
        for x in regs:
            g.I(f"v_{op}_dpp v{x}, v{x}, v{x} row_ror:{r} row_mask:0xf bank_mask:0xf")
        if n < 3:
            g.nop(3 - n)


def cross_row_allreduce(g, op, x, t):
    g.I(f"v_mov_b32 v{t}, v{x}")
    g.nop(2)
    g.I(f"v_permlane16_swap_b32 v{x}, v{t}")
    g.nop(1)
    g.I(f"v_{op} v{x}, v{x}, v{t}")
    g.I(f"v_mov_b32 v{t}, v{x}")
    g.nop(2)
    g.I(f"v_permlane32_swap_b32 v{x}, v{t}")
    g.nop(1)
    g.I(f"v_{op} v{x}, v{x}, v{t}")


def wave_allreduce(g, op, x, t):
    row_allreduce(g, op, [x])
    cross_row_allreduce(g, op, x, t)


def reduce_scatter_rows(g, regs):
    n = len(regs)
    h = n // 2
    g.nop(2)
    for k in range(h):
        g.I(f"v_permlane32_swap_b32 v{regs[k]}, v{regs[k+h]}")
    g.nop(1)
    for k in range(h):
        g.I(f"v_add_f32 v{regs[k]}, v{regs[k]}, v{regs[k+h]}")
    qn = h // 2
    g.nop(2)
    for k in range(qn):
        g.I(f"v_permlane16_swap_b32 v{regs[k]}, v{regs[k+qn]}")
    g.nop(1)
    for k in range(qn):
        g.I(f"v_add_f32 v{regs[k]}, v{regs[k]}, v{regs[k+qn]}")


def stamp(g, cfg, idx, wave=0):
    if not cfg.stamp:
        return
    lab = f"L_st{idx}"
    g.I(f"s_cmp_lg_u32 s{S_WAVE}, {wave}")
    g.I(f"s_cbranch_scc1 {lab}")
    g.I(f"s_memrealtime s[{S_TS}:{S_TS+1}]")
    g.I("s_waitcnt lgkmcnt(0)")
    g.I(f"v_mov_b32 v5, s{S_TS}")
    g.I(f"s_lshl_b32 s{S_TS}, s2, 6")
    g.I(f"s_add_u32 s{S_TS}, s{S_TS}, {2*1024*1024 + idx*4}")
    g.I(f"v_mov_b32 v6, s{S_TS}")
    g.I(f"global_store_dword v6, v5, s[{S_WS}:{S_WS+1}]")
    g.lab(lab)


def gen(cfg):
    D = 4
    NT = " nt" if cfg.nt else ""
    WQNT = " nt" if cfg.wnt & 1 else ""
    WONT = " nt" if cfg.wnt & 2 else ""
    GNT = " nt" if cfg.wnt & 4 else ""
    DNT = " nt" if cfg.wnt & 8 else ""
    g = G()
    V_TID, V_LANE, V_KVOFF, V_G, V_Cc, V_WOA = 0, 1, 2, 3, 4, 7
    V_Q = 8
    V_ACC = 12
    V_M, V_L = 20, 21
    V_S = 22
    V_PP = 32
    V_T = 40
    V_GT, V_UP, V_DN = 46, 50, 54
    V_XROW = 60
    V_QOFF = 61
    TMP8 = [26, 27, 28, 29, 30, 31, 58, 59]
    V_W = 64
    V_RING = 128
    LNW = cfg.lnwave

    g.L.append(HEADER.rstrip("\n"))
    g.L.append(f"; @launch grid=(256,1,1) block=(512,1,1) lds={LDS_BYTES}")
    kmain = KNAME
    g.L.append('.amdgcn_target "amdgcn-amd-amdhsa--gfx950"')
    g.L.append(".text")
    g.L.append(f".globl {kmain}")
    g.L.append(".p2align 8")
    g.L.append(f".type {kmain},@function")
    g.lab(kmain)
    g.I("s_cmp_ge_u32 s2, 256")
    g.I("s_cbranch_scc1 L_end")
    g.I("s_load_dwordx16 s[4:19], s[0:1], 0")
    g.I("s_load_dwordx8 s[20:27], s[0:1], 64")
    g.I(f"v_and_b32 v{V_LANE}, 63, v{V_TID}")
    g.I(f"v_lshrrev_b32 v{V_T}, 6, v{V_TID}")
    g.I(f"v_lshrrev_b32 v{V_G}, 4, v{V_LANE}")
    g.I(f"v_readfirstlane_b32 s{S_WAVE}, v{V_T}")
    g.I(f"v_and_b32 v{V_Cc}, 15, v{V_LANE}")
    g.I(f"s_mov_b32 s{S_SCALE}, 0x3db504f3")
    g.I(f"s_mov_b32 s{S_LOG2E}, 0x3fb8aa3b")
    g.I(f"s_mov_b32 s{S_MASK}, 0xffff0000")
    g.I(f"s_mov_b32 s{S_PLO}, 0x05040100")
    g.I(f"s_mov_b32 s{S_PHI}, 0x07060302")
    g.I(f"s_and_b32 s{S_T0}, s2, 7")
    g.I(f"s_lshr_b32 s{S_T1}, s2, 3")
    g.I(f"s_and_b32 s{S_T2}, s{S_T1}, 3")
    if cfg.hmap == 0:
        g.I(f"s_lshl_b32 s{S_H}, s{S_T0}, 2")
        g.I(f"s_add_u32 s{S_H}, s{S_H}, s{S_T2}")
    else:
        g.I(f"s_lshl_b32 s{S_H}, s{S_T2}, 1")
        g.I(f"s_add_u32 s{S_H}, s{S_H}, s{S_T0}")
        g.I(f"s_and_b32 s{S_H}, s{S_H}, 7")
        g.I(f"s_lshl_b32 s{S_T2}, s{S_T2}, 3")
        g.I(f"s_add_u32 s{S_H}, s{S_H}, s{S_T2}")
    g.I(f"s_lshr_b32 s{S_SPLIT}, s{S_T1}, 2")
    g.I(f"s_lshl_b32 s{S_P}, s{S_H}, 3")
    g.I(f"s_add_u32 s{S_P}, s{S_P}, s{S_SPLIT}")
    g.I(f"s_lshl_b32 s{S_HOFF}, s{S_H}, 2")
    g.I(f"s_mul_i32 s{S_GJ}, s{S_T0}, 28")
    g.I(f"s_add_u32 s{S_GJ}, s{S_GJ}, s{S_T1}")
    g.I(f"s_cmp_lt_u32 s{S_T1}, 28")
    g.I(f"s_cselect_b32 s{S_GVALID}, 1, 0")
    g.I(f"s_cselect_b32 s{S_GJ}, s{S_GJ}, 0")
    V_A = 56
    g.I(f"v_lshlrev_b32 v{V_WOA}, 4, v{V_LANE}")
    g.I(f"v_lshlrev_b32 v{V_A+1}, 14, v{V_G}")
    g.I(f"v_lshl_add_u32 v{V_A+1}, v{V_Cc}, 4, v{V_A+1}")
    g.I(f"s_lshl_b32 s{S_T0}, s{S_WAVE}, 16")
    g.I(f"s_lshl_b32 s{S_T1}, s{S_H}, 8")
    g.I(f"s_add_u32 s{S_RB}, s{S_T0}, s{S_T1}")
    g.I(f"s_lshl_b32 s{S_T1}, s{S_WAVE}, 12")
    g.I(f"v_add_u32 v{V_KVOFF}, s{S_T1}, v{V_WOA}")
    g.I(f"s_lshl_b32 s{S_T2}, s{S_P}, 20")
    g.I("s_waitcnt lgkmcnt(0)")
    stamp(g, cfg, 0)
    if cfg.touch:
        TB = 92
        g.I(f"s_mov_b64 s[{TB}:{TB+1}], s[{S_WQ}:{S_WQ+1}]")
        g.I(f"s_mov_b32 s{TB+2}, 0x200000")
        def sel(w, ptr, off_code):
            g.I(f"s_cmp_eq_u32 s{S_WAVE}, {w}")
            g.I(f"s_cselect_b64 s[{TB}:{TB+1}], s[{ptr}:{ptr+1}], s[{TB}:{TB+1}]")
            g.I(f"s_cselect_b32 s{TB+2}, {off_code}, s{TB+2}")
        g.I(f"s_lshl_b32 s{TB+3}, s{S_H}, 17")
        sel(1, S_WO, f"s{TB+3}")
        sel(2, S_GT, "0")
        sel(3, S_UP, "0")
        g.I(f"s_lshl_b32 s{TB+3}, s{S_GJ}, 13")
        sel(4, S_DN, f"s{TB+3}")
        sel(5, S_WS, "0")
        sel(6, S_DBG, "0")
        sel(7, S_OUT, "0")
        g.I(f"v_mov_b32 v6, s{TB+2}")
        g.I(f"global_load_dword v5, v6, s[{TB}:{TB+1}]")
    srd(g, R_WQ, S_WQ, S_WQ + 1, 512 * 8192)
    srd(g, R_X, S_X, S_X + 1, 1024)
    srd_off(g, R_K, S_K, S_K + 1, S_T2, 0x100000)
    srd_off(g, R_V, S_V, S_V + 1, S_T2, 0x100000)
    g.I(f"s_cmp_lg_u32 s{S_WAVE}, {LNW}")
    g.I("s_cbranch_scc1 L_loads")
    if cfg.noln:
        g.I("s_branch L_loads")
    V_XR = V_T
    XF = V_PP
    g.I(f"buffer_load_dwordx4 {vr(V_XR,4)}, v{V_WOA}, {sr(R_X,4)}, 0 offen")
    if cfg.early0:
        kb = V_RING
        for i in range(4):
            g.I(f"buffer_load_dwordx4 {vr(kb+4*i,4)}, v{V_KVOFF}, {sr(R_K,4)}, 0 offen offset:{i*1024}{NT}")
        for i in range(4):
            g.I(f"buffer_load_dwordx4 {vr(kb+16+4*i,4)}, v{V_KVOFF}, {sr(R_V,4)}, 0 offen offset:{i*1024}{NT}")
        g.I("s_waitcnt vmcnt(8)")
    else:
        g.I("s_waitcnt vmcnt(0)")
    stamp(g, cfg, 6, LNW)
    for j in range(4):
        g.I(f"v_lshlrev_b32 v{XF+2*j}, 16, v{V_XR+j}")
        g.I(f"v_and_b32 v{XF+2*j+1}, s{S_MASK}, v{V_XR+j}")
    t0, t1, t2, t3 = V_S, V_S + 1, V_S + 2, V_S + 3
    g.I(f"v_add_f32 v{t0}, v{XF}, v{XF+1}")
    g.I(f"v_add_f32 v{t1}, v{XF+2}, v{XF+3}")
    g.I(f"v_add_f32 v{t2}, v{XF+4}, v{XF+5}")
    g.I(f"v_add_f32 v{t3}, v{XF+6}, v{XF+7}")
    g.I(f"v_add_f32 v{t0}, v{t0}, v{t1}")
    g.I(f"v_add_f32 v{t2}, v{t2}, v{t3}")
    g.I(f"v_add_f32 v{t0}, v{t0}, v{t2}")
    g.nop(2)
    wave_allreduce(g, "add_f32", t0, t1)
    g.I(f"v_mul_f32 v{t0}, 0x3b000000, v{t0}")
    for j in range(8):
        g.I(f"v_sub_f32 v{12+j}, v{XF+j}, v{t0}")
    g.I(f"v_mul_f32 v{t1}, v12, v12")
    g.I(f"v_mul_f32 v{t2}, v13, v13")
    for j in range(2, 8, 2):
        g.I(f"v_fmac_f32 v{t1}, v{12+j}, v{12+j}")
        g.I(f"v_fmac_f32 v{t2}, v{13+j}, v{13+j}")
    g.I(f"v_add_f32 v{t1}, v{t1}, v{t2}")
    g.nop(2)
    wave_allreduce(g, "add_f32", t1, t2)
    g.I(f"v_mul_f32 v{t1}, 0x3b000000, v{t1}")
    bf16_round2(g, t0, t1, t2)
    g.I(f"v_add_f32 v{t1}, 0x3727c5ac, v{t1}")
    for j in range(8):
        g.I(f"v_sub_f32 v{XF+j}, v{XF+j}, v{t0}")
    bf16_round1(g, t1, t1, t2)
    g.I(f"v_sqrt_f32 v{t1}, v{t1}")
    for j in range(0, 8, 2):
        bf16_round2(g, XF + j, XF + j + 1, t2)
    bf16_round1(g, t1, t1, t2)
    g.I(f"v_rcp_f32 v{t3}, v{t1}")
    g.nop(1)
    for j in range(8):
        g.I(f"v_mul_f32 v{12+j}, v{XF+j}, v{t3}")
    for j in range(8):
        g.I(f"v_fma_f32 v{26+(j%4)}, -v{12+j}, v{t1}, v{XF+j}")
        g.I(f"v_fma_f32 v{XF+j}, v{26+(j%4)}, v{t3}, v{12+j}")
    XP = V_Q
    for j in range(4):
        g.I(f"v_cvt_pk_bf16_f32 v{XP+j}, v{XF+2*j}, v{XF+2*j+1}")
    g.I(f"ds_write_b128 v{V_WOA}, {vr(XP,4)} offset:{L_XN}")
    g.lab("L_loads")

    def issue_block(slot, tag):
        kb = V_RING + slot * 32
        for i in range(4):
            g.vm(f"buffer_load_dwordx4 {vr(kb+4*i,4)}, v{V_KVOFF}, {sr(R_K,4)}, s{S_OFF} offen offset:{i*1024}{NT}", tag)
        for i in range(4):
            g.vm(f"buffer_load_dwordx4 {vr(kb+16+4*i,4)}, v{V_KVOFF}, {sr(R_V,4)}, s{S_OFF} offen offset:{i*1024}{NT}", tag)
        g.I(f"s_add_u32 s{S_OFF}, s{S_OFF}, 32768")

    nissued = 0

    def maybe_issue(point):
        nonlocal nissued
        while nissued < D and cfg.issue_at[nissued] == point:
            if nissued == 0 and cfg.early0:
                g.I(f"s_cmp_eq_u32 s{S_WAVE}, {LNW}")
                g.I("s_cbranch_scc1 L_b0skip")
                issue_block(0, "b0")
                g.I("s_branch L_b0done")
                g.lab("L_b0skip")
                g.I(f"s_add_u32 s{S_OFF}, s{S_OFF}, 32768")
                g.lab("L_b0done")
            else:
                issue_block(nissued, f"b{nissued}")
            nissued += 1

    g.I(f"s_mov_b32 s{S_OFF}, 0")
    maybe_issue(0)
    for k in range(8):
        g.I(f"s_add_u32 s{S_T0}, s{S_SPLIT}, {k}")
        g.I(f"s_and_b32 s{S_T0}, s{S_T0}, 7")
        g.I(f"s_lshl_b32 s{S_T0}, s{S_T0}, 19")
        g.I(f"s_add_u32 s{S_T0}, s{S_T0}, s{S_RB}")
        g.I(f"s_add_u32 s{S_T1}, s{S_T0}, 8192")
        if not cfg.nowq and not (cfg.wq1 and k > 0):
            g.vm(f"buffer_load_dwordx4 {vr(V_W+8*k,4)}, v{V_A+1}, {sr(R_WQ,4)}, s{S_T0} offen{WQNT}", f"wq{k//2}")
            g.vm(f"buffer_load_dwordx4 {vr(V_W+8*k+4,4)}, v{V_A+1}, {sr(R_WQ,4)}, s{S_T1} offen{WQNT}", f"wq{k//2}")
        if k == 0:
            maybe_issue(1)
    maybe_issue(2)
    srd(g, R_GT, S_GT, S_GT + 1, 512 * 3584)
    srd(g, R_UP, S_UP, S_UP + 1, 512 * 3584)
    srd(g, R_DN, S_DN, S_DN + 1, 1792 * 1024)
    srd(g, R_WS, S_WS, S_WS + 1, WS_BYTES)
    srd(g, R_OUT, S_OUT, S_OUT + 1, 1024)
    srd(g, R_DBG, S_DBG, S_DBG + 1, 256)
    g.I(f"s_lshl_b32 s{S_T0}, s{S_H}, 17")
    srd_off(g, R_WO, S_WO, S_WO + 1, S_T0, 0x20000)
    XNP = V_ACC
    g.I(f"s_lshl_b32 s{S_T0}, s{S_WAVE}, 4")
    g.I(f"v_lshlrev_b32 v{V_A}, 2, v{V_G}")
    g.I(f"v_add_u32 v{V_A}, s{S_T0}, v{V_A}")
    for k in range(8):
        g.I(f"s_add_u32 s{S_T0}, s{S_SPLIT}, {k}")
        g.I(f"s_and_b32 s{S_T0}, s{S_T0}, 7")
        g.I(f"s_lshl_b32 s{S_T0}, s{S_T0}, 7")
        g.I(f"v_add_u32 v{XNP+k}, s{S_T0}, v{V_A}")
    g.I(f"v_lshlrev_b32 v{V_A+2}, 1, v{V_TID}")
    g.I("s_waitcnt lgkmcnt(0)")
    g.I("s_barrier")
    stamp(g, cfg, 8)
    for k in range(8):
        g.I(f"ds_read_b32 v{XNP+k}, v{XNP+k} offset:{L_XN}")
    g.I(f"ds_read_u16 v{V_XROW}, v{V_A+2} offset:{L_XN}")
    maybe_issue(3)
    ta, tb, tc, td = 26, 27, 28, 29
    g.I(f"v_and_b32 v{ta}, 1, v{V_G}")
    g.I(f"v_lshlrev_b32 v{ta}, 3, v{ta}")
    g.I(f"v_lshrrev_b32 v{tb}, 1, v{V_G}")
    g.I(f"v_lshl_add_u32 v{ta}, v{tb}, 4, v{ta}")
    g.I(f"v_lshl_add_u32 v{V_QOFF}, v{V_Cc}, 5, v{ta}")
    g.I("s_waitcnt lgkmcnt(0)")
    g.I(f"v_lshlrev_b32 v{V_XROW}, 16, v{V_XROW}")
    QA = V_PP
    for k in range(8):
        if k % 2 == 0:
            g.wait_tag(f"wq{k//2}")
        for j in range(4):
            A, B = V_W + 8 * k + j, V_W + 8 * k + 4 + j
            lo, hi = (ta, tb) if j % 2 == 0 else (tc, td)
            g.I(f"v_perm_b32 v{lo}, v{B}, v{A}, s{S_PLO}")
            g.I(f"v_perm_b32 v{hi}, v{B}, v{A}, s{S_PHI}")
            s2a = "0" if k == 0 else f"v{QA+2*j}"
            s2b = "0" if k == 0 else f"v{QA+2*j+1}"
            g.I(f"v_dot2_f32_bf16 v{QA+2*j}, v{lo}, v{XNP+k}, {s2a}")
            g.I(f"v_dot2_f32_bf16 v{QA+2*j+1}, v{hi}, v{XNP+k}, {s2b}")
        if k == 3:
            maybe_issue(4)
    g.nop(1)
    reduce_scatter_rows(g, [QA + j for j in range(8)])
    g.I(f"s_lshl_b32 s{S_T0}, s{S_WAVE}, 9")
    g.I(f"v_add_u32 v{ta}, s{S_T0}, v{V_QOFF}")
    g.I(f"ds_write_b64 v{ta}, {vr(QA,2)} offset:{L_QP}")
    g.I(f"v_lshlrev_b32 v{tb}, 5, v{V_Cc}")
    maybe_issue(5)
    g.I("s_waitcnt lgkmcnt(0)")
    g.I("s_barrier")
    stamp(g, cfg, 7)
    for w in range(8):
        g.I(f"ds_read_b128 {vr(V_W+8*w,4)}, v{tb} offset:{L_QP+512*w}")
        g.I(f"ds_read_b128 {vr(V_W+8*w+4,4)}, v{tb} offset:{L_QP+512*w+16}")
    g.I(f"v_mov_b32 v{V_M}, 0xff800000")
    g.I(f"v_mov_b32 v{V_L}, 0")
    for j in range(8):
        g.I(f"v_mov_b32 v{V_ACC+j}, 0")
    g.I(f"s_lshl_b32 s{S_T0}, s{S_WAVE}, 11")
    g.I(f"v_add_u32 v{V_WOA}, s{S_T0}, v{V_WOA}")
    for step in (1, 2, 4):
        g.I(f"s_waitcnt lgkmcnt({ {1: 0, 2: 0, 4: 0}[step] })") if step == 1 else None
        for w in range(0, 8, 2 * step):
            for j in range(8):
                g.I(f"v_add_f32 v{V_W+8*w+j}, v{V_W+8*w+j}, v{V_W+8*(w+step)+j}")
    for j in range(4):
        g.I(f"v_cvt_pk_bf16_f32 v{V_Q+j}, v{V_W+2*j}, v{V_W+2*j+1}")
    maybe_issue(6)
    assert nissued == D
    stamp(g, cfg, 1)

    def compute_block(slot):
        if cfg.nocompute:
            return
        kb = V_RING + slot * 32
        vb = kb + 16
        S = V_S
        for j in range(4):
            for i in range(4):
                src2 = "0" if j == 0 else f"v{S+i}"
                g.I(f"v_dot2_f32_bf16 v{S+i}, v{kb+4*i+j}, v{V_Q+j}, {src2}")
        t = V_T
        row_allreduce(g, "add_f32", [S + i for i in range(4)])
        g.I(f"v_cvt_pk_bf16_f32 v{t}, v{S}, v{S+1}")
        g.I(f"v_cvt_pk_bf16_f32 v{t+1}, v{S+2}, v{S+3}")
        g.I(f"v_lshlrev_b32 v{S}, 16, v{t}")
        g.I(f"v_and_b32 v{S+1}, s{S_MASK}, v{t}")
        g.I(f"v_lshlrev_b32 v{S+2}, 16, v{t+1}")
        g.I(f"v_and_b32 v{S+3}, s{S_MASK}, v{t+1}")
        for i in range(4):
            g.I(f"v_mul_f32 v{S+i}, s{S_SCALE}, v{S+i}")
        g.I(f"v_cvt_pk_bf16_f32 v{t}, v{S}, v{S+1}")
        g.I(f"v_cvt_pk_bf16_f32 v{t+1}, v{S+2}, v{S+3}")
        g.I(f"v_lshlrev_b32 v{S}, 16, v{t}")
        g.I(f"v_and_b32 v{S+1}, s{S_MASK}, v{t}")
        g.I(f"v_lshlrev_b32 v{S+2}, 16, v{t+1}")
        g.I(f"v_and_b32 v{S+3}, s{S_MASK}, v{t+1}")
        mn, al, mb = t + 2, t + 4, t + 3
        g.I(f"v_max3_f32 v{mn}, v{V_M}, v{S}, v{S+1}")
        g.I(f"v_max3_f32 v{mn}, v{mn}, v{S+2}, v{S+3}")
        g.I(f"v_sub_f32 v{al}, v{V_M}, v{mn}")
        g.I(f"v_mul_f32 v{mb}, s{S_LOG2E}, v{mn}")
        g.I(f"v_mul_f32 v{al}, s{S_LOG2E}, v{al}")
        for i in range(4):
            g.I(f"v_fma_f32 v{V_PP+i}, v{S+i}, s{S_LOG2E}, -v{mb}")
        g.I(f"v_exp_f32 v{al}, v{al}")
        for i in range(4):
            g.I(f"v_exp_f32 v{V_PP+i}, v{V_PP+i}")
        g.I(f"v_mov_b32 v{V_M}, v{mn}")
        for pr in range(2):
            for j in range(4):
                A, B = vb + 8 * pr + j, vb + 8 * pr + 4 + j
                g.I(f"v_perm_b32 v{kb+8*pr+2*j}, v{B}, v{A}, s{S_PLO}")
                g.I(f"v_perm_b32 v{kb+8*pr+2*j+1}, v{B}, v{A}, s{S_PHI}")
        g.I(f"v_mul_f32 v{V_L}, v{V_L}, v{al}")
        for j in range(4):
            g.I(f"v_pk_mul_f32 {vr(V_ACC+2*j,2)}, {vr(V_ACC+2*j,2)}, {vr(al,2)} op_sel_hi:[1,0]")
        g.I(f"v_cvt_pk_bf16_f32 v{V_PP+4}, v{V_PP}, v{V_PP+1}")
        g.I(f"v_cvt_pk_bf16_f32 v{V_PP+5}, v{V_PP+2}, v{V_PP+3}")
        g.I(f"v_add_f32 v{t}, v{V_PP}, v{V_PP+1}")
        g.I(f"v_add_f32 v{t+1}, v{V_PP+2}, v{V_PP+3}")
        g.I(f"v_add_f32 v{t}, v{t}, v{t+1}")
        g.I(f"v_add_f32 v{V_L}, v{V_L}, v{t}")
        for pr in range(2):
            for jj in range(8):
                g.I(f"v_dot2_f32_bf16 v{V_ACC+jj}, v{kb+8*pr+jj}, v{V_PP+4+pr}, v{V_ACC+jj}")

    def glu_part1():
        if cfg.noglu:
            return
        g.wait_tag("gu")
        for half, src in ((0, V_GT), (1, V_UP)):
            R = TMP8
            for j in range(4):
                g.I(f"v_lshlrev_b32 v{R[2*j]}, 16, v{src+j}")
                g.I(f"v_and_b32 v{R[2*j+1]}, s{S_MASK}, v{src+j}")
            for j in range(8):
                g.I(f"v_mul_f32 v{R[j]}, v{R[j]}, v{V_XROW}")
            reduce_scatter_rows(g, R)
            g.nop(2)
            row_allreduce(g, "add_f32", [R[0], R[1]])
            g.I(f"v_lshlrev_b32 v{R[2]}, 6, v{V_G}")
            g.I(f"s_lshl_b32 s{S_T0}, s{S_WAVE}, 2")
            g.I(f"v_add_u32 v{R[2]}, s{S_T0}, v{R[2]}")
            g.I(f"v_cmp_eq_u32 vcc, 0, v{V_Cc}")
            g.I(f"s_and_saveexec_b64 {sr(S_EX,2)}, vcc")
            g.I(f"ds_write_b32 v{R[2]}, v{R[0]} offset:{L_GU+256*half}")
            g.I(f"ds_write_b32 v{R[2]}, v{R[1]} offset:{L_GU+256*half+32}")
            g.I(f"s_mov_b64 exec, {sr(S_EX,2)}")
        g.I("s_waitcnt lgkmcnt(0)")

    def glu_part2():
        if cfg.noglu:
            return
        ta, tb = 62, 63
        R = TMP8
        g.I(f"v_lshrrev_b32 v{ta}, 3, v{V_LANE}")
        g.I(f"v_lshlrev_b32 v{ta}, 5, v{ta}")
        g.I(f"ds_read_b128 {vr(V_GT,4)}, v{ta} offset:{L_GU}")
        g.I(f"ds_read_b128 {vr(V_GT+4,4)}, v{ta} offset:{L_GU+16}")
        g.I(f"ds_read_b128 {vr(26,4)}, v{ta} offset:{L_GU+256}")
        g.I(f"ds_read_b64 {vr(30,2)}, v{ta} offset:{L_GU+272}")
        g.I(f"ds_read_b64 {vr(58,2)}, v{ta} offset:{L_GU+280}")
        g.I("s_waitcnt lgkmcnt(0)")
        for j in range(1, 8):
            g.I(f"v_add_f32 v{V_GT}, v{V_GT}, v{V_GT+j}")
            g.I(f"v_add_f32 v{R[0]}, v{R[0]}, v{R[j]}")
        ga, ua = V_GT, R[0]
        bf16_round2(g, ga, ua, tb)
        e = V_GT + 1
        g.I(f"v_mul_f32 v{e}, s{S_LOG2E}, v{ga}")
        g.I(f"v_sub_f32 v{e}, 0, v{e}")
        g.I(f"v_exp_f32 v{e}, v{e}")
        g.nop(1)
        g.I(f"v_add_f32 v{e}, 1.0, v{e}")
        g.I(f"v_rcp_f32 v{e+1}, v{e}")
        g.nop(1)
        g.I(f"v_fma_f32 v{e+2}, -v{e}, v{e+1}, 1.0")
        g.I(f"v_fma_f32 v{e+1}, v{e+2}, v{e+1}, v{e+1}")
        bf16_round1(g, e + 1, e + 1, tb)
        g.I(f"v_mul_f32 v{e+1}, v{e+1}, v{ua}")
        bf16_round1(g, e + 1, e + 1, tb)
        hh = e + 1
        g.wait_tag("dn")
        for j in range(4):
            g.I(f"v_lshlrev_b32 v{R[2*j]}, 16, v{V_DN+j}")
            g.I(f"v_and_b32 v{R[2*j+1]}, s{S_MASK}, v{V_DN+j}")
        for j in range(8):
            g.I(f"v_mul_f32 v{R[j]}, v{R[j]}, v{hh}")
        g.nop(2)
        for j in range(8):
            g.I(f"v_add_f32_dpp v{R[j]}, v{R[j]}, v{R[j]} row_ror:8 row_mask:0xf bank_mask:0xf")
        reduce_scatter_rows(g, R)
        g_addr(ta, tb)
        g.I(f"s_cmp_eq_u32 s{S_GVALID}, 0")
        g.I("s_cbranch_scc1 L_skip_glu")
        g.I(f"s_and_saveexec_b64 {sr(S_EX,2)}, vcc")
        g.I(f"buffer_store_dwordx2 {vr(R[0],2)}, v{tb}, {sr(R_WS,4)}, s{S_T0} offen sc0 sc1")
        g.I(f"s_mov_b64 exec, {sr(S_EX,2)}")
        g.lab("L_skip_glu")

    def glu_loads():
        if cfg.noglu:
            return
        ta = 62
        g.I(f"s_movk_i32 s{S_T1}, 3584")
        if cfg.glueff:
            g.I(f"v_lshrrev_b32 v{ta}, 3, v{V_TID}")
            g.I(f"v_mul_lo_u32 v{ta}, v{ta}, s{S_T1}")
            g.I(f"v_and_b32 v63, 7, v{V_LANE}")
            g.I(f"v_lshl_add_u32 v{ta}, v63, 4, v{ta}")
            g.I(f"s_and_b32 s{S_T0}, s{S_GJ}, 7")
            g.I(f"s_mul_i32 s{S_T0}, s{S_T0}, {64*3584}")
            g.I(f"s_lshr_b32 s{S_T1}, s{S_GJ}, 3")
            g.I(f"s_lshl_b32 s{S_T1}, s{S_T1}, 7")
            g.I(f"s_add_u32 s{S_T1}, s{S_T1}, s{S_T0}")
        else:
            g.I(f"v_mul_lo_u32 v{ta}, v{V_TID}, s{S_T1}")
            g.I(f"s_lshl_b32 s{S_T1}, s{S_GJ}, 4")
        g.vm(f"buffer_load_dwordx4 {vr(V_GT,4)}, v{ta}, {sr(R_GT,4)}, s{S_T1} offen{GNT}", "gu")
        g.vm(f"buffer_load_dwordx4 {vr(V_UP,4)}, v{ta}, {sr(R_UP,4)}, s{S_T1} offen{GNT}", "gu")
        g.I(f"v_lshrrev_b32 v63, 3, v{V_LANE}")
        g.I(f"v_lshlrev_b32 v63, 10, v63")
        g.I(f"v_and_b32 v59, 7, v{V_LANE}")
        g.I(f"v_lshl_add_u32 v63, v59, 4, v63")
        g.I(f"s_lshl_b32 s{S_T1}, s{S_GJ}, 13")
        g.I(f"s_lshl_b32 s{S_T0}, s{S_WAVE}, 7")
        g.I(f"s_add_u32 s{S_T1}, s{S_T1}, s{S_T0}")
        g.vm(f"buffer_load_dwordx4 {vr(V_DN,4)}, v63, {sr(R_DN,4)}, s{S_T1} offen{DNT}", "dn")

    def wo_perm():
        for k in range(8):
            for j in range(4):
                A, B = V_W + 8 * k + j, V_W + 8 * k + 4 + j
                tt = V_T + (j % 2)
                g.I(f"v_perm_b32 v{tt}, v{B}, v{A}, s{S_PLO}")
                g.I(f"v_perm_b32 v{B}, v{B}, v{A}, s{S_PHI}")
                g.I(f"v_mov_b32 v{A}, v{tt}")

    def wo_loads(k):
        if cfg.nowo:
            return
        g.I(f"s_add_u32 s{S_T2}, s{S_SPLIT}, {k}")
        g.I(f"s_and_b32 s{S_T2}, s{S_T2}, 7")
        g.I(f"s_lshl_b32 s{S_T2}, s{S_T2}, 14")
        g.vm(f"buffer_load_dwordx4 {vr(V_W+8*k,4)}, v{V_WOA}, {sr(R_WO,4)}, s{S_T2} offen{WONT}", "wo")
        g.vm(f"buffer_load_dwordx4 {vr(V_W+8*k+4,4)}, v{V_WOA}, {sr(R_WO,4)}, s{S_T2} offen offset:1024{WONT}", "wo")

    def y_addr(dst, tmp):
        g.I(f"v_lshrrev_b32 v{dst}, 3, v{V_LANE}")
        g.I(f"v_lshlrev_b32 v{dst}, 15, v{dst}")
        g.I(f"v_and_b32 v{tmp}, 7, v{V_LANE}")
        g.I(f"v_lshl_add_u32 v{dst}, v{tmp}, 4, v{dst}")

    def g_addr(ta, tb):
        g.I(f"v_and_b32 v{ta}, 7, v{V_LANE}")
        g.I(f"v_lshrrev_b32 v{tb}, 2, v{ta}")
        g.I(f"v_lshlrev_b32 v{tb}, 15, v{tb}")
        g.I(f"v_and_b32 v{ta}, 3, v{ta}")
        g.I(f"v_lshl_add_u32 v{tb}, v{ta}, 5, v{tb}")
        g.I(f"v_and_b32 v{ta}, 1, v{V_G}")
        g.I(f"v_lshl_add_u32 v{tb}, v{ta}, 3, v{tb}")
        g.I(f"v_lshrrev_b32 v{ta}, 1, v{V_G}")
        g.I(f"v_lshl_add_u32 v{tb}, v{ta}, 4, v{tb}")
        g.I(f"s_lshl_b32 s{S_T0}, s{S_WAVE}, 16")
        g.I(f"s_lshl_b32 s{S_T1}, s{S_GJ}, 7")
        g.I(f"s_add_u32 s{S_T0}, s{S_T0}, s{S_T1}")
        g.I(f"s_add_u32 s{S_T0}, s{S_T0}, {WS_G}")
        g.I(f"v_and_b32 v{ta}, 8, v{V_LANE}")
        g.I(f"v_cmp_eq_u32 vcc, 0, v{ta}")

    def clears():
        if cfg.noclr:
            return
        SN = 28
        for j in range(4):
            g.I(f"v_mov_b32 v{SN+j}, -1")
        g_addr(62, 63)
        g.I(f"s_cmp_eq_u32 s{S_GVALID}, 0")
        g.I("s_cbranch_scc1 L_skip_gclr")
        g.I(f"s_and_saveexec_b64 {sr(S_EX,2)}, vcc")
        g.I(f"buffer_store_dwordx2 {vr(SN,2)}, v63, {sr(R_WS,4)}, s{S_T0} offen sc0 sc1")
        g.I(f"s_mov_b64 exec, {sr(S_EX,2)}")
        g.lab("L_skip_gclr")
        g.I(f"s_cmp_lg_u32 s{S_WAVE}, 0")
        g.I("s_cbranch_scc1 L_skip_yclr")
        y_addr(62, 63)
        g.I(f"s_lshl_b32 s{S_T0}, s{S_P}, 7")
        g.I(f"s_add_u32 s{S_T1}, s{S_T0}, {8*32768}")
        g.I(f"buffer_store_dwordx4 {vr(SN,4)}, v62, {sr(R_WS,4)}, s{S_T0} offen sc0 sc1")
        g.I(f"buffer_store_dwordx4 {vr(SN,4)}, v62, {sr(R_WS,4)}, s{S_T1} offen sc0 sc1")
        g.I(f"s_lshl_b32 s{S_T1}, s{S_P}, 3")
        g.I(f"s_add_u32 s{S_T1}, s{S_T1}, {WS_ML}")
        g.I(f"v_mov_b32 v63, 0")
        g.I("s_mov_b64 exec, 1")
        g.I(f"buffer_store_dwordx2 {vr(SN,2)}, v63, {sr(R_WS,4)}, s{S_T1} offen sc0 sc1")
        g.I("s_mov_b64 exec, -1")
        g.lab("L_skip_yclr")

    for j in range(4):
        g.wait_tag(f"b{j}")
        compute_block(j)
        if j in cfg.pbar[0]:
            g.I("s_barrier")
        if j == cfg.clr_at:
            clears()
        issue_block(j, f"b{j}")
        for k in cfg.wo_sched.get(j, []):
            wo_loads(k)
        if j == cfg.glu_at:
            glu_loads()
    for j in range(4):
        g.wait_tag(f"b{j}")
        compute_block(j)
        if j == 2:
            glu_part1()
        if j in cfg.pbar[1] or j == 2 or j == cfg.clr_at:
            g.I("s_barrier")
        if j == cfg.clr_at and not cfg.noclr:
            g.I(f"s_cmp_lg_u32 s{S_WAVE}, 0")
            g.I("s_cbranch_scc1 L_skip_sig")
            g.I(f"v_mov_b32 v62, 1")
            g.I(f"v_mov_b32 v63, 0")
            g.I("s_mov_b64 exec, 1")
            g.I(f"buffer_atomic_add v62, v63, {sr(R_DBG,4)}, s{S_HOFF} offen")
            g.I("s_mov_b64 exec, -1")
            g.lab("L_skip_sig")
        issue_block(j, f"b{j}")
        for k in cfg.wo_sched.get(4 + j, []):
            wo_loads(k)
        if j == 3:
            glu_part2()
    for j in range(4):
        g.wait_tag(f"b{j}")
        compute_block(j)
        if j in cfg.pbar[2]:
            g.I("s_barrier")
        issue_block(j, f"b{j}")
    g.wait_tag("wo")
    wo_perm()
    g.I(f"s_mov_b32 s{S_CNT}, {4 if cfg.peell else 5}")
    g.lab("L_loop")
    if cfg.stamp:
        g.I(f"s_cmp_lg_u32 s{S_WAVE}, 0")
        g.I(f"s_cbranch_scc1 L_stl")
        g.I(f"s_memrealtime s[{S_TS}:{S_TS+1}]")
        g.I("s_waitcnt lgkmcnt(0)")
        g.I(f"v_mov_b32 v5, s{S_TS}")
        g.I(f"s_lshl_b32 s{S_TS}, s2, 6")
        g.I(f"s_lshl_b32 s{S_TS+1}, s{S_CNT}, 2")
        g.I(f"s_sub_u32 s{S_TS}, s{S_TS}, s{S_TS+1}")
        g.I(f"s_add_u32 s{S_TS}, s{S_TS}, {2*1024*1024 + 15*4}")
        g.I(f"v_mov_b32 v6, s{S_TS}")
        g.I(f"global_store_dword v6, v5, s[{S_WS}:{S_WS+1}]")
        g.lab("L_stl")
    for b in range(D):
        g.I(f"s_waitcnt vmcnt({8*(D-1)})")
        compute_block(b)
        if cfg.loopbar and (b % cfg.loopbar) == 0:
            g.I("s_barrier")
        issue_block(b, f"b{b}")
    g.I(f"s_sub_u32 s{S_CNT}, s{S_CNT}, 1")
    g.I(f"s_cmp_lg_u32 s{S_CNT}, 1")
    g.I("s_cbranch_scc1 L_nochk")
    g.I(f"v_lshlrev_b32 v62, 2, v{V_LANE}")
    g.I(f"v_and_b32 v62, 0x7f, v62")
    g.I(f"buffer_load_dword v63, v62, {sr(R_DBG,4)}, 0 offen sc0 sc1")
    g.lab("L_nochk")
    g.I(f"s_cmp_lg_u32 s{S_CNT}, 0")
    g.I("s_cbranch_scc1 L_loop")
    if cfg.peell:
        for b in range(D):
            g.I(f"s_waitcnt vmcnt({8*(D-1-b)})")
            compute_block(b)
    g.wait_all()
    stamp(g, cfg, 2)
    if cfg.notail:
        g.I("s_branch L_end")
    t = V_T
    mw = t
    g.I(f"v_mov_b32 v{mw}, v{V_M}")
    cross_row_allreduce(g, "max_f32", mw, t + 1)
    g.I(f"v_sub_f32 v{t+2}, v{V_M}, v{mw}")
    g.I(f"v_mul_f32 v{t+2}, s{S_LOG2E}, v{t+2}")
    g.I(f"v_exp_f32 v{t+2}, v{t+2}")
    g.nop(1)
    g.I(f"v_mul_f32 v{V_L}, v{V_L}, v{t+2}")
    for j in range(8):
        g.I(f"v_mul_f32 v{V_ACC+j}, v{V_ACC+j}, v{t+2}")
    cross_row_allreduce(g, "add_f32", V_L, t + 1)
    reduce_scatter_rows(g, [V_ACC + j for j in range(8)])
    g.I(f"s_lshl_b32 s{S_T0}, s{S_WAVE}, 9")
    g.I(f"v_add_u32 v{t+3}, s{S_T0}, v{V_QOFF}")
    g.I(f"ds_write_b64 v{t+3}, {vr(V_ACC,2)} offset:{L_OP}")
    g.I(f"v_mov_b32 v{t+1}, v{V_L}")
    g.I(f"s_lshl_b32 s{S_T0}, s{S_WAVE}, 3")
    g.I(f"v_mov_b32 v{t+3}, s{S_T0}")
    g.I(f"ds_write_b64 v{t+3}, {vr(t,2)} offset:{L_ML}")
    g.I(f"v_mov_b32 v{t+3}, 0")
    g.I(f"v_add_u32 v{t+4}, s{S_SPLIT}, v{V_LANE}")
    g.I(f"v_and_b32 v{t+4}, 7, v{t+4}")
    g.I(f"v_lshlrev_b32 v{t+4}, 6, v{t+4}")
    g.I(f"s_lshl_b32 s{S_T0}, s{S_WAVE}, 3")
    g.I(f"v_add_u32 v{t+4}, s{S_T0}, v{t+4}")
    g.I("s_waitcnt lgkmcnt(0)")
    g.I("s_barrier")
    ML = 24
    for k in range(4):
        g.I(f"ds_read_b128 {vr(ML+4*k,4)}, v{t+3} offset:{L_ML+16*k}")
    OPR = V_RING
    for w in range(8):
        g.I(f"ds_read_b64 {vr(OPR+2*w,2)}, v{t+4} offset:{L_OP+512*w}")
    g.I("s_waitcnt lgkmcnt(8)")
    M = t
    g.I(f"v_max3_f32 v{M}, v{ML}, v{ML+2}, v{ML+4}")
    g.I(f"v_max3_f32 v{M}, v{M}, v{ML+6}, v{ML+8}")
    g.I(f"v_max3_f32 v{M}, v{M}, v{ML+10}, v{ML+12}")
    g.I(f"v_max_f32 v{M}, v{M}, v{ML+14}")
    for w in range(8):
        g.I(f"v_sub_f32 v{ML+2*w}, v{ML+2*w}, v{M}")
    for w in range(8):
        g.I(f"v_mul_f32 v{ML+2*w}, s{S_LOG2E}, v{ML+2*w}")
    for w in range(8):
        g.I(f"v_exp_f32 v{ML+2*w}, v{ML+2*w}")
    oa, ob = t + 5, t + 6
    g.I("s_waitcnt lgkmcnt(0)")
    g.I(f"v_mul_f32 v{oa}, v{ML}, v{OPR}")
    g.I(f"v_mul_f32 v{ob}, v{ML}, v{OPR+1}")
    for w in range(1, 8):
        g.I(f"v_fmac_f32 v{oa}, v{ML+2*w}, v{OPR+2*w}")
        g.I(f"v_fmac_f32 v{ob}, v{ML+2*w}, v{OPR+2*w+1}")
    g.I(f"v_cvt_pk_bf16_f32 v{oa}, v{oa}, v{ob}")
    so = list(range(4, 12))
    Lr = t + 1
    g.I(f"v_mul_f32 v{Lr}, v{ML}, v{ML+1}")
    for k in range(8):
        g.I(f"v_readlane_b32 s{so[k]}, v{oa}, {k}")
    for w in range(1, 8):
        g.I(f"v_fmac_f32 v{Lr}, v{ML+2*w}, v{ML+2*w+1}")
    YA = V_ACC
    for k in range(8):
        for j in range(4):
            A, B = V_W + 8 * k + j, V_W + 8 * k + 4 + j
            c0 = "0" if k == 0 else f"v{YA+2*j}"
            c1 = "0" if k == 0 else f"v{YA+2*j+1}"
            g.I(f"v_dot2_f32_bf16 v{YA+2*j}, v{A}, s{so[k]}, {c0}")
            g.I(f"v_dot2_f32_bf16 v{YA+2*j+1}, v{B}, s{so[k]}, {c1}")
    g.I(f"v_lshlrev_b32 v{t+3}, 5, v{V_LANE}")
    g.I(f"s_lshl_b32 s{S_T0}, s{S_WAVE}, 11")
    g.I(f"v_add_u32 v{t+4}, s{S_T0}, v{t+3}")
    g.nop(1)
    g.I(f"ds_write_b128 v{t+4}, {vr(YA,4)} offset:{L_YP}")
    g.I(f"ds_write_b128 v{t+4}, {vr(YA+4,4)} offset:{L_YP+16}")
    g.I("s_waitcnt lgkmcnt(0)")
    g.I("s_barrier")
    if cfg.parc:
        g.I(f"v_lshlrev_b32 v{t+3}, 11, v{V_G}")
        g.I(f"v_lshl_add_u32 v{t+3}, v{V_Cc}, 4, v{t+3}")
        g.I(f"s_lshl_b32 s{S_T0}, s{S_WAVE}, 8")
        g.I(f"v_add_u32 v{t+3}, s{S_T0}, v{t+3}")
        g.I(f"ds_read_b128 {vr(V_RING,4)}, v{t+3} offset:{L_YP}")
        g.I(f"ds_read_b128 {vr(V_RING+4,4)}, v{t+3} offset:{L_YP+8192}")
        g.I(f"v_lshrrev_b32 v{t+4}, 3, v{V_Cc}")
        g.I(f"v_lshlrev_b32 v{t+4}, 15, v{t+4}")
        g.I(f"v_and_b32 v{t+5}, 7, v{V_Cc}")
        g.I(f"v_lshl_add_u32 v{t+4}, v{t+5}, 4, v{t+4}")
        g.I(f"v_lshl_add_u32 v{t+4}, v{V_G}, 2, v{t+4}")
        g.I(f"s_lshl_b32 s{S_T0}, s{S_WAVE}, 16")
        g.I(f"s_lshl_b32 s{S_T1}, s{S_P}, 7")
        g.I(f"s_add_u32 s{S_T0}, s{S_T0}, s{S_T1}")
        g.I(f"s_lshl_b32 s{S_T1}, s{S_P}, 3")
        g.I(f"s_add_u32 s{S_T1}, s{S_T1}, {WS_ML}")
        g.I(f"v_mov_b32 v{t+5}, 0")
        g.I("s_waitcnt lgkmcnt(0)")
        for j in range(4):
            g.I(f"v_add_f32 v{V_RING+j}, v{V_RING+j}, v{V_RING+4+j}")
        reduce_scatter_rows(g, [V_RING + j for j in range(4)])
        g.I(f"buffer_store_dword v{V_RING}, v{t+4}, {sr(R_WS,4)}, s{S_T0} offen sc0 sc1")
        g.I(f"s_cmp_lg_u32 s{S_WAVE}, 0")
        g.I("s_cbranch_scc1 L_after_pub")
        g.I("s_mov_b64 exec, 1")
        g.I(f"buffer_store_dwordx2 {vr(t,2)}, v{t+5}, {sr(R_WS,4)}, s{S_T1} offen sc0 sc1")
        g.I("s_mov_b64 exec, -1")
    else:
        g.I(f"s_cmp_lg_u32 s{S_WAVE}, 0")
        g.I("s_cbranch_scc1 L_after_pub")
        g.I(f"v_lshlrev_b32 v{t+3}, 4, v{V_LANE}")
        for w in range(8):
            g.I(f"ds_read_b128 {vr(V_RING+8*w,4)}, v{t+3} offset:{L_YP+2048*w}")
            g.I(f"ds_read_b128 {vr(V_RING+8*w+4,4)}, v{t+3} offset:{L_YP+2048*w+1024}")
        y_addr(t + 3, t + 4)
        g.I(f"s_lshl_b32 s{S_T0}, s{S_P}, 7")
        g.I(f"s_add_u32 s{S_T2}, s{S_T0}, {8*32768}")
        g.I(f"s_lshl_b32 s{S_T1}, s{S_P}, 3")
        g.I(f"s_add_u32 s{S_T1}, s{S_T1}, {WS_ML}")
        g.I(f"v_mov_b32 v{t+4}, 0")
        g.I(f"v_cmp_eq_u32 vcc, 0, v{V_LANE}")
        g.I("s_waitcnt lgkmcnt(0)")
        for step in (1, 2, 4):
            for w in range(0, 8, 2 * step):
                for j in range(8):
                    g.I(f"v_add_f32 v{V_RING+8*w+j}, v{V_RING+8*w+j}, v{V_RING+8*(w+step)+j}")
        g.I(f"buffer_store_dwordx4 {vr(V_RING,4)}, v{t+3}, {sr(R_WS,4)}, s{S_T0} offen sc0 sc1")
        g.I(f"buffer_store_dwordx4 {vr(V_RING+4,4)}, v{t+3}, {sr(R_WS,4)}, s{S_T2} offen sc0 sc1")
        g.I(f"s_and_saveexec_b64 {sr(S_EX,2)}, vcc")
        g.I(f"buffer_store_dwordx2 {vr(t,2)}, v{t+4}, {sr(R_WS,4)}, s{S_T1} offen sc0 sc1")
        g.I(f"s_mov_b64 exec, {sr(S_EX,2)}")
    g.lab("L_after_pub")
    stamp(g, cfg, 3)

    def finisher(fid_sreg):
        t = V_T
        a0 = t
        g.I(f"v_lshlrev_b32 v62, 2, v{V_LANE}")
        g.I(f"v_and_b32 v62, 0x7f, v62")
        g.I(f"s_mov_b32 s{S_CNT}, 0x40000")
        g.lab("L_cpoll")
        g.I(f"v_cmp_gt_u32 vcc, 8, v63")
        g.I("s_cbranch_vccz L_cdone")
        g.I(f"s_sub_u32 s{S_CNT}, s{S_CNT}, 1")
        g.I(f"s_cmp_eq_u32 s{S_CNT}, 0")
        g.I("s_cbranch_scc1 L_cdone")
        g.I(f"buffer_load_dword v63, v62, {sr(R_DBG,4)}, 0 offen sc0 sc1")
        g.I("s_waitcnt vmcnt(0)")
        g.I("s_branch L_cpoll")
        g.lab("L_cdone")
        stamp(g, cfg, 4)
        g.I(f"v_lshrrev_b32 v{a0}, 2, v{V_TID}")
        g.I(f"v_lshlrev_b32 v{a0}, 7, v{a0}")
        g.I(f"v_and_b32 v{a0+1}, 3, v{V_TID}")
        g.I(f"v_lshl_add_u32 v{a0}, v{a0+1}, 4, v{a0}")
        g.I(f"s_lshr_b32 s{S_T0}, s{fid_sreg}, 1")
        g.I(f"s_lshl_b32 s{S_T0}, s{S_T0}, 15")
        g.I(f"s_and_b32 s{S_T1}, s{fid_sreg}, 1")
        g.I(f"s_lshl_b32 s{S_T1}, s{S_T1}, 6")
        g.I(f"s_add_u32 s{S_T0}, s{S_T0}, s{S_T1}")
        g.I(f"s_add_u32 s{S_T1}, s{S_T0}, 16384")
        g.I(f"s_add_u32 s{S_T2}, s{S_T0}, {WS_G}")
        g.I(f"s_add_u32 s{S_OFF}, s{S_T1}, {WS_G}")
        g.I(f"s_mov_b32 s{S_GJ}, {WS_ML}")
        Y1, Y2, G1, G2 = V_RING, V_RING + 4, V_RING + 8, V_RING + 12
        MLv = V_RING + 16
        g.I(f"v_and_b32 v{a0+1}, 15, v{V_LANE}")
        g.I(f"v_bfe_u32 v{a0+2}, v{V_LANE}, 4, 1")
        g.I(f"v_lshl_add_u32 v{a0+1}, v{a0+2}, 7, v{a0+1}")
        g.I(f"s_lshl_b32 s{S_RB}, s{S_WAVE}, 4")
        g.I(f"v_add_u32 v{a0+1}, s{S_RB}, v{a0+1}")
        g.I(f"v_lshlrev_b32 v{a0+1}, 3, v{a0+1}")
        g.I(f"v_and_b32 v{a0+5}, 15, v{V_TID}")
        g.I(f"v_lshlrev_b32 v{a0+5}, 1, v{a0+5}")
        g.I(f"s_lshl_b32 s{S_RB}, s{fid_sreg}, 5")
        g.I(f"buffer_load_ushort v{a0+6}, v{a0+5}, {sr(R_X,4)}, s{S_RB} offen")
        g.I(f"v_cmp_gt_u32 vcc, {96*4}, v{V_TID}")
        g.I(f"s_mov_b64 s[92:93], vcc")
        for j in range(4):
            g.I(f"v_mov_b32 v{G2+j}, 0")
        if cfg.stage1:
            g.I(f"s_mov_b32 s{S_CNT}, 0x40000")
            g.lab("L_mpoll")
            g.I(f"buffer_load_dwordx2 {vr(MLv,2)}, v{a0+1}, {sr(R_WS,4)}, s{S_GJ} offen sc0 sc1")
            g.I("s_waitcnt vmcnt(0)")
            g.I(f"v_max_u32 v{a0+8}, v{MLv}, v{MLv+1}")
            g.I(f"v_cmp_eq_u32 vcc, -1, v{a0+8}")
            g.I(f"s_bcnt1_i32_b64 s{S_RB}, vcc")
            g.I(f"s_cmp_lt_u32 s{S_RB}, {2*cfg.stage1}")
            g.I("s_cbranch_scc1 L_mdone")
            g.I(f"s_sub_u32 s{S_CNT}, s{S_CNT}, 1")
            g.I(f"s_cmp_lg_u32 s{S_CNT}, 0")
            g.I("s_cbranch_scc1 L_mpoll")
            g.lab("L_mdone")
        g.I(f"s_mov_b32 s{S_CNT}, 0x40000")
        g.lab("L_dpoll")
        g.I(f"buffer_load_dwordx2 {vr(MLv,2)}, v{a0+1}, {sr(R_WS,4)}, s{S_GJ} offen sc0 sc1")
        g.I(f"buffer_load_dwordx4 {vr(Y1,4)}, v{a0}, {sr(R_WS,4)}, s{S_T0} offen sc0 sc1")
        g.I(f"buffer_load_dwordx4 {vr(Y2,4)}, v{a0}, {sr(R_WS,4)}, s{S_T1} offen sc0 sc1")
        g.I(f"buffer_load_dwordx4 {vr(G1,4)}, v{a0}, {sr(R_WS,4)}, s{S_T2} offen sc0 sc1")
        g.I(f"s_and_b64 s[94:95], s[92:93], exec")
        g.I(f"s_cbranch_scc0 L_nog2")
        g.I(f"s_mov_b64 exec, s[92:93]")
        g.I(f"buffer_load_dwordx4 {vr(G2,4)}, v{a0}, {sr(R_WS,4)}, s{S_OFF} offen sc0 sc1")
        g.I(f"s_mov_b64 exec, -1")
        g.lab("L_nog2")
        g.I("s_waitcnt vmcnt(0)")
        mx = a0 + 8
        g.I(f"v_max3_u32 v{mx}, v{Y1}, v{Y1+1}, v{Y1+2}")
        g.I(f"v_max3_u32 v{mx+1}, v{Y1+3}, v{Y2}, v{Y2+1}")
        g.I(f"v_max3_u32 v{mx}, v{mx}, v{Y2+2}, v{Y2+3}")
        g.I(f"v_max3_u32 v{mx+1}, v{mx+1}, v{G1}, v{G1+1}")
        g.I(f"v_max3_u32 v{mx}, v{mx}, v{G1+2}, v{G1+3}")
        g.I(f"v_max3_u32 v{mx+1}, v{mx+1}, v{G2}, v{G2+1}")
        g.I(f"v_max3_u32 v{mx}, v{mx}, v{G2+2}, v{G2+3}")
        g.I(f"v_max3_u32 v{mx+1}, v{mx+1}, v{MLv}, v{MLv+1}")
        g.I(f"v_max_u32 v{mx}, v{mx}, v{mx+1}")
        g.I(f"v_cmp_eq_u32 vcc, -1, v{mx}")
        g.I("s_cbranch_vccz L_ddone")
        if cfg.psleep:
            g.I(f"s_sleep {cfg.psleep}")
        g.I(f"s_sub_u32 s{S_CNT}, s{S_CNT}, 1")
        g.I(f"s_cmp_lg_u32 s{S_CNT}, 0")
        g.I("s_cbranch_scc1 L_dpoll")
        g.lab("L_ddone")
        stamp(g, cfg, 9)
        M, W, Ls = a0 + 8, a0 + 9, a0 + 10
        g.I(f"v_mov_b32 v{M}, v{MLv}")
        g.nop(1)
        for dpp in ("quad_perm:[1,0,3,2]", "quad_perm:[2,3,0,1]", "row_half_mirror"):
            g.I(f"v_max_f32_dpp v{M}, v{M}, v{M} {dpp} row_mask:0xf bank_mask:0xf")
            g.nop(2)
        g.I(f"v_sub_f32 v{W}, v{MLv}, v{M}")
        g.I(f"v_mul_f32 v{W}, s{S_LOG2E}, v{W}")
        g.I(f"v_exp_f32 v{W}, v{W}")
        g.nop(1)
        g.I(f"v_mul_f32 v{Ls}, v{W}, v{MLv+1}")
        g.nop(2)
        for dpp in ("quad_perm:[1,0,3,2]", "quad_perm:[2,3,0,1]", "row_half_mirror"):
            g.I(f"v_add_f32_dpp v{Ls}, v{Ls}, v{Ls} {dpp} row_mask:0xf bank_mask:0xf")
            g.nop(2)
        c = a0 + 11
        g.I(f"v_rcp_f32 v{c}, v{Ls}")
        g.nop(1)
        g.I(f"v_fma_f32 v{M}, -v{Ls}, v{c}, 1.0")
        g.I(f"v_fma_f32 v{c}, v{M}, v{c}, v{c}")
        g.I(f"v_mul_f32 v{c}, v{c}, v{W}")
        g.I(f"v_and_b32 v{a0+1}, 0x3c, v{V_LANE}")
        g.I(f"v_add_u32 v{a0+2}, 64, v{a0+1}")
        c1, c2 = a0 + 8, a0 + 9
        g.I(f"ds_bpermute_b32 v{c1}, v{a0+1}, v{c}")
        g.I(f"ds_bpermute_b32 v{c2}, v{a0+2}, v{c}")
        for j in range(4):
            g.I(f"v_add_f32 v{G1+j}, v{G1+j}, v{G2+j}")
        g.I("s_waitcnt lgkmcnt(0)")
        for j in range(4):
            g.I(f"v_mul_f32 v{Y1+j}, v{c1}, v{Y1+j}")
        for j in range(4):
            g.I(f"v_fmac_f32 v{Y1+j}, v{c2}, v{Y2+j}")
        R8 = [Y1 + j for j in range(4)] + [G1 + j for j in range(4)]
        g.nop(2)
        for r in (4, 8):
            for x in R8:
                g.I(f"v_add_f32_dpp v{x}, v{x}, v{x} row_ror:{r} row_mask:0xf bank_mask:0xf")
        reduce_scatter_rows(g, R8)
        g.I(f"v_and_b32 v{a0}, 3, v{V_LANE}")
        g.I(f"v_lshlrev_b32 v{a0}, 4, v{a0}")
        g.I(f"v_and_b32 v{a0+1}, 1, v{V_G}")
        g.I(f"v_lshl_add_u32 v{a0}, v{a0+1}, 3, v{a0}")
        g.I(f"v_lshrrev_b32 v{a0+1}, 1, v{V_G}")
        g.I(f"v_lshl_add_u32 v{a0}, v{a0+1}, 6, v{a0}")
        g.I(f"s_lshl_b32 s{S_T0}, s{S_WAVE}, 7")
        g.I(f"v_add_u32 v{a0}, s{S_T0}, v{a0}")
        g.I(f"ds_write_b64 v{a0}, {vr(R8[0],2)} offset:{L_FIN}")
        g.I("s_waitcnt lgkmcnt(0)")
        g.I("s_barrier")
        g.I(f"s_cmp_lg_u32 s{S_WAVE}, 0")
        g.I("s_cbranch_scc1 L_end2")
        g.I(f"v_and_b32 v{a0}, 15, v{V_LANE}")
        g.I(f"v_lshlrev_b32 v{a0}, 2, v{a0}")
        for w in range(8):
            g.I(f"ds_read_b32 v{V_RING+16+w}, v{a0} offset:{L_FIN+128*w}")
            g.I(f"ds_read_b32 v{V_RING+24+w}, v{a0} offset:{L_FIN+128*w+64}")
        g.I("s_waitcnt lgkmcnt(0)")
        for step in (1, 2, 4):
            for w in range(0, 8, 2 * step):
                g.I(f"v_add_f32 v{V_RING+16+w}, v{V_RING+16+w}, v{V_RING+16+w+step}")
                g.I(f"v_add_f32 v{V_RING+24+w}, v{V_RING+24+w}, v{V_RING+24+w+step}")
        bf16_round2(g, V_RING + 16, V_RING + 24, a0 + 1)
        g.I(f"v_lshlrev_b32 v{a0+6}, 16, v{a0+6}")
        g.I(f"v_add_f32 v{a0+6}, v{a0+6}, v{V_RING+16}")
        bf16_round1(g, a0 + 6, a0 + 6, a0 + 1)
        g.I(f"v_add_f32 v{a0+6}, v{a0+6}, v{V_RING+24}")
        g.I(f"v_cvt_pk_bf16_f32 v{a0+6}, v{a0+6}, v{a0+6}")
        g.I(f"v_cmp_gt_u32 vcc, 16, v{V_LANE}")
        g.I(f"s_and_saveexec_b64 {sr(S_EX,2)}, vcc")
        g.I(f"s_lshl_b32 s{S_T2}, s{fid_sreg}, 5")
        g.I(f"buffer_store_short v{a0+6}, v{a0+5}, {sr(R_OUT,4)}, s{S_T2} offen")
        stamp(g, cfg, 5)
        g.lab("L_end2")

    g.I("s_cmp_ge_u32 s2, 32")
    g.I("s_cbranch_scc1 L_end")
    finisher(2)
    g.lab("L_end")
    g.I("s_endpgm")

    g.L.append('.section .rodata,"a"')
    g.L.append(".p2align 6")
    g.L.append(f".amdhsa_kernel {kmain}")
    g.L.append("  .amdhsa_next_free_vgpr 256")
    g.L.append("  .amdhsa_next_free_sgpr 102")
    g.L.append("  .amdhsa_accum_offset 256")
    g.L.append("  .amdhsa_group_segment_fixed_size 0")
    g.L.append("  .amdhsa_kernarg_size 96")
    g.L.append("  .amdhsa_user_sgpr_count 2")
    g.L.append("  .amdhsa_user_sgpr_kernarg_segment_ptr 1")
    g.L.append("  .amdhsa_system_sgpr_workgroup_id_x 1")
    g.L.append(".end_amdhsa_kernel")
    return g.text()


if __name__ == "__main__":
    ap = argparse.ArgumentParser()
    ap.add_argument("--nt", type=int, default=1)
    ap.add_argument("--stamp", type=int, default=0)
    ap.add_argument("--loopbar", type=int, default=4)
    ap.add_argument("--lnwave", type=int, default=0)
    ap.add_argument("--pbars", type=str, default="[[0,1,2,3],[0,1,2,3],[0,1,2,3]]")
    ap.add_argument("--peell", type=int, default=1)
    ap.add_argument("--early0", type=int, default=0)
    ap.add_argument("--clr_at", type=int, default=0)
    ap.add_argument("--psleep", type=int, default=0)
    ap.add_argument("--stage1", type=int, default=3)
    ap.add_argument("--parc", type=int, default=1)
    ap.add_argument("--noclr", type=int, default=0)
    ap.add_argument("--noln", type=int, default=0)
    ap.add_argument("--touch", type=int, default=0)
    ap.add_argument("--wq1", type=int, default=0)
    ap.add_argument("--glueff", type=int, default=0)
    ap.add_argument("--wnt", type=int, default=9)
    ap.add_argument("--hmap", type=int, default=1)
    ap.add_argument("--nocompute", type=int, default=0)
    ap.add_argument("--notail", type=int, default=0)
    ap.add_argument("--nowo", type=int, default=0)
    ap.add_argument("--noglu", type=int, default=0)
    ap.add_argument("--nowq", type=int, default=0)
    ap.add_argument("--wosched", type=str, default="{0:[0],3:[1,2],4:[3,4],5:[5,6],6:[7]}")
    ap.add_argument("--glu_at", type=int, default=1)
    ap.add_argument("--issue", type=str, default="1,2,3,5")
    ap.add_argument("-o", default="parallel_sum__mha_block_cached__glu_gated_glu__decode.s")
    cfg = ap.parse_args()
    cfg.issue_at = [int(x) for x in cfg.issue.split(",")]
    cfg.wo_sched = eval(cfg.wosched)
    cfg.pbar = eval(cfg.pbars)
    assert len(cfg.issue_at) == 4
    open(cfg.o, "w").write(gen(cfg))
    print("wrote", cfg.o)
```

```python
import sys, argparse
from gen import G, vr, sr, HEADER, KNAME

S_X, S_K, S_V, S_WQ, S_WO, S_BX, S_GT, S_UP = 4, 6, 8, 10, 12, 14, 16, 18
S_DN, S_OUT, S_DBG, S_WS = 20, 22, 24, 26
R_K, R_V, R_WQ, R_WO, R_GT, R_UP, R_DN, R_X, R_WS, R_OUT, R_DBG = 28, 32, 36, 40, 44, 48, 52, 56, 60, 64, 68
S_H, S_SPLIT, S_WAVE, S_OFF, S_CNT = 72, 73, 74, 75, 76
S_SCALE, S_LOG2E, S_MASK, S_P, S_GJ, S_T0, S_T1, S_T2, S_GVALID = 78, 79, 80, 81, 82, 83, 84, 85, 86
S_PLO, S_PHI = 87, 88
S_HOFF = 90
S_RB = 91
S_EX = 96
S_TS = 98

L_XN = 0
L_QP = 1024
L_GU = 5120
L_OP = 5632
L_ML = 9728
L_YP = 10240
L_FIN = 26624
LDS_BYTES = 27648

WS_Y = 0
WS_G = 512 * 1024
WS_ML = 1024 * 1024
WS_BYTES = 1024 * 1024 + 2048 + 4096


def srd(g, r, base_lo, base_hi, nbytes):
    g.I(f"s_mov_b32 s{r}, s{base_lo}")
    g.I(f"s_and_b32 s{r+1}, s{base_hi}, 0xffff")
    g.I(f"s_mov_b32 s{r+2}, {nbytes:#x}")
    g.I(f"s_mov_b32 s{r+3}, 0x00020000")


def srd_off(g, r, base_lo, base_hi, off_sreg, nbytes):
    g.I(f"s_add_u32 s{r}, s{base_lo}, s{off_sreg}")
    g.I(f"s_addc_u32 s{r+1}, s{base_hi}, 0")
    g.I(f"s_and_b32 s{r+1}, s{r+1}, 0xffff")
    g.I(f"s_mov_b32 s{r+2}, {nbytes:#x}")
    g.I(f"s_mov_b32 s{r+3}, 0x00020000")


def bf16_round1(g, dst, src, tmp):
    g.I(f"v_cvt_pk_bf16_f32 v{tmp}, v{src}, v{src}")
    g.I(f"v_lshlrev_b32 v{dst}, 16, v{tmp}")


def bf16_round2(g, a, b, tmp):
    g.I(f"v_cvt_pk_bf16_f32 v{tmp}, v{a}, v{b}")
    g.I(f"v_lshlrev_b32 v{a}, 16, v{tmp}")
    g.I(f"v_and_b32 v{b}, s{S_MASK}, v{tmp}")


def row_allreduce(g, op, regs):
    n = len(regs)
    for r in (8, 4, 2, 1):
        for x in regs:
            g.I(f"v_{op}_dpp v{x}, v{x}, v{x} row_ror:{r} row_mask:0xf bank_mask:0xf")
        if n < 3:
            g.nop(3 - n)


def cross_row_allreduce(g, op, x, t):
    g.I(f"v_mov_b32 v{t}, v{x}")
    g.nop(2)
    g.I(f"v_permlane16_swap_b32 v{x}, v{t}")
    g.nop(1)
    g.I(f"v_{op} v{x}, v{x}, v{t}")
    g.I(f"v_mov_b32 v{t}, v{x}")
    g.nop(2)
    g.I(f"v_permlane32_swap_b32 v{x}, v{t}")
    g.nop(1)
    g.I(f"v_{op} v{x}, v{x}, v{t}")


def wave_allreduce(g, op, x, t):
    row_allreduce(g, op, [x])
    cross_row_allreduce(g, op, x, t)


def reduce_scatter_rows(g, regs):
    n = len(regs)
    h = n // 2
    g.nop(2)
    for k in range(h):
        g.I(f"v_permlane32_swap_b32 v{regs[k]}, v{regs[k+h]}")
    g.nop(1)
    for k in range(h):
        g.I(f"v_add_f32 v{regs[k]}, v{regs[k]}, v{regs[k+h]}")
    qn = h // 2
    g.nop(2)
    for k in range(qn):
        g.I(f"v_permlane16_swap_b32 v{regs[k]}, v{regs[k+qn]}")
    g.nop(1)
    for k in range(qn):
        g.I(f"v_add_f32 v{regs[k]}, v{regs[k]}, v{regs[k+qn]}")


def stamp(g, cfg, idx, wave=0):
    if not cfg.stamp:
        return
    lab = f"L_st{idx}"
    g.I(f"s_cmp_lg_u32 s{S_WAVE}, {wave}")
    g.I(f"s_cbranch_scc1 {lab}")
    g.I(f"s_memrealtime s[{S_TS}:{S_TS+1}]")
    g.I("s_waitcnt lgkmcnt(0)")
    g.I(f"v_mov_b32 v5, s{S_TS}")
    g.I(f"s_lshl_b32 s{S_TS}, s2, 6")
    g.I(f"s_add_u32 s{S_TS}, s{S_TS}, {2*1024*1024 + idx*4}")
    g.I(f"v_mov_b32 v6, s{S_TS}")
    g.I(f"global_store_dword v6, v5, s[{S_WS}:{S_WS+1}]")
    g.lab(lab)


def gen(cfg):
    D = 4
    NT = " nt" if cfg.nt else ""
    WQNT = " nt" if cfg.wnt & 1 else ""
    WONT = " nt" if cfg.wnt & 2 else ""
    GNT = " nt" if cfg.wnt & 4 else ""
    DNT = " nt" if cfg.wnt & 8 else ""
    g = G()
    V_TID, V_LANE, V_KVOFF, V_G, V_Cc, V_WOA = 0, 1, 2, 3, 4, 7
    V_Q = 8
    V_ACC = 12
    V_M, V_L = 20, 21
    V_S = 22
    V_PP = 32
    V_T = 40
    V_GT, V_UP, V_DN = 46, 50, 54
    V_XROW = 60
    V_QOFF = 61
    TMP8 = [26, 27, 28, 29, 30, 31, 58, 59]
    V_W = 64
    V_RING = 128
    LNW = cfg.lnwave

    g.L.append(HEADER.rstrip("\n"))
    g.L.append(f"; @launch grid=(256,1,1) block=(512,1,1) lds={LDS_BYTES}")
    kmain = KNAME
    g.L.append('.amdgcn_target "amdgcn-amd-amdhsa--gfx950"')
    g.L.append(".text")
    g.L.append(f".globl {kmain}")
    g.L.append(".p2align 8")
    g.L.append(f".type {kmain},@function")
    g.lab(kmain)
    g.I("s_cmp_ge_u32 s2, 256")
    g.I("s_cbranch_scc1 L_end")
    g.I("s_load_dwordx16 s[4:19], s[0:1], 0")
    g.I("s_load_dwordx8 s[20:27], s[0:1], 64")
    g.I(f"v_and_b32 v{V_LANE}, 63, v{V_TID}")
    g.I(f"v_lshrrev_b32 v{V_T}, 6, v{V_TID}")
    g.I(f"v_lshrrev_b32 v{V_G}, 4, v{V_LANE}")
    g.I(f"v_readfirstlane_b32 s{S_WAVE}, v{V_T}")
    g.I(f"v_and_b32 v{V_Cc}, 15, v{V_LANE}")
    g.I(f"s_mov_b32 s{S_SCALE}, 0x3db504f3")
    g.I(f"s_mov_b32 s{S_LOG2E}, 0x3fb8aa3b")
    g.I(f"s_mov_b32 s{S_MASK}, 0xffff0000")
    g.I(f"s_mov_b32 s{S_PLO}, 0x05040100")
    g.I(f"s_mov_b32 s{S_PHI}, 0x07060302")
    g.I(f"s_and_b32 s{S_T0}, s2, 7")
    g.I(f"s_lshr_b32 s{S_T1}, s2, 3")
    g.I(f"s_and_b32 s{S_T2}, s{S_T1}, 3")
    if cfg.hmap == 0:
        g.I(f"s_lshl_b32 s{S_H}, s{S_T0}, 2")
        g.I(f"s_add_u32 s{S_H}, s{S_H}, s{S_T2}")
    else:
        g.I(f"s_lshl_b32 s{S_H}, s{S_T2}, 1")
        g.I(f"s_add_u32 s{S_H}, s{S_H}, s{S_T0}")
        g.I(f"s_and_b32 s{S_H}, s{S_H}, 7")
        g.I(f"s_lshl_b32 s{S_T2}, s{S_T2}, 3")
        g.I(f"s_add_u32 s{S_H}, s{S_H}, s{S_T2}")
    g.I(f"s_lshr_b32 s{S_SPLIT}, s{S_T1}, 2")
    g.I(f"s_lshl_b32 s{S_P}, s{S_H}, 3")
    g.I(f"s_add_u32 s{S_P}, s{S_P}, s{S_SPLIT}")
    g.I(f"s_lshl_b32 s{S_HOFF}, s{S_H}, 2")
    g.I(f"s_mul_i32 s{S_GJ}, s{S_T0}, 28")
    g.I(f"s_add_u32 s{S_GJ}, s{S_GJ}, s{S_T1}")
    g.I(f"s_cmp_lt_u32 s{S_T1}, 28")
    g.I(f"s_cselect_b32 s{S_GVALID}, 1, 0")
    g.I(f"s_cselect_b32 s{S_GJ}, s{S_GJ}, 0")
    V_A = 56
    g.I(f"v_lshlrev_b32 v{V_WOA}, 4, v{V_LANE}")
    g.I(f"v_lshlrev_b32 v{V_A+1}, 14, v{V_G}")
    g.I(f"v_lshl_add_u32 v{V_A+1}, v{V_Cc}, 4, v{V_A+1}")
    g.I(f"s_lshl_b32 s{S_T0}, s{S_WAVE}, 16")
    g.I(f"s_lshl_b32 s{S_T1}, s{S_H}, 8")
    g.I(f"s_add_u32 s{S_RB}, s{S_T0}, s{S_T1}")
    g.I(f"s_lshl_b32 s{S_T1}, s{S_WAVE}, 12")
    g.I(f"v_add_u32 v{V_KVOFF}, s{S_T1}, v{V_WOA}")
    g.I(f"s_lshl_b32 s{S_T2}, s{S_P}, 20")
    g.I("s_waitcnt lgkmcnt(0)")
    stamp(g, cfg, 0)
    if cfg.touch:
        TB = 92
        g.I(f"s_mov_b64 s[{TB}:{TB+1}], s[{S_WQ}:{S_WQ+1}]")
        g.I(f"s_mov_b32 s{TB+2}, 0x200000")
        def sel(w, ptr, off_code):
            g.I(f"s_cmp_eq_u32 s{S_WAVE}, {w}")
            g.I(f"s_cselect_b64 s[{TB}:{TB+1}], s[{ptr}:{ptr+1}], s[{TB}:{TB+1}]")
            g.I(f"s_cselect_b32 s{TB+2}, {off_code}, s{TB+2}")
        g.I(f"s_lshl_b32 s{TB+3}, s{S_H}, 17")
        sel(1, S_WO, f"s{TB+3}")
        sel(2, S_GT, "0")
        sel(3, S_UP, "0")
        g.I(f"s_lshl_b32 s{TB+3}, s{S_GJ}, 13")
        sel(4, S_DN, f"s{TB+3}")
        sel(5, S_WS, "0")
        sel(6, S_DBG, "0")
        sel(7, S_OUT, "0")
        g.I(f"v_mov_b32 v6, s{TB+2}")
        g.I(f"global_load_dword v5, v6, s[{TB}:{TB+1}]")
    srd(g, R_WQ, S_WQ, S_WQ + 1, 512 * 8192)
    srd(g, R_X, S_X, S_X + 1, 1024)
    srd_off(g, R_K, S_K, S_K + 1, S_T2, 0x100000)
    srd_off(g, R_V, S_V, S_V + 1, S_T2, 0x100000)
    g.I(f"s_cmp_lg_u32 s{S_WAVE}, {LNW}")
    g.I("s_cbranch_scc1 L_loads")
    if cfg.noln:
        g.I("s_branch L_loads")
    V_XR = V_T
    XF = V_PP
    g.I(f"buffer_load_dwordx4 {vr(V_XR,4)}, v{V_WOA}, {sr(R_X,4)}, 0 offen")
    if cfg.early0:
        kb = V_RING
        for i in range(4):
            g.I(f"buffer_load_dwordx4 {vr(kb+4*i,4)}, v{V_KVOFF}, {sr(R_K,4)}, 0 offen offset:{i*1024}{NT}")
        for i in range(4):
            g.I(f"buffer_load_dwordx4 {vr(kb+16+4*i,4)}, v{V_KVOFF}, {sr(R_V,4)}, 0 offen offset:{i*1024}{NT}")
        g.I("s_waitcnt vmcnt(8)")
    else:
        g.I("s_waitcnt vmcnt(0)")
    stamp(g, cfg, 6, LNW)
    for j in range(4):
        g.I(f"v_lshlrev_b32 v{XF+2*j}, 16, v{V_XR+j}")
        g.I(f"v_and_b32 v{XF+2*j+1}, s{S_MASK}, v{V_XR+j}")
    t0, t1, t2, t3 = V_S, V_S + 1, V_S + 2, V_S + 3
    g.I(f"v_add_f32 v{t0}, v{XF}, v{XF+1}")
    g.I(f"v_add_f32 v{t1}, v{XF+2}, v{XF+3}")
    g.I(f"v_add_f32 v{t2}, v{XF+4}, v{XF+5}")
    g.I(f"v_add_f32 v{t3}, v{XF+6}, v{XF+7}")
    g.I(f"v_add_f32 v{t0}, v{t0}, v{t1}")
    g.I(f"v_add_f32 v{t2}, v{t2}, v{t3}")
    g.I(f"v_add_f32 v{t0}, v{t0}, v{t2}")
    g.nop(2)
    wave_allreduce(g, "add_f32", t0, t1)
    g.I(f"v_mul_f32 v{t0}, 0x3b000000, v{t0}")
    for j in range(8):
        g.I(f"v_sub_f32 v{12+j}, v{XF+j}, v{t0}")
    g.I(f"v_mul_f32 v{t1}, v12, v12")
    g.I(f"v_mul_f32 v{t2}, v13, v13")
    for j in range(2, 8, 2):
        g.I(f"v_fmac_f32 v{t1}, v{12+j}, v{12+j}")
        g.I(f"v_fmac_f32 v{t2}, v{13+j}, v{13+j}")
    g.I(f"v_add_f32 v{t1}, v{t1}, v{t2}")
    g.nop(2)
    wave_allreduce(g, "add_f32", t1, t2)
    g.I(f"v_mul_f32 v{t1}, 0x3b000000, v{t1}")
    bf16_round2(g, t0, t1, t2)
    g.I(f"v_add_f32 v{t1}, 0x3727c5ac, v{t1}")
    for j in range(8):
        g.I(f"v_sub_f32 v{XF+j}, v{XF+j}, v{t0}")
    bf16_round1(g, t1, t1, t2)
    g.I(f"v_sqrt_f32 v{t1}, v{t1}")
    for j in range(0, 8, 2):
        bf16_round2(g, XF + j, XF + j + 1, t2)
    bf16_round1(g, t1, t1, t2)
    g.I(f"v_rcp_f32 v{t3}, v{t1}")
    g.nop(1)
    for j in range(8):
        g.I(f"v_mul_f32 v{12+j}, v{XF+j}, v{t3}")
    for j in range(8):
        g.I(f"v_fma_f32 v{26+(j%4)}, -v{12+j}, v{t1}, v{XF+j}")
        g.I(f"v_fma_f32 v{XF+j}, v{26+(j%4)}, v{t3}, v{12+j}")
    XP = V_Q
    for j in range(4):
        g.I(f"v_cvt_pk_bf16_f32 v{XP+j}, v{XF+2*j}, v{XF+2*j+1}")
    g.I(f"ds_write_b128 v{V_WOA}, {vr(XP,4)} offset:{L_XN}")
    g.lab("L_loads")

    def issue_block(slot, tag):
        kb = V_RING + slot * 32
        for i in range(4):
            g.vm(f"buffer_load_dwordx4 {vr(kb+4*i,4)}, v{V_KVOFF}, {sr(R_K,4)}, s{S_OFF} offen offset:{i*1024}{NT}", tag)
        for i in range(4):
            g.vm(f"buffer_load_dwordx4 {vr(kb+16+4*i,4)}, v{V_KVOFF}, {sr(R_V,4)}, s{S_OFF} offen offset:{i*1024}{NT}", tag)
        g.I(f"s_add_u32 s{S_OFF}, s{S_OFF}, 32768")

    nissued = 0

    def maybe_issue(point):
        nonlocal nissued
        while nissued < D and cfg.issue_at[nissued] == point:
            if nissued == 0 and cfg.early0:
                g.I(f"s_cmp_eq_u32 s{S_WAVE}, {LNW}")
                g.I("s_cbranch_scc1 L_b0skip")
                issue_block(0, "b0")
                g.I("s_branch L_b0done")
                g.lab("L_b0skip")
                g.I(f"s_add_u32 s{S_OFF}, s{S_OFF}, 32768")
                g.lab("L_b0done")
            else:
                issue_block(nissued, f"b{nissued}")
            nissued += 1

    g.I(f"s_mov_b32 s{S_OFF}, 0")
    maybe_issue(0)
    for k in range(8):
        g.I(f"s_add_u32 s{S_T0}, s{S_SPLIT}, {k}")
        g.I(f"s_and_b32 s{S_T0}, s{S_T0}, 7")
        g.I(f"s_lshl_b32 s{S_T0}, s{S_T0}, 19")
        g.I(f"s_add_u32 s{S_T0}, s{S_T0}, s{S_RB}")
        g.I(f"s_add_u32 s{S_T1}, s{S_T0}, 8192")
        if not cfg.nowq and not (cfg.wq1 and k > 0):
            g.vm(f"buffer_load_dwordx4 {vr(V_W+8*k,4)}, v{V_A+1}, {sr(R_WQ,4)}, s{S_T0} offen{WQNT}", f"wq{k//2}")
            g.vm(f"buffer_load_dwordx4 {vr(V_W+8*k+4,4)}, v{V_A+1}, {sr(R_WQ,4)}, s{S_T1} offen{WQNT}", f"wq{k//2}")
        if k == 0:
            maybe_issue(1)
    maybe_issue(2)
    srd(g, R_GT, S_GT, S_GT + 1, 512 * 3584)
    srd(g, R_UP, S_UP, S_UP + 1, 512 * 3584)
    srd(g, R_DN, S_DN, S_DN + 1, 1792 * 1024)
    srd(g, R_WS, S_WS, S_WS + 1, WS_BYTES)
    srd(g, R_OUT, S_OUT, S_OUT + 1, 1024)
    srd(g, R_DBG, S_DBG, S_DBG + 1, 256)
    g.I(f"s_lshl_b32 s{S_T0}, s{S_H}, 17")
    srd_off(g, R_WO, S_WO, S_WO + 1, S_T0, 0x20000)
    XNP = V_ACC
    g.I(f"s_lshl_b32 s{S_T0}, s{S_WAVE}, 4")
    g.I(f"v_lshlrev_b32 v{V_A}, 2, v{V_G}")
    g.I(f"v_add_u32 v{V_A}, s{S_T0}, v{V_A}")
    for k in range(8):
        g.I(f"s_add_u32 s{S_T0}, s{S_SPLIT}, {k}")
        g.I(f"s_and_b32 s{S_T0}, s{S_T0}, 7")
        g.I(f"s_lshl_b32 s{S_T0}, s{S_T0}, 7")
        g.I(f"v_add_u32 v{XNP+k}, s{S_T0}, v{V_A}")
    g.I(f"v_lshlrev_b32 v{V_A+2}, 1, v{V_TID}")
    g.I("s_waitcnt lgkmcnt(0)")
    g.I("s_barrier")
    stamp(g, cfg, 8)
    for k in range(8):
        g.I(f"ds_read_b32 v{XNP+k}, v{XNP+k} offset:{L_XN}")
    g.I(f"ds_read_u16 v{V_XROW}, v{V_A+2} offset:{L_XN}")
    maybe_issue(3)
    ta, tb, tc, td = 26, 27, 28, 29
    g.I(f"v_and_b32 v{ta}, 1, v{V_G}")
    g.I(f"v_lshlrev_b32 v{ta}, 3, v{ta}")
    g.I(f"v_lshrrev_b32 v{tb}, 1, v{V_G}")
    g.I(f"v_lshl_add_u32 v{ta}, v{tb}, 4, v{ta}")
    g.I(f"v_lshl_add_u32 v{V_QOFF}, v{V_Cc}, 5, v{ta}")
    g.I("s_waitcnt lgkmcnt(0)")
    g.I(f"v_lshlrev_b32 v{V_XROW}, 16, v{V_XROW}")
    QA = V_PP
    for k in range(8):
        if k % 2 == 0:
            g.wait_tag(f"wq{k//2}")
        for j in range(4):
            A, B = V_W + 8 * k + j, V_W + 8 * k + 4 + j
            lo, hi = (ta, tb) if j % 2 == 0 else (tc, td)
            g.I(f"v_perm_b32 v{lo}, v{B}, v{A}, s{S_PLO}")
            g.I(f"v_perm_b32 v{hi}, v{B}, v{A}, s{S_PHI}")
            s2a = "0" if k == 0 else f"v{QA+2*j}"
            s2b = "0" if k == 0 else f"v{QA+2*j+1}"
            g.I(f"v_dot2_f32_bf16 v{QA+2*j}, v{lo}, v{XNP+k}, {s2a}")
            g.I(f"v_dot2_f32_bf16 v{QA+2*j+1}, v{hi}, v{XNP+k}, {s2b}")
        if k == 3:
            maybe_issue(4)
    g.nop(1)
    reduce_scatter_rows(g, [QA + j for j in range(8)])
    g.I(f"s_lshl_b32 s{S_T0}, s{S_WAVE}, 9")
    g.I(f"v_add_u32 v{ta}, s{S_T0}, v{V_QOFF}")
    g.I(f"ds_write_b64 v{ta}, {vr(QA,2)} offset:{L_QP}")
    g.I(f"v_lshlrev_b32 v{tb}, 5, v{V_Cc}")
    maybe_issue(5)
    g.I("s_waitcnt lgkmcnt(0)")
    g.I("s_barrier")
    stamp(g, cfg, 7)
    for w in range(8):
        g.I(f"ds_read_b128 {vr(V_W+8*w,4)}, v{tb} offset:{L_QP+512*w}")
        g.I(f"ds_read_b128 {vr(V_W+8*w+4,4)}, v{tb} offset:{L_QP+512*w+16}")
    g.I(f"v_mov_b32 v{V_M}, 0xff800000")
    g.I(f"v_mov_b32 v{V_L}, 0")
    for j in range(8):
        g.I(f"v_mov_b32 v{V_ACC+j}, 0")
    g.I(f"s_lshl_b32 s{S_T0}, s{S_WAVE}, 11")
    g.I(f"v_add_u32 v{V_WOA}, s{S_T0}, v{V_WOA}")
    for step in (1, 2, 4):
        g.I(f"s_waitcnt lgkmcnt({ {1: 0, 2: 0, 4: 0}[step] })") if step == 1 else None
        for w in range(0, 8, 2 * step):
            for j in range(8):
                g.I(f"v_add_f32 v{V_W+8*w+j}, v{V_W+8*w+j}, v{V_W+8*(w+step)+j}")
    for j in range(4):
        g.I(f"v_cvt_pk_bf16_f32 v{V_Q+j}, v{V_W+2*j}, v{V_W+2*j+1}")
    maybe_issue(6)
    assert nissued == D
    stamp(g, cfg, 1)

    def compute_block(slot):
        if cfg.nocompute:
            return
        kb = V_RING + slot * 32
        vb = kb + 16
        S = V_S
        for j in range(4):
            for i in range(4):
                src2 = "0" if j == 0 else f"v{S+i}"
                g.I(f"v_dot2_f32_bf16 v{S+i}, v{kb+4*i+j}, v{V_Q+j}, {src2}")
        t = V_T
        row_allreduce(g, "add_f32", [S + i for i in range(4)])
        g.I(f"v_cvt_pk_bf16_f32 v{t}, v{S}, v{S+1}")
        g.I(f"v_cvt_pk_bf16_f32 v{t+1}, v{S+2}, v{S+3}")
        g.I(f"v_lshlrev_b32 v{S}, 16, v{t}")
        g.I(f"v_and_b32 v{S+1}, s{S_MASK}, v{t}")
        g.I(f"v_lshlrev_b32 v{S+2}, 16, v{t+1}")
        g.I(f"v_and_b32 v{S+3}, s{S_MASK}, v{t+1}")
        for i in range(4):
            g.I(f"v_mul_f32 v{S+i}, s{S_SCALE}, v{S+i}")
        g.I(f"v_cvt_pk_bf16_f32 v{t}, v{S}, v{S+1}")
        g.I(f"v_cvt_pk_bf16_f32 v{t+1}, v{S+2}, v{S+3}")
        g.I(f"v_lshlrev_b32 v{S}, 16, v{t}")
        g.I(f"v_and_b32 v{S+1}, s{S_MASK}, v{t}")
        g.I(f"v_lshlrev_b32 v{S+2}, 16, v{t+1}")
        g.I(f"v_and_b32 v{S+3}, s{S_MASK}, v{t+1}")
        mn, al, mb = t + 2, t + 4, t + 3
        g.I(f"v_max3_f32 v{mn}, v{V_M}, v{S}, v{S+1}")
        g.I(f"v_max3_f32 v{mn}, v{mn}, v{S+2}, v{S+3}")
        g.I(f"v_sub_f32 v{al}, v{V_M}, v{mn}")
        g.I(f"v_mul_f32 v{mb}, s{S_LOG2E}, v{mn}")
        g.I(f"v_mul_f32 v{al}, s{S_LOG2E}, v{al}")
        for i in range(4):
            g.I(f"v_fma_f32 v{V_PP+i}, v{S+i}, s{S_LOG2E}, -v{mb}")
        g.I(f"v_exp_f32 v{al}, v{al}")
        for i in range(4):
            g.I(f"v_exp_f32 v{V_PP+i}, v{V_PP+i}")
        g.I(f"v_mov_b32 v{V_M}, v{mn}")
        for pr in range(2):
            for j in range(4):
                A, B = vb + 8 * pr + j, vb + 8 * pr + 4 + j
                g.I(f"v_perm_b32 v{kb+8*pr+2*j}, v{B}, v{A}, s{S_PLO}")
                g.I(f"v_perm_b32 v{kb+8*pr+2*j+1}, v{B}, v{A}, s{S_PHI}")
        g.I(f"v_mul_f32 v{V_L}, v{V_L}, v{al}")
        for j in range(4):
            g.I(f"v_pk_mul_f32 {vr(V_ACC+2*j,2)}, {vr(V_ACC+2*j,2)}, {vr(al,2)} op_sel_hi:[1,0]")
        g.I(f"v_cvt_pk_bf16_f32 v{V_PP+4}, v{V_PP}, v{V_PP+1}")
        g.I(f"v_cvt_pk_bf16_f32 v{V_PP+5}, v{V_PP+2}, v{V_PP+3}")
        g.I(f"v_add_f32 v{t}, v{V_PP}, v{V_PP+1}")
        g.I(f"v_add_f32 v{t+1}, v{V_PP+2}, v{V_PP+3}")
        g.I(f"v_add_f32 v{t}, v{t}, v{t+1}")
        g.I(f"v_add_f32 v{V_L}, v{V_L}, v{t}")
        for pr in range(2):
            for jj in range(8):
                g.I(f"v_dot2_f32_bf16 v{V_ACC+jj}, v{kb+8*pr+jj}, v{V_PP+4+pr}, v{V_ACC+jj}")

    def glu_part1():
        if cfg.noglu:
            return
        g.wait_tag("gu")
        for half, src in ((0, V_GT), (1, V_UP)):
            R = TMP8
            for j in range(4):
                g.I(f"v_lshlrev_b32 v{R[2*j]}, 16, v{src+j}")
                g.I(f"v_and_b32 v{R[2*j+1]}, s{S_MASK}, v{src+j}")
            for j in range(8):
                g.I(f"v_mul_f32 v{R[j]}, v{R[j]}, v{V_XROW}")
            reduce_scatter_rows(g, R)
            g.nop(2)
            row_allreduce(g, "add_f32", [R[0], R[1]])
            g.I(f"v_lshlrev_b32 v{R[2]}, 6, v{V_G}")
            g.I(f"s_lshl_b32 s{S_T0}, s{S_WAVE}, 2")
            g.I(f"v_add_u32 v{R[2]}, s{S_T0}, v{R[2]}")
            g.I(f"v_cmp_eq_u32 vcc, 0, v{V_Cc}")
            g.I(f"s_and_saveexec_b64 {sr(S_EX,2)}, vcc")
            g.I(f"ds_write_b32 v{R[2]}, v{R[0]} offset:{L_GU+256*half}")
            g.I(f"ds_write_b32 v{R[2]}, v{R[1]} offset:{L_GU+256*half+32}")
            g.I(f"s_mov_b64 exec, {sr(S_EX,2)}")
        g.I("s_waitcnt lgkmcnt(0)")

    def glu_part2():
        if cfg.noglu:
            return
        ta, tb = 62, 63
        R = TMP8
        g.I(f"v_lshrrev_b32 v{ta}, 3, v{V_LANE}")
        g.I(f"v_lshlrev_b32 v{ta}, 5, v{ta}")
        g.I(f"ds_read_b128 {vr(V_GT,4)}, v{ta} offset:{L_GU}")
        g.I(f"ds_read_b128 {vr(V_GT+4,4)}, v{ta} offset:{L_GU+16}")
        g.I(f"ds_read_b128 {vr(26,4)}, v{ta} offset:{L_GU+256}")
        g.I(f"ds_read_b64 {vr(30,2)}, v{ta} offset:{L_GU+272}")
        g.I(f"ds_read_b64 {vr(58,2)}, v{ta} offset:{L_GU+280}")
        g.I("s_waitcnt lgkmcnt(0)")
        for j in range(1, 8):
            g.I(f"v_add_f32 v{V_GT}, v{V_GT}, v{V_GT+j}")
            g.I(f"v_add_f32 v{R[0]}, v{R[0]}, v{R[j]}")
        ga, ua = V_GT, R[0]
        bf16_round2(g, ga, ua, tb)
        e = V_GT + 1
        g.I(f"v_mul_f32 v{e}, s{S_LOG2E}, v{ga}")
        g.I(f"v_sub_f32 v{e}, 0, v{e}")
        g.I(f"v_exp_f32 v{e}, v{e}")
        g.nop(1)
        g.I(f"v_add_f32 v{e}, 1.0, v{e}")
        g.I(f"v_rcp_f32 v{e+1}, v{e}")
        g.nop(1)
        g.I(f"v_fma_f32 v{e+2}, -v{e}, v{e+1}, 1.0")
        g.I(f"v_fma_f32 v{e+1}, v{e+2}, v{e+1}, v{e+1}")
        bf16_round1(g, e + 1, e + 1, tb)
        g.I(f"v_mul_f32 v{e+1}, v{e+1}, v{ua}")
        bf16_round1(g, e + 1, e + 1, tb)
        hh = e + 1
        g.wait_tag("dn")
        for j in range(4):
            g.I(f"v_lshlrev_b32 v{R[2*j]}, 16, v{V_DN+j}")
            g.I(f"v_and_b32 v{R[2*j+1]}, s{S_MASK}, v{V_DN+j}")
        for j in range(8):
            g.I(f"v_mul_f32 v{R[j]}, v{R[j]}, v{hh}")
        g.nop(2)
        for j in range(8):
            g.I(f"v_add_f32_dpp v{R[j]}, v{R[j]}, v{R[j]} row_ror:8 row_mask:0xf bank_mask:0xf")
        reduce_scatter_rows(g, R)
        g_addr(ta, tb)
        g.I(f"s_cmp_eq_u32 s{S_GVALID}, 0")
        g.I("s_cbranch_scc1 L_skip_glu")
        g.I(f"s_and_saveexec_b64 {sr(S_EX,2)}, vcc")
        g.I(f"buffer_store_dwordx2 {vr(R[0],2)}, v{tb}, {sr(R_WS,4)}, s{S_T0} offen sc0 sc1")
        g.I(f"s_mov_b64 exec, {sr(S_EX,2)}")
        g.lab("L_skip_glu")

    def glu_loads():
        if cfg.noglu:
            return
        ta = 62
        g.I(f"s_movk_i32 s{S_T1}, 3584")
        if cfg.glueff:
            g.I(f"v_lshrrev_b32 v{ta}, 3, v{V_TID}")
            g.I(f"v_mul_lo_u32 v{ta}, v{ta}, s{S_T1}")
            g.I(f"v_and_b32 v63, 7, v{V_LANE}")
            g.I(f"v_lshl_add_u32 v{ta}, v63, 4, v{ta}")
            g.I(f"s_and_b32 s{S_T0}, s{S_GJ}, 7")
            g.I(f"s_mul_i32 s{S_T0}, s{S_T0}, {64*3584}")
            g.I(f"s_lshr_b32 s{S_T1}, s{S_GJ}, 3")
            g.I(f"s_lshl_b32 s{S_T1}, s{S_T1}, 7")
            g.I(f"s_add_u32 s{S_T1}, s{S_T1}, s{S_T0}")
        else:
            g.I(f"v_mul_lo_u32 v{ta}, v{V_TID}, s{S_T1}")
            g.I(f"s_lshl_b32 s{S_T1}, s{S_GJ}, 4")
        g.vm(f"buffer_load_dwordx4 {vr(V_GT,4)}, v{ta}, {sr(R_GT,4)}, s{S_T1} offen{GNT}", "gu")
        g.vm(f"buffer_load_dwordx4 {vr(V_UP,4)}, v{ta}, {sr(R_UP,4)}, s{S_T1} offen{GNT}", "gu")
        g.I(f"v_lshrrev_b32 v63, 3, v{V_LANE}")
        g.I(f"v_lshlrev_b32 v63, 10, v63")
        g.I(f"v_and_b32 v59, 7, v{V_LANE}")
        g.I(f"v_lshl_add_u32 v63, v59, 4, v63")
        g.I(f"s_lshl_b32 s{S_T1}, s{S_GJ}, 13")
        g.I(f"s_lshl_b32 s{S_T0}, s{S_WAVE}, 7")
        g.I(f"s_add_u32 s{S_T1}, s{S_T1}, s{S_T0}")
        g.vm(f"buffer_load_dwordx4 {vr(V_DN,4)}, v63, {sr(R_DN,4)}, s{S_T1} offen{DNT}", "dn")

    def wo_perm():
        for k in range(8):
            for j in range(4):
                A, B = V_W + 8 * k + j, V_W + 8 * k + 4 + j
                tt = V_T + (j % 2)
                g.I(f"v_perm_b32 v{tt}, v{B}, v{A}, s{S_PLO}")
                g.I(f"v_perm_b32 v{B}, v{B}, v{A}, s{S_PHI}")
                g.I(f"v_mov_b32 v{A}, v{tt}")

    def wo_loads(k):
        if cfg.nowo:
            return
        g.I(f"s_add_u32 s{S_T2}, s{S_SPLIT}, {k}")
        g.I(f"s_and_b32 s{S_T2}, s{S_T2}, 7")
        g.I(f"s_lshl_b32 s{S_T2}, s{S_T2}, 14")
        g.vm(f"buffer_load_dwordx4 {vr(V_W+8*k,4)}, v{V_WOA}, {sr(R_WO,4)}, s{S_T2} offen{WONT}", "wo")
        g.vm(f"buffer_load_dwordx4 {vr(V_W+8*k+4,4)}, v{V_WOA}, {sr(R_WO,4)}, s{S_T2} offen offset:1024{WONT}", "wo")

    def y_addr(dst, tmp):
        g.I(f"v_lshrrev_b32 v{dst}, 3, v{V_LANE}")
        g.I(f"v_lshlrev_b32 v{dst}, 15, v{dst}")
        g.I(f"v_and_b32 v{tmp}, 7, v{V_LANE}")
        g.I(f"v_lshl_add_u32 v{dst}, v{tmp}, 4, v{dst}")

    def g_addr(ta, tb):
        g.I(f"v_and_b32 v{ta}, 7, v{V_LANE}")
        g.I(f"v_lshrrev_b32 v{tb}, 2, v{ta}")
        g.I(f"v_lshlrev_b32 v{tb}, 15, v{tb}")
        g.I(f"v_and_b32 v{ta}, 3, v{ta}")
        g.I(f"v_lshl_add_u32 v{tb}, v{ta}, 5, v{tb}")
        g.I(f"v_and_b32 v{ta}, 1, v{V_G}")
        g.I(f"v_lshl_add_u32 v{tb}, v{ta}, 3, v{tb}")
        g.I(f"v_lshrrev_b32 v{ta}, 1, v{V_G}")
        g.I(f"v_lshl_add_u32 v{tb}, v{ta}, 4, v{tb}")
        g.I(f"s_lshl_b32 s{S_T0}, s{S_WAVE}, 16")
        g.I(f"s_lshl_b32 s{S_T1}, s{S_GJ}, 7")
        g.I(f"s_add_u32 s{S_T0}, s{S_T0}, s{S_T1}")
        g.I(f"s_add_u32 s{S_T0}, s{S_T0}, {WS_G}")
        g.I(f"v_and_b32 v{ta}, 8, v{V_LANE}")
        g.I(f"v_cmp_eq_u32 vcc, 0, v{ta}")

    def clears():
        if cfg.noclr:
            return
        SN = 28
        for j in range(4):
            g.I(f"v_mov_b32 v{SN+j}, -1")
        g_addr(62, 63)
        g.I(f"s_cmp_eq_u32 s{S_GVALID}, 0")
        g.I("s_cbranch_scc1 L_skip_gclr")
        g.I(f"s_and_saveexec_b64 {sr(S_EX,2)}, vcc")
        g.I(f"buffer_store_dwordx2 {vr(SN,2)}, v63, {sr(R_WS,4)}, s{S_T0} offen sc0 sc1")
        g.I(f"s_mov_b64 exec, {sr(S_EX,2)}")
        g.lab("L_skip_gclr")
        g.I(f"s_cmp_lg_u32 s{S_WAVE}, 0")
        g.I("s_cbranch_scc1 L_skip_yclr")
        y_addr(62, 63)
        g.I(f"s_lshl_b32 s{S_T0}, s{S_P}, 7")
        g.I(f"s_add_u32 s{S_T1}, s{S_T0}, {8*32768}")
        g.I(f"buffer_store_dwordx4 {vr(SN,4)}, v62, {sr(R_WS,4)}, s{S_T0} offen sc0 sc1")
        g.I(f"buffer_store_dwordx4 {vr(SN,4)}, v62, {sr(R_WS,4)}, s{S_T1} offen sc0 sc1")
        g.I(f"s_lshl_b32 s{S_T1}, s{S_P}, 3")
        g.I(f"s_add_u32 s{S_T1}, s{S_T1}, {WS_ML}")
        g.I(f"v_mov_b32 v63, 0")
        g.I("s_mov_b64 exec, 1")
        g.I(f"buffer_store_dwordx2 {vr(SN,2)}, v63, {sr(R_WS,4)}, s{S_T1} offen sc0 sc1")
        g.I("s_mov_b64 exec, -1")
        g.lab("L_skip_yclr")

    for j in range(4):
        g.wait_tag(f"b{j}")
        compute_block(j)
        if j in cfg.pbar[0]:
            g.I("s_barrier")
        if j == cfg.clr_at:
            clears()
        issue_block(j, f"b{j}")
        for k in cfg.wo_sched.get(j, []):
            wo_loads(k)
        if j == cfg.glu_at:
            glu_loads()
    for j in range(4):
        g.wait_tag(f"b{j}")
        compute_block(j)
        if j == 2:
            glu_part1()
        if j in cfg.pbar[1] or j == 2 or j == cfg.clr_at:
            g.I("s_barrier")
        if j == cfg.clr_at and not cfg.noclr:
            g.I(f"s_cmp_lg_u32 s{S_WAVE}, 0")
            g.I("s_cbranch_scc1 L_skip_sig")
            g.I(f"v_mov_b32 v62, 1")
            g.I(f"v_mov_b32 v63, 0")
            g.I("s_mov_b64 exec, 1")
            g.I(f"buffer_atomic_add v62, v63, {sr(R_DBG,4)}, s{S_HOFF} offen")
            g.I("s_mov_b64 exec, -1")
            g.lab("L_skip_sig")
        issue_block(j, f"b{j}")
        for k in cfg.wo_sched.get(4 + j, []):
            wo_loads(k)
        if j == 3:
            glu_part2()
    if cfg.hot:
        g.I(f"s_mov_b32 s{S_CNT}, 6")
        g.lab("L_loop")
        for b in range(D):
            g.I(f"s_cmp_lg_u32 s{S_CNT}, 1")
            g.I(f"s_cbranch_scc1 L_nw{b}")
            g.I(f"s_waitcnt vmcnt({8*(D-1-b)})")
            g.lab(f"L_nw{b}")
            g.I(f"s_waitcnt vmcnt({8*(D-1)})")
            compute_block(b)
            g.I(f"s_cmp_eq_u32 s{S_CNT}, 1")
            g.I(f"s_cbranch_scc1 L_ni{b}")
            if cfg.loopbar and (b % cfg.loopbar) == 0:
                g.I("s_barrier")
            issue_block(b, f"b{b}")
            g.lab(f"L_ni{b}")
        g.I(f"s_sub_u32 s{S_CNT}, s{S_CNT}, 1")
        g.I(f"s_cmp_lg_u32 s{S_CNT}, 5")
        g.I("s_cbranch_scc1 L_noperm")
        wo_perm()
        g.lab("L_noperm")
        g.I(f"s_cmp_lg_u32 s{S_CNT}, 1")
        g.I("s_cbranch_scc1 L_nochk")
        g.I(f"v_lshlrev_b32 v62, 2, v{V_LANE}")
        g.I(f"v_and_b32 v62, 0x7f, v62")
        g.I(f"buffer_load_dword v63, v62, {sr(R_DBG,4)}, 0 offen sc0 sc1")
        g.lab("L_nochk")
        g.I(f"s_cmp_lg_u32 s{S_CNT}, 0")
        g.I("s_cbranch_scc1 L_loop")
    else:
        for j in range(4):
            g.wait_tag(f"b{j}")
            compute_block(j)
            if j in cfg.pbar[2]:
                g.I("s_barrier")
            issue_block(j, f"b{j}")
        g.wait_tag("wo")
        wo_perm()
        g.I(f"s_mov_b32 s{S_CNT}, {4 if cfg.peell else 5}")
        g.lab("L_loop")
        if cfg.stamp:
            g.I(f"s_cmp_lg_u32 s{S_WAVE}, 0")
            g.I(f"s_cbranch_scc1 L_stl")
            g.I(f"s_memrealtime s[{S_TS}:{S_TS+1}]")
            g.I("s_waitcnt lgkmcnt(0)")
            g.I(f"v_mov_b32 v5, s{S_TS}")
            g.I(f"s_lshl_b32 s{S_TS}, s2, 6")
            g.I(f"s_lshl_b32 s{S_TS+1}, s{S_CNT}, 2")
            g.I(f"s_sub_u32 s{S_TS}, s{S_TS}, s{S_TS+1}")
            g.I(f"s_add_u32 s{S_TS}, s{S_TS}, {2*1024*1024 + 15*4}")
            g.I(f"v_mov_b32 v6, s{S_TS}")
            g.I(f"global_store_dword v6, v5, s[{S_WS}:{S_WS+1}]")
            g.lab("L_stl")
        for b in range(D):
            g.I(f"s_waitcnt vmcnt({8*(D-1)})")
            compute_block(b)
            if cfg.loopbar and (b % cfg.loopbar) == 0:
                g.I("s_barrier")
            issue_block(b, f"b{b}")
        g.I(f"s_sub_u32 s{S_CNT}, s{S_CNT}, 1")
        g.I(f"s_cmp_lg_u32 s{S_CNT}, 1")
        g.I("s_cbranch_scc1 L_nochk")
        g.I(f"v_lshlrev_b32 v62, 2, v{V_LANE}")
        g.I(f"v_and_b32 v62, 0x7f, v62")
        g.I(f"buffer_load_dword v63, v62, {sr(R_DBG,4)}, 0 offen sc0 sc1")
        g.lab("L_nochk")
        g.I(f"s_cmp_lg_u32 s{S_CNT}, 0")
        g.I("s_cbranch_scc1 L_loop")
        if cfg.peell:
            for b in range(D):
                g.I(f"s_waitcnt vmcnt({8*(D-1-b)})")
                compute_block(b)
    g.wait_all()
    stamp(g, cfg, 2)
    if cfg.notail:
        g.I("s_branch L_end")
    t = V_T
    mw = t
    g.I(f"v_mov_b32 v{mw}, v{V_M}")
    cross_row_allreduce(g, "max_f32", mw, t + 1)
    g.I(f"v_sub_f32 v{t+2}, v{V_M}, v{mw}")
    g.I(f"v_mul_f32 v{t+2}, s{S_LOG2E}, v{t+2}")
    g.I(f"v_exp_f32 v{t+2}, v{t+2}")
    g.nop(1)
    g.I(f"v_mul_f32 v{V_L}, v{V_L}, v{t+2}")
    for j in range(8):
        g.I(f"v_mul_f32 v{V_ACC+j}, v{V_ACC+j}, v{t+2}")
    cross_row_allreduce(g, "add_f32", V_L, t + 1)
    reduce_scatter_rows(g, [V_ACC + j for j in range(8)])
    g.I(f"s_lshl_b32 s{S_T0}, s{S_WAVE}, 9")
    g.I(f"v_add_u32 v{t+3}, s{S_T0}, v{V_QOFF}")
    g.I(f"ds_write_b64 v{t+3}, {vr(V_ACC,2)} offset:{L_OP}")
    g.I(f"v_mov_b32 v{t+1}, v{V_L}")
    g.I(f"s_lshl_b32 s{S_T0}, s{S_WAVE}, 3")
    g.I(f"v_mov_b32 v{t+3}, s{S_T0}")
    g.I(f"ds_write_b64 v{t+3}, {vr(t,2)} offset:{L_ML}")
    g.I(f"v_mov_b32 v{t+3}, 0")
    g.I(f"v_add_u32 v{t+4}, s{S_SPLIT}, v{V_LANE}")
    g.I(f"v_and_b32 v{t+4}, 7, v{t+4}")
    g.I(f"v_lshlrev_b32 v{t+4}, 6, v{t+4}")
    g.I(f"s_lshl_b32 s{S_T0}, s{S_WAVE}, 3")
    g.I(f"v_add_u32 v{t+4}, s{S_T0}, v{t+4}")
    g.I("s_waitcnt lgkmcnt(0)")
    g.I("s_barrier")
    ML = 24
    for k in range(4):
        g.I(f"ds_read_b128 {vr(ML+4*k,4)}, v{t+3} offset:{L_ML+16*k}")
    OPR = V_RING
    for w in range(8):
        g.I(f"ds_read_b64 {vr(OPR+2*w,2)}, v{t+4} offset:{L_OP+512*w}")
    g.I("s_waitcnt lgkmcnt(8)")
    M = t
    g.I(f"v_max3_f32 v{M}, v{ML}, v{ML+2}, v{ML+4}")
    g.I(f"v_max3_f32 v{M}, v{M}, v{ML+6}, v{ML+8}")
    g.I(f"v_max3_f32 v{M}, v{M}, v{ML+10}, v{ML+12}")
    g.I(f"v_max_f32 v{M}, v{M}, v{ML+14}")
    for w in range(8):
        g.I(f"v_sub_f32 v{ML+2*w}, v{ML+2*w}, v{M}")
    for w in range(8):
        g.I(f"v_mul_f32 v{ML+2*w}, s{S_LOG2E}, v{ML+2*w}")
    for w in range(8):
        g.I(f"v_exp_f32 v{ML+2*w}, v{ML+2*w}")
    oa, ob = t + 5, t + 6
    g.I("s_waitcnt lgkmcnt(0)")
    g.I(f"v_mul_f32 v{oa}, v{ML}, v{OPR}")
    g.I(f"v_mul_f32 v{ob}, v{ML}, v{OPR+1}")
    for w in range(1, 8):
        g.I(f"v_fmac_f32 v{oa}, v{ML+2*w}, v{OPR+2*w}")
        g.I(f"v_fmac_f32 v{ob}, v{ML+2*w}, v{OPR+2*w+1}")
    g.I(f"v_cvt_pk_bf16_f32 v{oa}, v{oa}, v{ob}")
    so = list(range(4, 12))
    Lr = t + 1
    g.I(f"v_mul_f32 v{Lr}, v{ML}, v{ML+1}")
    for k in range(8):
        g.I(f"v_readlane_b32 s{so[k]}, v{oa}, {k}")
    for w in range(1, 8):
        g.I(f"v_fmac_f32 v{Lr}, v{ML+2*w}, v{ML+2*w+1}")
    YA = V_ACC
    for k in range(8):
        for j in range(4):
            A, B = V_W + 8 * k + j, V_W + 8 * k + 4 + j
            c0 = "0" if k == 0 else f"v{YA+2*j}"
            c1 = "0" if k == 0 else f"v{YA+2*j+1}"
            g.I(f"v_dot2_f32_bf16 v{YA+2*j}, v{A}, s{so[k]}, {c0}")
            g.I(f"v_dot2_f32_bf16 v{YA+2*j+1}, v{B}, s{so[k]}, {c1}")
    g.I(f"v_lshlrev_b32 v{t+3}, 5, v{V_LANE}")
    g.I(f"s_lshl_b32 s{S_T0}, s{S_WAVE}, 11")
    g.I(f"v_add_u32 v{t+4}, s{S_T0}, v{t+3}")
    g.nop(1)
    g.I(f"ds_write_b128 v{t+4}, {vr(YA,4)} offset:{L_YP}")
    g.I(f"ds_write_b128 v{t+4}, {vr(YA+4,4)} offset:{L_YP+16}")
    g.I("s_waitcnt lgkmcnt(0)")
    g.I("s_barrier")
    if cfg.parc:
        g.I(f"v_lshlrev_b32 v{t+3}, 11, v{V_G}")
        g.I(f"v_lshl_add_u32 v{t+3}, v{V_Cc}, 4, v{t+3}")
        g.I(f"s_lshl_b32 s{S_T0}, s{S_WAVE}, 8")
        g.I(f"v_add_u32 v{t+3}, s{S_T0}, v{t+3}")
        g.I(f"ds_read_b128 {vr(V_RING,4)}, v{t+3} offset:{L_YP}")
        g.I(f"ds_read_b128 {vr(V_RING+4,4)}, v{t+3} offset:{L_YP+8192}")
        g.I(f"v_lshrrev_b32 v{t+4}, 3, v{V_Cc}")
        g.I(f"v_lshlrev_b32 v{t+4}, 15, v{t+4}")
        g.I(f"v_and_b32 v{t+5}, 7, v{V_Cc}")
        g.I(f"v_lshl_add_u32 v{t+4}, v{t+5}, 4, v{t+4}")
        g.I(f"v_lshl_add_u32 v{t+4}, v{V_G}, 2, v{t+4}")
        g.I(f"s_lshl_b32 s{S_T0}, s{S_WAVE}, 16")
        g.I(f"s_lshl_b32 s{S_T1}, s{S_P}, 7")
        g.I(f"s_add_u32 s{S_T0}, s{S_T0}, s{S_T1}")
        g.I(f"s_lshl_b32 s{S_T1}, s{S_P}, 3")
        g.I(f"s_add_u32 s{S_T1}, s{S_T1}, {WS_ML}")
        g.I(f"v_mov_b32 v{t+5}, 0")
        g.I("s_waitcnt lgkmcnt(0)")
        for j in range(4):
            g.I(f"v_add_f32 v{V_RING+j}, v{V_RING+j}, v{V_RING+4+j}")
        reduce_scatter_rows(g, [V_RING + j for j in range(4)])
        g.I(f"buffer_store_dword v{V_RING}, v{t+4}, {sr(R_WS,4)}, s{S_T0} offen sc0 sc1")
        g.I(f"s_cmp_lg_u32 s{S_WAVE}, 0")
        g.I("s_cbranch_scc1 L_after_pub")
        g.I("s_mov_b64 exec, 1")
        g.I(f"buffer_store_dwordx2 {vr(t,2)}, v{t+5}, {sr(R_WS,4)}, s{S_T1} offen sc0 sc1")
        g.I("s_mov_b64 exec, -1")
    else:
        g.I(f"s_cmp_lg_u32 s{S_WAVE}, 0")
        g.I("s_cbranch_scc1 L_after_pub")
        g.I(f"v_lshlrev_b32 v{t+3}, 4, v{V_LANE}")
        for w in range(8):
            g.I(f"ds_read_b128 {vr(V_RING+8*w,4)}, v{t+3} offset:{L_YP+2048*w}")
            g.I(f"ds_read_b128 {vr(V_RING+8*w+4,4)}, v{t+3} offset:{L_YP+2048*w+1024}")
        y_addr(t + 3, t + 4)
        g.I(f"s_lshl_b32 s{S_T0}, s{S_P}, 7")
        g.I(f"s_add_u32 s{S_T2}, s{S_T0}, {8*32768}")
        g.I(f"s_lshl_b32 s{S_T1}, s{S_P}, 3")
        g.I(f"s_add_u32 s{S_T1}, s{S_T1}, {WS_ML}")
        g.I(f"v_mov_b32 v{t+4}, 0")
        g.I(f"v_cmp_eq_u32 vcc, 0, v{V_LANE}")
        g.I("s_waitcnt lgkmcnt(0)")
        for step in (1, 2, 4):
            for w in range(0, 8, 2 * step):
                for j in range(8):
                    g.I(f"v_add_f32 v{V_RING+8*w+j}, v{V_RING+8*w+j}, v{V_RING+8*(w+step)+j}")
        g.I(f"buffer_store_dwordx4 {vr(V_RING,4)}, v{t+3}, {sr(R_WS,4)}, s{S_T0} offen sc0 sc1")
        g.I(f"buffer_store_dwordx4 {vr(V_RING+4,4)}, v{t+3}, {sr(R_WS,4)}, s{S_T2} offen sc0 sc1")
        g.I(f"s_and_saveexec_b64 {sr(S_EX,2)}, vcc")
        g.I(f"buffer_store_dwordx2 {vr(t,2)}, v{t+4}, {sr(R_WS,4)}, s{S_T1} offen sc0 sc1")
        g.I(f"s_mov_b64 exec, {sr(S_EX,2)}")
    g.lab("L_after_pub")
    stamp(g, cfg, 3)

    def finisher(fid_sreg):
        t = V_T
        a0 = t
        g.I(f"v_lshlrev_b32 v62, 2, v{V_LANE}")
        g.I(f"v_and_b32 v62, 0x7f, v62")
        g.I(f"s_mov_b32 s{S_CNT}, 0x40000")
        g.lab("L_cpoll")
        g.I(f"v_cmp_gt_u32 vcc, 8, v63")
        g.I("s_cbranch_vccz L_cdone")
        g.I(f"s_sub_u32 s{S_CNT}, s{S_CNT}, 1")
        g.I(f"s_cmp_eq_u32 s{S_CNT}, 0")
        g.I("s_cbranch_scc1 L_cdone")
        g.I(f"buffer_load_dword v63, v62, {sr(R_DBG,4)}, 0 offen sc0 sc1")
        g.I("s_waitcnt vmcnt(0)")
        g.I("s_branch L_cpoll")
        g.lab("L_cdone")
        stamp(g, cfg, 4)
        g.I(f"v_lshrrev_b32 v{a0}, 2, v{V_TID}")
        g.I(f"v_lshlrev_b32 v{a0}, 7, v{a0}")
        g.I(f"v_and_b32 v{a0+1}, 3, v{V_TID}")
        g.I(f"v_lshl_add_u32 v{a0}, v{a0+1}, 4, v{a0}")
        g.I(f"s_lshr_b32 s{S_T0}, s{fid_sreg}, 1")
        g.I(f"s_lshl_b32 s{S_T0}, s{S_T0}, 15")
        g.I(f"s_and_b32 s{S_T1}, s{fid_sreg}, 1")
        g.I(f"s_lshl_b32 s{S_T1}, s{S_T1}, 6")
        g.I(f"s_add_u32 s{S_T0}, s{S_T0}, s{S_T1}")
        g.I(f"s_add_u32 s{S_T1}, s{S_T0}, 16384")
        g.I(f"s_add_u32 s{S_T2}, s{S_T0}, {WS_G}")
        g.I(f"s_add_u32 s{S_OFF}, s{S_T1}, {WS_G}")
        g.I(f"s_mov_b32 s{S_GJ}, {WS_ML}")
        Y1, Y2, G1, G2 = V_RING, V_RING + 4, V_RING + 8, V_RING + 12
        MLv = V_RING + 16
        g.I(f"v_and_b32 v{a0+1}, 15, v{V_LANE}")
        g.I(f"v_bfe_u32 v{a0+2}, v{V_LANE}, 4, 1")
        g.I(f"v_lshl_add_u32 v{a0+1}, v{a0+2}, 7, v{a0+1}")
        g.I(f"s_lshl_b32 s{S_RB}, s{S_WAVE}, 4")
        g.I(f"v_add_u32 v{a0+1}, s{S_RB}, v{a0+1}")
        g.I(f"v_lshlrev_b32 v{a0+1}, 3, v{a0+1}")
        g.I(f"v_and_b32 v{a0+5}, 15, v{V_TID}")
        g.I(f"v_lshlrev_b32 v{a0+5}, 1, v{a0+5}")
        g.I(f"s_lshl_b32 s{S_RB}, s{fid_sreg}, 5")
        g.I(f"buffer_load_ushort v{a0+6}, v{a0+5}, {sr(R_X,4)}, s{S_RB} offen")
        g.I(f"v_cmp_gt_u32 vcc, {96*4}, v{V_TID}")
        g.I(f"s_mov_b64 s[92:93], vcc")
        for j in range(4):
            g.I(f"v_mov_b32 v{G2+j}, 0")
        if cfg.stage1:
            g.I(f"s_mov_b32 s{S_CNT}, 0x40000")
            g.lab("L_mpoll")
            g.I(f"buffer_load_dwordx2 {vr(MLv,2)}, v{a0+1}, {sr(R_WS,4)}, s{S_GJ} offen sc0 sc1")
            g.I("s_waitcnt vmcnt(0)")
            g.I(f"v_max_u32 v{a0+8}, v{MLv}, v{MLv+1}")
            g.I(f"v_cmp_eq_u32 vcc, -1, v{a0+8}")
            g.I(f"s_bcnt1_i32_b64 s{S_RB}, vcc")
            g.I(f"s_cmp_lt_u32 s{S_RB}, {2*cfg.stage1}")
            g.I("s_cbranch_scc1 L_mdone")
            g.I(f"s_sub_u32 s{S_CNT}, s{S_CNT}, 1")
            g.I(f"s_cmp_lg_u32 s{S_CNT}, 0")
            g.I("s_cbranch_scc1 L_mpoll")
            g.lab("L_mdone")
        g.I(f"s_mov_b32 s{S_CNT}, 0x40000")
        g.lab("L_dpoll")
        g.I(f"buffer_load_dwordx2 {vr(MLv,2)}, v{a0+1}, {sr(R_WS,4)}, s{S_GJ} offen sc0 sc1")
        g.I(f"buffer_load_dwordx4 {vr(Y1,4)}, v{a0}, {sr(R_WS,4)}, s{S_T0} offen sc0 sc1")
        g.I(f"buffer_load_dwordx4 {vr(Y2,4)}, v{a0}, {sr(R_WS,4)}, s{S_T1} offen sc0 sc1")
        g.I(f"buffer_load_dwordx4 {vr(G1,4)}, v{a0}, {sr(R_WS,4)}, s{S_T2} offen sc0 sc1")
        g.I(f"s_and_b64 s[94:95], s[92:93], exec")
        g.I(f"s_cbranch_scc0 L_nog2")
        g.I(f"s_mov_b64 exec, s[92:93]")
        g.I(f"buffer_load_dwordx4 {vr(G2,4)}, v{a0}, {sr(R_WS,4)}, s{S_OFF} offen sc0 sc1")
        g.I(f"s_mov_b64 exec, -1")
        g.lab("L_nog2")
        g.I("s_waitcnt vmcnt(0)")
        mx = a0 + 8
        g.I(f"v_max3_u32 v{mx}, v{Y1}, v{Y1+1}, v{Y1+2}")
        g.I(f"v_max3_u32 v{mx+1}, v{Y1+3}, v{Y2}, v{Y2+1}")
        g.I(f"v_max3_u32 v{mx}, v{mx}, v{Y2+2}, v{Y2+3}")
        g.I(f"v_max3_u32 v{mx+1}, v{mx+1}, v{G1}, v{G1+1}")
        g.I(f"v_max3_u32 v{mx}, v{mx}, v{G1+2}, v{G1+3}")
        g.I(f"v_max3_u32 v{mx+1}, v{mx+1}, v{G2}, v{G2+1}")
        g.I(f"v_max3_u32 v{mx}, v{mx}, v{G2+2}, v{G2+3}")
        g.I(f"v_max3_u32 v{mx+1}, v{mx+1}, v{MLv}, v{MLv+1}")
        g.I(f"v_max_u32 v{mx}, v{mx}, v{mx+1}")
        g.I(f"v_cmp_eq_u32 vcc, -1, v{mx}")
        g.I("s_cbranch_vccz L_ddone")
        if cfg.psleep:
            g.I(f"s_sleep {cfg.psleep}")
        g.I(f"s_sub_u32 s{S_CNT}, s{S_CNT}, 1")
        g.I(f"s_cmp_lg_u32 s{S_CNT}, 0")
        g.I("s_cbranch_scc1 L_dpoll")
        g.lab("L_ddone")
        stamp(g, cfg, 9)
        M, W, Ls = a0 + 8, a0 + 9, a0 + 10
        g.I(f"v_mov_b32 v{M}, v{MLv}")
        g.nop(1)
        for dpp in ("quad_perm:[1,0,3,2]", "quad_perm:[2,3,0,1]", "row_half_mirror"):
            g.I(f"v_max_f32_dpp v{M}, v{M}, v{M} {dpp} row_mask:0xf bank_mask:0xf")
            g.nop(2)
        g.I(f"v_sub_f32 v{W}, v{MLv}, v{M}")
        g.I(f"v_mul_f32 v{W}, s{S_LOG2E}, v{W}")
        g.I(f"v_exp_f32 v{W}, v{W}")
        g.nop(1)
        g.I(f"v_mul_f32 v{Ls}, v{W}, v{MLv+1}")
        g.nop(2)
        for dpp in ("quad_perm:[1,0,3,2]", "quad_perm:[2,3,0,1]", "row_half_mirror"):
            g.I(f"v_add_f32_dpp v{Ls}, v{Ls}, v{Ls} {dpp} row_mask:0xf bank_mask:0xf")
            g.nop(2)
        c = a0 + 11
        g.I(f"v_rcp_f32 v{c}, v{Ls}")
        g.nop(1)
        g.I(f"v_fma_f32 v{M}, -v{Ls}, v{c}, 1.0")
        g.I(f"v_fma_f32 v{c}, v{M}, v{c}, v{c}")
        g.I(f"v_mul_f32 v{c}, v{c}, v{W}")
        g.I(f"v_and_b32 v{a0+1}, 0x3c, v{V_LANE}")
        g.I(f"v_add_u32 v{a0+2}, 64, v{a0+1}")
        c1, c2 = a0 + 8, a0 + 9
        g.I(f"ds_bpermute_b32 v{c1}, v{a0+1}, v{c}")
        g.I(f"ds_bpermute_b32 v{c2}, v{a0+2}, v{c}")
        for j in range(4):
            g.I(f"v_add_f32 v{G1+j}, v{G1+j}, v{G2+j}")
        g.I("s_waitcnt lgkmcnt(0)")
        for j in range(4):
            g.I(f"v_mul_f32 v{Y1+j}, v{c1}, v{Y1+j}")
        for j in range(4):
            g.I(f"v_fmac_f32 v{Y1+j}, v{c2}, v{Y2+j}")
        R8 = [Y1 + j for j in range(4)] + [G1 + j for j in range(4)]
        g.nop(2)
        for r in (4, 8):
            for x in R8:
                g.I(f"v_add_f32_dpp v{x}, v{x}, v{x} row_ror:{r} row_mask:0xf bank_mask:0xf")
        reduce_scatter_rows(g, R8)
        g.I(f"v_and_b32 v{a0}, 3, v{V_LANE}")
        g.I(f"v_lshlrev_b32 v{a0}, 4, v{a0}")
        g.I(f"v_and_b32 v{a0+1}, 1, v{V_G}")
        g.I(f"v_lshl_add_u32 v{a0}, v{a0+1}, 3, v{a0}")
        g.I(f"v_lshrrev_b32 v{a0+1}, 1, v{V_G}")
        g.I(f"v_lshl_add_u32 v{a0}, v{a0+1}, 6, v{a0}")
        g.I(f"s_lshl_b32 s{S_T0}, s{S_WAVE}, 7")
        g.I(f"v_add_u32 v{a0}, s{S_T0}, v{a0}")
        g.I(f"ds_write_b64 v{a0}, {vr(R8[0],2)} offset:{L_FIN}")
        g.I("s_waitcnt lgkmcnt(0)")
        g.I("s_barrier")
        g.I(f"s_cmp_lg_u32 s{S_WAVE}, 0")
        g.I("s_cbranch_scc1 L_end2")
        g.I(f"v_and_b32 v{a0}, 15, v{V_LANE}")
        g.I(f"v_lshlrev_b32 v{a0}, 2, v{a0}")
        for w in range(8):
            g.I(f"ds_read_b32 v{V_RING+16+w}, v{a0} offset:{L_FIN+128*w}")
            g.I(f"ds_read_b32 v{V_RING+24+w}, v{a0} offset:{L_FIN+128*w+64}")
        g.I("s_waitcnt lgkmcnt(0)")
        for step in (1, 2, 4):
            for w in range(0, 8, 2 * step):
                g.I(f"v_add_f32 v{V_RING+16+w}, v{V_RING+16+w}, v{V_RING+16+w+step}")
                g.I(f"v_add_f32 v{V_RING+24+w}, v{V_RING+24+w}, v{V_RING+24+w+step}")
        bf16_round2(g, V_RING + 16, V_RING + 24, a0 + 1)
        g.I(f"v_lshlrev_b32 v{a0+6}, 16, v{a0+6}")
        g.I(f"v_add_f32 v{a0+6}, v{a0+6}, v{V_RING+16}")
        bf16_round1(g, a0 + 6, a0 + 6, a0 + 1)
        g.I(f"v_add_f32 v{a0+6}, v{a0+6}, v{V_RING+24}")
        g.I(f"v_cvt_pk_bf16_f32 v{a0+6}, v{a0+6}, v{a0+6}")
        g.I(f"v_cmp_gt_u32 vcc, 16, v{V_LANE}")
        g.I(f"s_and_saveexec_b64 {sr(S_EX,2)}, vcc")
        g.I(f"s_lshl_b32 s{S_T2}, s{fid_sreg}, 5")
        g.I(f"buffer_store_short v{a0+6}, v{a0+5}, {sr(R_OUT,4)}, s{S_T2} offen")
        stamp(g, cfg, 5)
        g.lab("L_end2")

    g.I("s_cmp_ge_u32 s2, 32")
    g.I("s_cbranch_scc1 L_end")
    finisher(2)
    g.lab("L_end")
    g.I("s_endpgm")

    g.L.append('.section .rodata,"a"')
    g.L.append(".p2align 6")
    g.L.append(f".amdhsa_kernel {kmain}")
    g.L.append("  .amdhsa_next_free_vgpr 256")
    g.L.append("  .amdhsa_next_free_sgpr 102")
    g.L.append("  .amdhsa_accum_offset 256")
    g.L.append("  .amdhsa_group_segment_fixed_size 0")
    g.L.append("  .amdhsa_kernarg_size 96")
    g.L.append("  .amdhsa_user_sgpr_count 2")
    g.L.append("  .amdhsa_user_sgpr_kernarg_segment_ptr 1")
    g.L.append("  .amdhsa_system_sgpr_workgroup_id_x 1")
    g.L.append(".end_amdhsa_kernel")
    return g.text()


if __name__ == "__main__":
    ap = argparse.ArgumentParser()
    ap.add_argument("--nt", type=int, default=1)
    ap.add_argument("--stamp", type=int, default=0)
    ap.add_argument("--loopbar", type=int, default=4)
    ap.add_argument("--lnwave", type=int, default=0)
    ap.add_argument("--hot", type=int, default=0)
    ap.add_argument("--pbars", type=str, default="[[0,1,2,3],[0,1,2,3],[0,1,2,3]]")
    ap.add_argument("--peell", type=int, default=1)
    ap.add_argument("--early0", type=int, default=0)
    ap.add_argument("--clr_at", type=int, default=0)
    ap.add_argument("--psleep", type=int, default=0)
    ap.add_argument("--stage1", type=int, default=3)
    ap.add_argument("--parc", type=int, default=1)
    ap.add_argument("--noclr", type=int, default=0)
    ap.add_argument("--noln", type=int, default=0)
    ap.add_argument("--touch", type=int, default=0)
    ap.add_argument("--wq1", type=int, default=0)
    ap.add_argument("--glueff", type=int, default=0)
    ap.add_argument("--wnt", type=int, default=9)
    ap.add_argument("--hmap", type=int, default=1)
    ap.add_argument("--nocompute", type=int, default=0)
    ap.add_argument("--notail", type=int, default=0)
    ap.add_argument("--nowo", type=int, default=0)
    ap.add_argument("--noglu", type=int, default=0)
    ap.add_argument("--nowq", type=int, default=0)
    ap.add_argument("--wosched", type=str, default="{0:[0],3:[1,2],4:[3,4],5:[5,6],6:[7]}")
    ap.add_argument("--glu_at", type=int, default=1)
    ap.add_argument("--issue", type=str, default="1,2,3,5")
    ap.add_argument("-o", default="parallel_sum__mha_block_cached__glu_gated_glu__decode.s")
    cfg = ap.parse_args()
    cfg.issue_at = [int(x) for x in cfg.issue.split(",")]
    cfg.wo_sched = eval(cfg.wosched)
    cfg.pbar = eval(cfg.pbars)
    assert len(cfg.issue_at) == 4
    open(cfg.o, "w").write(gen(cfg))
    print("wrote", cfg.o)
```
